```python
import torch

def _softmax(x, axis=-1):
    return torch.softmax(x, dim=axis)
def _gelu(x):
    return torch.nn.functional.gelu(x, approximate="tanh")
def _silu(x):
    return torch.nn.functional.silu(x)
def _sigmoid(x):
    return torch.sigmoid(x)
def _layernorm(x, axis=-1, eps=1e-5):
    m = x.mean(dim=axis, keepdim=True)
    v = x.var(dim=axis, keepdim=True, unbiased=False)
    return (x - m) / torch.sqrt(v + eps)
def _scatter_add(tgt, idx, src, axis=0):
    return tgt.clone().index_add_(axis, idx, src)
def _segment_sum(src, seg, n):
    out = torch.zeros((n,) + src.shape[1:], dtype=src.dtype)
    return out.index_add_(0, seg, src)
def _pad(x, pw):
    flat = tuple(v for pair in reversed(pw) for v in pair)
    return torch.nn.functional.pad(x, flat)

kernel_name = 'concat_heads__gqa_block_cached__mha_block_cached__near_ridge'

def setup_inputs():

    _w = (lambda a: (lambda t: t.to(torch.bfloat16) if t.is_floating_point() else t)(torch.as_tensor(a)))
    def _A_setup():
        B, Sq, D = 8, 32, 512
        Hq, Hkv, Sk, Dh = 32, 8, 2048, 128
        assert Hq % Hkv == 0, (Hq, Hkv)
        return {
            "x": _w((lambda *s: torch.randn(*s, dtype=torch.bfloat16) * 0.8)(B, Sq, D)),
            "k_cache": _w((lambda *s: torch.randn(*s, dtype=torch.bfloat16) * 0.8)(B, Hkv, Sk, Dh)),
            "v_cache": _w((lambda *s: torch.randn(*s, dtype=torch.bfloat16) * 0.05)(B, Hkv, Sk, Dh)),
            "wq": _w((lambda *s: torch.randn(*s, dtype=torch.bfloat16) * 0.8)(D, Hq * Dh) * (D ** -0.5)),
            "wo": _w((lambda *s: torch.randn(*s, dtype=torch.bfloat16) * 0.05)(Hq * Dh, D) * ((Hq * Dh) ** -0.5)),
        }
    _A_in = _A_setup()

    def _B_setup():
        B, Sq, D = 8, 32, 512
        H, Sk, Dh = 32, 2048, 128
        return {
            "x": _w((lambda *s: torch.randn(*s, dtype=torch.bfloat16) * 0.8)(B, Sq, D)),
            "k_cache": _w((lambda *s: torch.randn(*s, dtype=torch.bfloat16) * 0.8)(B, H, Sk, Dh)),
            "v_cache": _w((lambda *s: torch.randn(*s, dtype=torch.bfloat16) * 0.05)(B, H, Sk, Dh)),
            "wq": _w((lambda *s: torch.randn(*s, dtype=torch.bfloat16) * 0.8)(D, H * Dh) * (D ** -0.5)),
            "wo": _w((lambda *s: torch.randn(*s, dtype=torch.bfloat16) * 0.05)(H * Dh, D) * ((H * Dh) ** -0.5)),
        }
    _B_in = _B_setup()

    return {
        "A_x": _A_in["x"],
        "A_k_cache": _A_in["k_cache"],
        "A_v_cache": _A_in["v_cache"],
        "A_wq": _A_in["wq"],
        "A_wo": _A_in["wo"],
        "B_x": _B_in["x"],
        "B_k_cache": _B_in["k_cache"],
        "B_v_cache": _B_in["v_cache"],
        "B_wq": _B_in["wq"],
        "B_wo": _B_in["wo"],
    }

def reference(A_x, A_k_cache, A_v_cache, A_wq, A_wo, B_x, B_k_cache, B_v_cache, B_wq, B_wo):
    def _A_ref(x, k_cache, v_cache, wq, wo):
        B, Sq, D = x.shape
        Hq, Dh = 32, 128
        Hkv = k_cache.shape[1]
        rep = Hq // Hkv
        q = (lambda x, *d: x.permute(*d))((x @ wq).reshape(B, Sq, Hq, Dh), 0, 2, 1, 3)
        k = (lambda x, n, axis: torch.repeat_interleave(x, n, dim=axis))(k_cache, rep, axis=1)
        v = (lambda x, n, axis: torch.repeat_interleave(x, n, dim=axis))(v_cache, rep, axis=1)
        scores = torch.einsum("bhqd,bhkd->bhqk", q, k) * (Dh ** -0.5)
        p = _softmax(scores, axis=-1)
        o = torch.einsum("bhqk,bhkd->bhqd", p, v)
        return (lambda x, *d: x.permute(*d))(o, 0, 2, 1, 3).reshape(B, Sq, Hq * Dh) @ wo

    def _B_ref(x, k_cache, v_cache, wq, wo):
        B, Sq, D = x.shape
        H, Dh = 32, 128
        q = (lambda x, *d: x.permute(*d))((x @ wq).reshape(B, Sq, H, Dh), 0, 2, 1, 3)
        scores = torch.einsum("bhqd,bhkd->bhqk", q, k_cache) * (Dh ** -0.5)
        p = _softmax(scores, axis=-1)
        o = torch.einsum("bhqk,bhkd->bhqd", p, v_cache)
        return (lambda x, *d: x.permute(*d))(o, 0, 2, 1, 3).reshape(B, Sq, H * Dh) @ wo

    a = _A_ref(A_x, A_k_cache, A_v_cache, A_wq, A_wo)
    b = _B_ref(B_x, B_k_cache, B_v_cache, B_wq, B_wo)
    return torch.concatenate([a, b], axis=-1)
```

```python
NAME = 'concat_heads__gqa_block_cached__mha_block_cached__near_ridge'

class Asm:
    def __init__(self):
        self.lines = []
        self.uid = 0
    def __call__(self, s=''):
        for l in s.split('\n'):
            self.lines.append('    ' + l.strip() if l.strip() and not l.strip().endswith(':') else l.strip())
    def label(self, name):
        self.lines.append(name + ':')
    def newlabel(self, base='L'):
        self.uid += 1
        return f'{base}_{self.uid}'
    def c(self, s):
        self.lines.append('    ; ' + s)
    def text(self):
        return '\n'.join(self.lines) + '\n'

def kernel_header(name):
    return f'''.globl {name}
.p2align 8
.type {name},@function
{name}:
'''

def kernel_desc(name, vgpr, sgpr=102, accum=None):
    if accum is None:
        accum = (vgpr + 3) // 4 * 4
    return f'''.amdhsa_kernel {name}
  .amdhsa_next_free_vgpr {vgpr}
  .amdhsa_next_free_sgpr {sgpr}
  .amdhsa_accum_offset {accum}
  .amdhsa_group_segment_fixed_size 0
  .amdhsa_kernarg_size 104
  .amdhsa_user_sgpr_count 2
  .amdhsa_user_sgpr_kernarg_segment_ptr 1
  .amdhsa_system_sgpr_workgroup_id_x 1
.end_amdhsa_kernel
'''

def file_text(launches, kernels):
    t = '; generated by gen/*.py (hand-written generator)\n'
    for (k, g, b, lds) in launches:
        if k is None:
            t += f'; @launch grid=({g},1,1) block=({b},1,1) lds={lds}\n'
        else:
            t += f'; @launch kernel={k} grid=({g},1,1) block=({b},1,1) lds={lds}\n'
    t += '.amdgcn_target "amdgcn-amd-amdhsa--gfx950"\n.text\n'
    for (name, body, vgpr, sgpr, accum) in kernels:
        t += kernel_header(name) + body + '\n'
    t += '.section .rodata,"a"\n'
    for (name, body, vgpr, sgpr, accum) in kernels:
        t += '.p2align 6\n' + kernel_desc(name, vgpr, sgpr, accum)
    return t
```

```python
import re

REG_RE = re.compile(r'^(v|a|s)(\d+)$|^(v|a|s)\[(\d+):(\d+)\]$')
TRANS = ('v_exp_f32', 'v_log_f32', 'v_rcp_f32', 'v_rsq_f32', 'v_sqrt_f32', 'v_sin_f32', 'v_cos_f32', 'v_rcp_iflag_f32')

def regs_of(tok):
    tok = tok.strip()
    if tok.startswith('-'): tok = tok[1:]
    if tok.startswith('abs(') and tok.endswith(')'): tok = tok[4:-1]
    if tok.startswith('|') and tok.endswith('|'): tok = tok[1:-1]
    m = REG_RE.match(tok)
    if m:
        if m.group(1):
            return {(m.group(1), int(m.group(2)))}
        return {(m.group(3), i) for i in range(int(m.group(4)), int(m.group(5)) + 1)}
    if tok == 'vcc': return {('s', 106), ('s', 107)}
    if tok == 'vcc_lo': return {('s', 106)}
    if tok == 'vcc_hi': return {('s', 107)}
    if tok == 'exec': return {('x', 0), ('x', 1)}
    if tok == 'm0': return {('m', 0)}
    return set()

class Ins:
    __slots__ = ('text', 'op', 'ops', 'kind', 'wr', 'rd', 'srcA', 'srcB', 'srcC', 'passes', 'label', 'target', 'nop', 'mods', 'dpp', 'lds', 'storedata')
    def __init__(self, text):
        self.text = text
        self.label = None; self.op = None; self.kind = None
        self.wr = set(); self.rd = set(); self.srcA = set(); self.srcB = set(); self.srcC = set()
        self.passes = 0; self.target = None; self.nop = 0; self.dpp = False; self.lds = False; self.storedata = set()
        t = text.split(';')[0].strip()
        if not t: return
        if t.endswith(':'):
            self.label = t[:-1]; return
        if t.startswith('.'):
            return
        parts = t.split(None, 1)
        op = parts[0]; self.op = op
        rest = parts[1] if len(parts) > 1 else ''
        toks = [x.strip() for x in rest.split(',')] if rest else []
        ops = []
        mods = []
        for i, tk in enumerate(toks):
            sp = tk.split()
            if sp:
                ops.append(sp[0]); mods += sp[1:]
        self.ops = ops; self.mods = mods
        R = [regs_of(o) for o in ops]
        base = op
        for suf in ('_e32', '_e64', '_dpp', '_sdwa'):
            if base.endswith(suf): base = base[:-len(suf)]
        if op.endswith('_dpp') or any(m.startswith(('row_', 'quad_perm', 'wave_')) for m in mods): self.dpp = True
        if op.startswith('v_mfma'):
            self.kind = 'mfma'
            self.wr = R[0]; self.srcA = R[1]; self.srcB = R[2]; self.srcC = R[3] if len(R) > 3 else set()
            self.rd = self.srcA | self.srcB | self.srcC
            if '32x32x16' in op or '32x32x8' in op: self.passes = 8
            elif '16x16x32' in op or '16x16x16' in op: self.passes = 4
            else: raise Exception('unknown mfma ' + op)
        elif op.startswith('v_'):
            self.kind = 'valu'
            if base.startswith('v_cmp'):
                self.wr = R[0]; self.rd = set().union(*R[1:]) if len(R) > 1 else set()
                if base.startswith('v_cmpx'): self.wr |= {('x', 0), ('x', 1)}
            elif base.startswith('v_permlane') and 'swap' in base:
                self.wr = R[0] | R[1]; self.rd = R[0] | R[1]
            elif base in ('v_add_co_u32', 'v_sub_co_u32', 'v_subrev_co_u32'):
                self.wr = R[0] | R[1]; self.rd = set().union(*R[2:])
            elif base in ('v_addc_co_u32', 'v_subb_co_u32'):
                self.wr = R[0] | R[1]; self.rd = set().union(*R[2:])
            elif base in ('v_fmac_f32', 'v_pk_fmac_f16', 'v_writelane_b32'):
                self.wr = R[0]; self.rd = set().union(*R)
            elif base == 'v_cndmask_b32':
                self.wr = R[0]; self.rd = set().union(*R[1:])
                if len(R) == 3: self.rd |= regs_of('vcc')
            elif base == 'v_nop':
                pass
            else:
                self.wr = R[0]; self.rd = set().union(*R[1:]) if len(R) > 1 else set()
        elif op.startswith('ds_'):
            self.kind = 'ds'
            if op.startswith(('ds_read', 'ds_bpermute', 'ds_permute', 'ds_swizzle')) or '_rtn' in op:
                self.wr = R[0]; self.rd = set().union(*R[1:]) if len(R) > 1 else set()
            else:
                self.rd = set().union(*R)
        elif op.startswith(('buffer_', 'global_', 'flat_', 'scratch_')):
            self.kind = 'vmem'
            self.lds = ('lds' in mods) or ('_lds_' in op)
            if op.startswith(('buffer_wbl2', 'buffer_inv')):
                pass
            elif self.lds:
                self.rd = set().union(*R) | {('m', 0)}
            elif 'load' in op:
                self.wr = R[0]; self.rd = set().union(*R[1:])
            elif 'atomic' in op:
                if 'sc0' in mods and op.startswith('global_'):
                    self.wr = R[0]; self.rd = set().union(*R[1:])
                else:
                    self.rd = set().union(*R)
            else:
                self.rd = set().union(*R)
                if op.endswith(('x3', 'x4')):
                    self.storedata = R[0] if op.startswith('buffer_') else R[1]
        elif op.startswith('s_'):
            self.kind = 'salu'
            if op == 's_nop':
                self.nop = int(ops[0], 0) + 1
            elif op in ('s_branch',) or op.startswith('s_cbranch'):
                self.target = ops[0]
            elif op.startswith(('s_cmp', 's_waitcnt', 's_barrier', 's_endpgm', 's_setprio', 's_sleep', 's_bitcmp')):
                self.rd = set().union(*R) if R else set()
            elif op.startswith(('s_load', 's_buffer_load', 's_memtime', 's_memrealtime', 's_getreg')):
                self.kind = 'smem' if 'load' in op or 'mem' in op else 'salu'
                self.wr = R[0]; self.rd = set().union(*R[1:]) if len(R) > 1 else set()
            else:
                self.wr = R[0] if R else set(); self.rd = set().union(*R[1:]) if len(R) > 1 else set()
                if 'saveexec' in op: self.wr |= {('x', 0), ('x', 1)}
        else:
            raise Exception('unknown op: ' + text)
    def states(self):
        if self.op is None: return 0
        if self.op == 's_nop': return self.nop
        return 1

def vset(s): return {r for r in s if r[0] in 'va'}
def sset(s): return {r for r in s if r[0] == 's'}

def required(p, c):
    need = 0
    if p.kind is None or c.kind is None: return 0
    pw = p.wr
    if p.kind == 'valu':
        pv = vset(pw); ps = sset(pw)
        if c.kind == 'mfma' and pv & c.rd: need = max(need, 2)
        if c.kind == 'valu':
            if c.op.startswith('v_permlane') and pv & c.rd: need = max(need, 2)
            if c.dpp and pv & c.rd: need = max(need, 2)
            if c.op.startswith(('v_readlane', 'v_readfirstlane')) and pv & c.rd: need = max(need, 1)
            if p.op.split('_e')[0] in TRANS or p.op in TRANS:
                if (pv & c.rd) and not (c.op in TRANS): need = max(need, 1)
            if ps & c.rd: need = max(need, 2)
            if c.op.startswith(('v_readlane', 'v_writelane')) and ps & c.rd: need = max(need, 4)
            if ('x', 0) in pw:
                need = max(need, 5 if c.dpp else 4)
        if c.kind == 'vmem' and ps & c.rd: need = max(need, 5)
        if c.kind == 'mfma' and ('x', 0) in pw: need = max(need, 4)
    if p.kind == 'mfma':
        n = p.passes
        d = p.wr
        if c.kind == 'mfma':
            if d & (c.srcA | c.srcB): need = max(need, {4: 8, 8: 12}[n])
            if d & c.srcC:
                if c.srcC == d and c.passes == n: pass
                else: need = max(need, {4: 6, 8: 10}[n])
            if (d & c.wr) and not (d & c.srcC): need = max(need, {4: 6, 8: 10}[n])
        elif c.kind in ('valu', 'vmem', 'ds'):
            if d & (c.rd | c.wr): need = max(need, {4: 8, 8: 12}[n])
            if c.kind == 'valu' and (p.srcC & c.wr): need = max(need, {4: 3, 8: 7}[n])
    if p.kind == 'salu' and ('m', 0) in pw:
        if c.kind == 'vmem' and c.lds: need = max(need, 1)
    if p.kind == 'vmem' and p.storedata:
        if p.storedata & c.wr: need = max(need, 2 if c.kind == 'valu' else 1)
    return need

MAXD = 13

def fix_hazards(lines, verbose=False):
    ins = [Ins(l) for l in lines]
    total = 0
    def maps():
        labels = {}
        for i, x in enumerate(ins):
            if x.label: labels[x.label] = i
        srcs = {}
        for i, x in enumerate(ins):
            if x.target and x.target in labels:
                srcs.setdefault(labels[x.target], []).append(i)
        return srcs
    srcs = maps()
    def preds(i):
        r = []
        if i > 0:
            p = ins[i - 1]
            if not (p.op in ('s_branch', 's_endpgm')): r.append(i - 1)
        if ins[i].label: r += srcs.get(i, [])
        return r
    i = 0
    while i < len(ins):
        c = ins[i]
        if c.kind is None or c.op == 's_nop':
            i += 1; continue
        worst = 0
        stack = [(p, 0) for p in preds(i)]
        seen = {}
        while stack:
            j, dist = stack.pop()
            if dist >= MAXD: continue
            if j in seen and seen[j] <= dist: continue
            seen[j] = dist
            p = ins[j]
            if p.kind is not None:
                need = required(p, c)
                if need > dist: worst = max(worst, need - dist)
            nd = dist + p.states()
            for k in preds(j): stack.append((k, nd))
        if worst > 0:
            if verbose: print(f'hazard: +{worst} before: {c.text.strip()}')
            n = worst
            new = []
            while n > 0:
                k = min(n, 16)
                new.append(Ins(f'    s_nop {k-1}'))
                n -= k
            ins[i:i] = new
            total += worst
            i += len(new)
            srcs = maps()
        i += 1
    return [x.text for x in ins], total
```

```python
import sys, math
from asmgen import *
from hazard import fix_hazards

WS_Q = 0
WS_O = 4 << 20
CSC = (128 ** -0.5) * math.log2(math.e)
def f2u(x):
    import struct
    return struct.unpack('<I', struct.pack('<f', x))[0]

def vr(b, n): return f'v[{b}:{b+n-1}]'
def sr(b, n): return f's[{b}:{b+n-1}]'

def finish(a):
    lines, n = fix_hazards(a.lines)
    return '\n'.join(lines) + '\n'

def srd(a, d, plo, phi, size):
    if plo != d: a(f's_mov_b32 s{d}, s{plo}')
    a(f's_and_b32 s{d+1}, s{phi}, 0xffff')
    a(f's_mov_b32 s{d+2}, {size}')
    a(f's_mov_b32 s{d+3}, 0x20000')

def qproj_loads(a, sW, sX, sWQ, vL, R, X, vt, st):
    t0, t1, t2, t3 = vt, vt+1, vt+2, vt+3
    a(f'v_and_b32 v{t0}, 3, v{vL}')
    a(f'v_add_u32 v{t0}, s{sW}, v{t0}')
    a(f'v_and_b32 v{t0}, 3, v{t0}')
    a(f'v_and_b32 v{t1}, 12, v{vL}')
    a(f'v_or_b32 v{t0}, v{t0}, v{t1}')
    a(f'v_lshlrev_b32 v{t0}, 4, v{t0}')
    a(f'v_lshrrev_b32 v{t1}, 4, v{vL}')
    a(f'v_lshlrev_b32 v{t2}, 16, v{t1}')
    a(f'v_add_u32 v{t0}, v{t0}, v{t2}')
    a(f'v_and_b32 v{t2}, 15, v{vL}')
    a(f'v_lshlrev_b32 v{t2}, 10, v{t2}')
    a(f'v_lshlrev_b32 v{t1}, 4, v{t1}')
    a(f'v_add_u32 v{t2}, v{t2}, v{t1}')
    a(f'v_add_u32 v{t3}, 16384, v{t2}')
    a(f's_lshl_b32 s{st}, s{sW}, 8')
    for s in range(4):
        a(f'buffer_load_dwordx4 {vr(X + (s*2+0)*4, 4)}, v{t2}, {sr(sX,4)}, s{st} offen offset:{s*64}')
        a(f'buffer_load_dwordx4 {vr(X + (s*2+1)*4, 4)}, v{t3}, {sr(sX,4)}, s{st} offen offset:{s*64}')
    a(f's_lshl_b32 s{st+1}, s{sW}, 20')
    for s in range(4):
        for j in range(8):
            a(f's_add_u32 s{st+2}, s{st+1}, {(32*s + j) * 8192}')
            a(f'buffer_load_dwordx4 {vr(R + s*32 + j*4, 4)}, v{t0}, {sr(sWQ,4)}, s{st+2} offen')
    return 8 + 32

def qproj_compute(a, R, X, AT, ACC, st, later_vmem):
    a(f's_mov_b32 s{st}, 0x05040100')
    a(f's_mov_b32 s{st+1}, 0x07060302')
    for s in range(4):
        a(f's_waitcnt vmcnt({min(63, (3 - s) * 8 + later_vmem)})')
        for d in range(4):
            buf = AT + (d % 2) * 8
            for t in range(4):
                r0 = R + s*32 + (2*t)*4 + d
                r1 = R + s*32 + (2*t+1)*4 + d
                a(f'v_perm_b32 v{buf + t}, v{r1}, v{r0}, s{st}')
                a(f'v_perm_b32 v{buf + 4 + t}, v{r1}, v{r0}, s{st+1}')
            for eo in range(2):
                e = 2*d + eo
                for qt in range(2):
                    acc = ACC + (e*2 + qt) * 4
                    c = '0' if s == 0 else vr(acc, 4)
                    a(f'v_mfma_f32_16x16x32_bf16 {vr(acc,4)}, {vr(buf + 4*eo, 4)}, {vr(X + (s*2+qt)*4, 4)}, {c}')

def qproj_reduce(a, sW, vL, ACC, T, OUT, lds_base, vt, st):
    va = vt
    a(f's_mul_i32 s{st}, s{sW}, 12288')
    a(f's_add_u32 s{st}, s{st}, {lds_base}')
    a(f'v_lshlrev_b32 v{va}, 4, v{vL}')
    a(f'v_add_u32 v{va}, s{st}, v{va}')
    for k in range(1, 4):
        for qt in range(2):
            for e in range(8):
                a(f'v_mov_b32 v{T + qt*8 + e}, v{ACC + (e*2+qt)*4 + k}')
        for j in range(4):
            a(f'ds_write_b128 v{va}, {vr(T + 4*j, 4)} offset:{(k-1)*4096 + j*1024}')
    a('s_waitcnt lgkmcnt(0)')
    a('s_barrier')
    for k in range(1, 4):
        a(f's_sub_u32 s{st}, s{sW}, {k}')
        a(f's_and_b32 s{st}, s{st}, 3')
        a(f's_mul_i32 s{st}, s{st}, 12288')
        a(f's_add_u32 s{st}, s{st}, {lds_base + (k-1)*4096}')
        a(f'v_lshlrev_b32 v{va+k}, 4, v{vL}')
        a(f'v_add_u32 v{va+k}, s{st}, v{va+k}')
    for k in range(1, 4):
        for j in range(4):
            a(f'ds_read_b128 {vr(T + 4*j, 4)}, v{va+k} offset:{j*1024}')
        a('s_waitcnt lgkmcnt(0)')
        for qt in range(2):
            for e in range(8):
                r = ACC + (e*2+qt)*4
                a(f'v_add_f32 v{r}, v{r}, v{T + qt*8 + e}')
    for qt in range(2):
        for p in range(4):
            a(f'v_cvt_pk_bf16_f32 v{OUT + qt*4 + p}, v{ACC + ((2*p)*2+qt)*4}, v{ACC + ((2*p+1)*2+qt)*4}')

def gen_k1():
    a = Asm()
    a('s_cmp_ge_u32 s2, 512')
    a('s_cbranch_scc1 K1_end')
    a('s_load_dwordx2 s[4:5], s[0:1], 0')
    a('s_load_dwordx2 s[6:7], s[0:1], 24')
    a('s_load_dwordx2 s[8:9], s[0:1], 40')
    a('s_load_dwordx2 s[10:11], s[0:1], 64')
    a('s_load_dwordx2 s[12:13], s[0:1], 96')
    a('v_lshrrev_b32 v1, 6, v0')
    a('v_and_b32 v200, 63, v0')
    a('v_readfirstlane_b32 s14, v1')
    a('s_and_b32 s15, s2, 7')
    a('s_lshr_b32 s16, s2, 3')
    a('s_lshr_b32 s17, s16, 5')
    a('s_and_b32 s16, s16, 31')
    a('s_and_b32 s18, s16, 7')
    a('s_lshr_b32 s16, s16, 3')
    a('s_lshl_b32 s19, s15, 2')
    a('s_add_u32 s19, s19, s16')
    a('s_waitcnt lgkmcnt(0)')
    a('s_cmp_eq_u32 s17, 0')
    a('s_cselect_b32 s4, s4, s8')
    a('s_cselect_b32 s5, s5, s9')
    a('s_cselect_b32 s6, s6, s10')
    a('s_cselect_b32 s7, s7, s11')
    a('s_lshl_b32 s24, s18, 15')
    a('s_add_u32 s20, s4, s24')
    a('s_addc_u32 s21, s5, 0')
    srd(a, 20, 20, 21, 32768)
    a('s_lshl_b32 s28, s19, 8')
    a('s_add_u32 s24, s6, s28')
    a('s_addc_u32 s25, s7, 0')
    a('s_sub_u32 s29, 4194304, s28')
    srd(a, 24, 24, 25, 's29')
    R, X, AT, ACC = 0, 128, 160, 176
    a('v_mov_b32 v248, v200')
    vL = 248
    qproj_loads(a, 14, 20, 24, vL, R, X, 240, 30)
    qproj_compute(a, R, X, AT, ACC, 30, 0)
    qproj_reduce(a, 14, vL, ACC, 0, 16, 0, 240, 30)
    a('s_lshl_b32 s30, s17, 3')
    a('s_add_u32 s30, s30, s18')
    a('s_lshl_b32 s30, s30, 5')
    a('s_add_u32 s30, s30, s19')
    a('s_lshl_b32 s30, s30, 13')
    a(f's_add_u32 s30, s30, {WS_Q}')
    a('s_add_u32 s12, s12, s30')
    a('s_addc_u32 s13, s13, 0')
    a('s_lshr_b32 s31, s14, 1')
    a('s_lshl_b32 s31, s31, 10')
    a('s_and_b32 s32, s14, 1')
    a('s_lshl_b32 s32, s32, 9')
    a('s_add_u32 s31, s31, s32')
    a(f'v_lshrrev_b32 v30, 4, v{vL}')
    a('v_lshlrev_b32 v30, 11, v30')
    a(f'v_and_b32 v31, 15, v{vL}')
    a('v_lshlrev_b32 v31, 4, v31')
    a('v_add_u32 v30, v30, v31')
    a('v_add_u32 v30, s31, v30')
    a('global_store_dwordx4 v30, v[16:19], s[12:13]')
    a('global_store_dwordx4 v30, v[20:23], s[12:13] offset:256')
    a('s_waitcnt vmcnt(0)')
    a.label('K1_end')
    a('s_endpgm')
    return finish(a)

class AR:
    Q = 0; O = 32; K = 96; V = 128; S = 160; P = 176
    AK = 184; AV = 192; DK = 196; DV = 200
    M = 201; L = 202; T = 204
    LANE = 220
    NV = 224

def attn_setup_addr(a, sW, kslot_expr, vslot_expr, st, rotate_tiles=True):
    L = AR.LANE; t = AR.T
    a(f'v_lshrrev_b32 v{t}, 4, v{L}')
    a(f'v_and_b32 v{t+1}, 15, v{L}')
    for p in range(4):
        a(f'v_add_u32 v{t+2}, {4*p}, v{t}')
        a(f'v_xor_b32 v{t+2}, v{t+2}, v{t+1}')
        a(f'v_lshlrev_b32 v{t+2}, 4, v{t+2}')
        a(f'v_lshl_add_u32 v{AR.DK+p}, v{t}, 8, v{t+2}')
    a(f'v_lshlrev_b32 v{t+2}, 2, v{t}')
    a(f'v_xor_b32 v{t+2}, v{t+2}, v{t+1}')
    a(f'v_lshlrev_b32 v{t+2}, 4, v{t+2}')
    a(f'v_lshl_add_u32 v{AR.DV}, v{t}, 8, v{t+2}')
    a(f'v_and_b32 v{t}, 31, v{L}')
    a(f'v_lshrrev_b32 v{t+1}, 5, v{L}')
    a(f'v_and_b32 v{t+2}, 15, v{L}')
    a(f'v_xor_b32 v{t+2}, v{t+2}, v{t+1}')
    a(f'v_lshlrev_b32 v{t+2}, 4, v{t+2}')
    a(f'v_lshl_add_u32 v{t+2}, v{t}, 8, v{t+2}')
    for s in range(8):
        a(f'v_xor_b32 v{AR.AK+s}, {32*s}, v{t+2}')
        a(f'v_add_u32 v{AR.AK+s}, s{kslot_expr}, v{AR.AK+s}')
    a(f'v_and_b32 v{t}, 15, v{L}')
    a(f'v_lshrrev_b32 v{t+2}, 2, v{t}')
    a(f'v_and_b32 v{t+3}, 3, v{t}')
    a(f'v_lshl_add_u32 v{t+4}, v{t+1}, 2, v{t+2}')
    a(f'v_lshlrev_b32 v{t+4}, 8, v{t+4}')
    a(f'v_bfe_u32 v{t+5}, v{L}, 4, 1')
    a(f'v_lshlrev_b32 v{t+5}, 1, v{t+5}')
    a(f'v_lshrrev_b32 v{t+6}, 1, v{t+3}')
    a(f'v_add_u32 v{t+5}, v{t+5}, v{t+6}')
    a(f'v_lshlrev_b32 v{t+6}, 2, v{t+2}')
    a(f'v_xor_b32 v{t+5}, v{t+5}, v{t+6}')
    a(f'v_lshl_add_u32 v{t+4}, v{t+5}, 4, v{t+4}')
    a(f'v_and_b32 v{t+3}, 1, v{t+3}')
    a(f'v_lshl_add_u32 v{t+4}, v{t+3}, 3, v{t+4}')
    for tau in range(4):
        if rotate_tiles:
            a(f's_add_u32 s{st}, s{sW}, {tau}')
            a(f's_and_b32 s{st}, s{st}, 3')
            a(f's_lshl_b32 s{st}, s{st}, 6')
            a(f'v_xor_b32 v{AR.AV+tau}, s{st}, v{t+4}')
        else:
            a(f'v_xor_b32 v{AR.AV+tau}, {64*tau}, v{t+4}')
        a(f'v_add_u32 v{AR.AV+tau}, s{vslot_expr}, v{AR.AV+tau}')

def read_k(a, off=0):
    for s in range(8):
        a(f'ds_read_b128 {vr(AR.K + 4*s, 4)}, v{AR.AK+s} offset:{off}')

def read_v(a, off=0):
    for ks in range(2):
        for tau in range(4):
            for u in range(2):
                r = AR.V + (tau*2 + ks)*4 + u*2
                a(f'ds_read_b64_tr_b16 {vr(r, 2)}, v{AR.AV+tau} offset:{off + 4096*ks + 2048*u}')

def mfma_s(a):
    for s in range(8):
        c = '0' if s == 0 else vr(AR.S, 16)
        a(f'v_mfma_f32_32x32x16_bf16 {vr(AR.S,16)}, {vr(AR.K+4*s,4)}, {vr(AR.Q+4*s,4)}, {c}')

def softmax(a, sC, st):
    S = AR.S; t = AR.T; M = AR.M; Lr = AR.L
    a(f'v_max3_f32 v{t}, v{S}, v{S+1}, v{S+2}')
    a(f'v_max3_f32 v{t+1}, v{S+3}, v{S+4}, v{S+5}')
    a(f'v_max3_f32 v{t}, v{t}, v{S+6}, v{S+7}')
    a(f'v_max3_f32 v{t+1}, v{t+1}, v{S+8}, v{S+9}')
    a(f'v_max3_f32 v{t}, v{t}, v{S+10}, v{S+11}')
    a(f'v_max3_f32 v{t+1}, v{t+1}, v{S+12}, v{S+13}')
    a(f'v_max3_f32 v{t}, v{t}, v{S+14}, v{S+15}')
    a(f'v_max_f32 v{t}, v{t}, v{t+1}')
    a(f'v_mov_b32 v{t+1}, v{t}')
    a(f'v_permlane32_swap_b32 v{t}, v{t+1}')
    a(f'v_max3_f32 v{t}, v{t}, v{t+1}, v{M}')
    a(f'v_cmp_gt_f32 {sr(st,2)}, v{t}, v{M}')
    skip = a.newlabel('L_skip')
    a(f's_cmp_eq_u64 {sr(st,2)}, 0')
    a(f's_cbranch_scc1 {skip}')
    a(f'v_sub_f32 v{t+1}, v{M}, v{t}')
    a(f'v_mul_f32 v{t+1}, s{sC}, v{t+1}')
    a(f'v_exp_f32 v{t+1}, v{t+1}')
    a(f'v_mov_b32 v{M}, v{t}')
    a(f'v_mul_f32 v{Lr}, v{Lr}, v{t+1}')
    for i in range(64):
        a(f'v_mul_f32 v{AR.O+i}, v{AR.O+i}, v{t+1}')
    a.label(skip)
    a(f'v_mul_f32 v{t+1}, s{sC}, v{M}')
    for i in range(16):
        a(f'v_fma_f32 v{S+i}, v{S+i}, s{sC}, -v{t+1}')
    for i in range(16):
        a(f'v_exp_f32 v{S+i}, v{S+i}')
    for i in range(8):
        a(f'v_cvt_pk_bf16_f32 v{AR.P+i}, v{S+2*i}, v{S+2*i+1}')
    a(f'v_add_f32 v{t}, v{S}, v{S+1}')
    a(f'v_add_f32 v{t+1}, v{S+2}, v{S+3}')
    for i in range(2, 8):
        a(f'v_add_f32 v{t + (i&1)}, v{t + (i&1)}, v{S+2*i}')
        a(f'v_add_f32 v{t + (i&1)}, v{t + (i&1)}, v{S+2*i+1}')
    a(f'v_add_f32 v{t}, v{t}, v{t+1}')
    a(f'v_add_f32 v{Lr}, v{Lr}, v{t}')

def mfma_pv(a):
    for ks in range(2):
        for tau in range(4):
            o = vr(AR.O + 16*tau, 16)
            a(f'v_mfma_f32_32x32x16_bf16 {o}, {vr(AR.V + (tau*2+ks)*4, 4)}, {vr(AR.P + 4*ks, 4)}, {o}')

def dma_k(a, sK, s_soff, s_lds, st, pol):
    for half in range(2):
        if half == 0:
            a(f's_mov_b32 m0, s{s_lds}')
            so = s_soff
        else:
            a(f's_add_u32 m0, s{s_lds}, 4096')
            a(f's_add_u32 s{st}, s{s_soff}, 4096')
            so = st
        if half == 0: a('s_nop 0')
        for p in range(4):
            a(f'buffer_load_dwordx4 v{AR.DK+p}, {sr(sK,4)}, s{so} offen offset:{p*1024} {pol} lds')

def dma_v(a, sV, s_soff, s_lds, st, pol):
    for half in range(2):
        if half == 0:
            a(f's_mov_b32 m0, s{s_lds}')
            so = s_soff
        else:
            a(f's_add_u32 m0, s{s_lds}, 4096')
            a(f's_add_u32 s{st}, s{s_soff}, 4096')
            so = st
        if half == 0: a('s_nop 0')
        for p in range(4):
            a(f'buffer_load_dwordx4 v{AR.DV}, {sr(sV,4)}, s{so} offen offset:{p*1024} {pol} lds')

def gen_k2(nwg=512):
    a = Asm()
    a(f's_cmp_ge_u32 s2, {nwg}')
    a('s_cbranch_scc1 K2_end')
    a('s_load_dwordx2 s[4:5], s[0:1], 8')
    a('s_load_dwordx2 s[6:7], s[0:1], 16')
    a('s_load_dwordx2 s[8:9], s[0:1], 48')
    a('s_load_dwordx2 s[10:11], s[0:1], 56')
    a('s_load_dwordx2 s[12:13], s[0:1], 96')
    a('v_lshrrev_b32 v1, 6, v0')
    a(f'v_and_b32 v{AR.LANE}, 63, v0')
    a('v_readfirstlane_b32 s14, v1')
    a('s_and_b32 s15, s2, 7')
    a('s_lshr_b32 s16, s2, 3')
    a('s_lshr_b32 s17, s16, 5')
    a('s_xor_b32 s17, s17, 1')
    a('s_and_b32 s16, s16, 31')
    a('s_lshr_b32 s18, s16, 2')
    a('s_and_b32 s16, s16, 3')
    a('s_lshl_b32 s19, s15, 2')
    a('s_add_u32 s19, s19, s16')
    a('s_lshl_b32 s20, s18, 5')
    a('s_add_u32 s20, s20, s19')
    a('s_lshl_b32 s21, s18, 3')
    a('s_add_u32 s21, s21, s15')
    a('s_waitcnt lgkmcnt(0)')
    a('s_cmp_eq_u32 s17, 0')
    a('s_cselect_b32 s20, s21, s20')
    a('s_cselect_b32 s4, s4, s8')
    a('s_cselect_b32 s5, s5, s9')
    a('s_cselect_b32 s6, s6, s10')
    a('s_cselect_b32 s7, s7, s11')
    a('s_lshl_b32 s22, s20, 19')
    a('s_lshr_b32 s23, s20, 13')
    sK, sV = 24, 28
    a(f's_add_u32 s{sK}, s4, s22')
    a(f's_addc_u32 s{sK+1}, s5, s23')
    srd(a, sK, sK, sK+1, 524288)
    a(f's_add_u32 s{sV}, s6, s22')
    a(f's_addc_u32 s{sV+1}, s7, s23')
    srd(a, sV, sV, sV+1, 524288)
    a('s_lshl_b32 s32, s17, 3')
    a('s_add_u32 s32, s32, s18')
    a('s_lshl_b32 s32, s32, 5')
    a('s_add_u32 s32, s32, s19')
    a('s_lshl_b32 s33, s32, 13')
    a(f's_add_u32 s34, s12, s33')
    a(f's_addc_u32 s35, s13, 0')
    a(f's_add_u32 s36, s34, {WS_O}')
    a(f's_addc_u32 s37, s35, 0')
    sKl, sVl = 38, 39
    a(f's_lshl_b32 s{sKl}, s14, 13')
    a(f's_add_u32 s{sVl}, s{sKl}, 32768')
    a(f'v_lshlrev_b32 v{AR.T}, 4, v{AR.LANE}')
    for s in range(8):
        if s * 1024 < 4096:
            a(f'global_load_dwordx4 {vr(AR.Q+4*s,4)}, v{AR.T}, s[34:35] offset:{s*1024}')
    a(f'v_add_u32 v{AR.T+1}, 4096, v{AR.T}')
    for s in range(4, 8):
        a(f'global_load_dwordx4 {vr(AR.Q+4*s,4)}, v{AR.T+1}, s[34:35] offset:{(s-4)*1024}')
    attn_setup_addr(a, 14, sKl, sVl, 40)
    a('s_mul_i32 s41, s2, 5')
    a('s_mul_i32 s44, s14, 3')
    a('s_add_u32 s41, s41, s44')
    a('s_and_b32 s41, s41, 15')
    a('s_lshl_b32 s41, s41, 13')
    a('s_lshl_b32 s42, s14, 17')
    a('s_add_u32 s43, s42, s41')
    POL = 'nt'
    dma_k(a, sK, 43, sKl, 45, POL)
    dma_v(a, sV, 43, sVl, 45, POL)
    a(f's_mov_b32 s46, {f2u(CSC)}')
    for i in range(64):
        a(f'v_mov_b32 v{AR.O+i}, 0')
    a(f'v_mov_b32 v{AR.M}, 0xff800000')
    a(f'v_mov_b32 v{AR.L}, 0')
    a('s_mov_b32 s47, 0')

    def body(last):
        a('s_waitcnt vmcnt(8)')
        read_k(a)
        if not last:
            a('s_add_u32 s41, s41, 8192')
            a('s_and_b32 s41, s41, 0x1ffff')
            a('s_add_u32 s43, s42, s41')
        a('s_waitcnt lgkmcnt(0)')
        if not last:
            dma_k(a, sK, 43, sKl, 45, POL)
        mfma_s(a)
        a(f's_waitcnt vmcnt({0 if last else 8})')
        read_v(a)
        softmax(a, 46, 48)
        a('s_waitcnt lgkmcnt(0)')
        if not last:
            dma_v(a, sV, 43, sVl, 45, POL)
        mfma_pv(a)
    a.label('K2_loop')
    body(False)
    a('s_add_u32 s47, s47, 1')
    a('s_cmp_lt_u32 s47, 15')
    a('s_cbranch_scc1 K2_loop')
    body(True)
    merge4(a, 14, 46, 36, 50)
    a.label('K2_end')
    a('s_endpgm')
    return finish(a)

def merge4(a, sW, sC, sOut, st):
    t = AR.T; L = AR.LANE; M = AR.M; Lr = AR.L
    ML = 65536
    a(f'v_mov_b32 v{t}, v{Lr}')
    a(f'v_permlane32_swap_b32 v{Lr}, v{t}')
    a(f'v_add_f32 v{Lr}, v{Lr}, v{t}')
    a(f'v_cmp_lt_u32 vcc, 31, v{L}')
    a(f'v_cndmask_b32 v{t}, v{M}, v{Lr}, vcc')
    a(f's_lshl_b32 s{st}, s{sW}, 8')
    a(f's_add_u32 s{st}, s{st}, {ML}')
    a(f'v_lshlrev_b32 v{t+1}, 2, v{L}')
    a(f'v_add_u32 v{t+1}, s{st}, v{t+1}')
    a(f'ds_write_b32 v{t+1}, v{t}')
    a('s_waitcnt lgkmcnt(0)')
    a('s_barrier')
    a(f'v_and_b32 v{t+1}, 31, v{L}')
    a(f'v_lshlrev_b32 v{t+1}, 2, v{t+1}')
    a(f'v_add_u32 v{t+1}, {ML}, v{t+1}')
    for w in range(4):
        a(f'ds_read2_b32 {vr(t+2+2*w, 2)}, v{t+1} offset0:{64*w} offset1:{64*w+32}')
    a('s_waitcnt lgkmcnt(0)')
    m = [t+2+2*w for w in range(4)]
    l = [t+3+2*w for w in range(4)]
    a(f'v_max3_f32 v{t}, v{m[0]}, v{m[1]}, v{m[2]}')
    a(f'v_max_f32 v{t}, v{t}, v{m[3]}')
    for w in range(4):
        a(f'v_sub_f32 v{m[w]}, v{m[w]}, v{t}')
        a(f'v_mul_f32 v{m[w]}, s{sC}, v{m[w]}')
        a(f'v_exp_f32 v{m[w]}, v{m[w]}')
    a(f'v_mul_f32 v{t+1}, v{m[0]}, v{l[0]}')
    for w in range(1, 4):
        a(f'v_fma_f32 v{t+1}, v{m[w]}, v{l[w]}, v{t+1}')
    a(f'v_rcp_f32 v{t+1}, v{t+1}')
    a(f'v_sub_f32 v{t}, v{M}, v{t}')
    a(f'v_mul_f32 v{t}, s{sC}, v{t}')
    a(f'v_exp_f32 v{t}, v{t}')
    a(f'v_mul_f32 v{t}, v{t}, v{t+1}')
    for i in range(64):
        a(f'v_mul_f32 v{AR.O+i}, v{AR.O+i}, v{t}')
    offs = [0, 4096, 32768]
    a(f's_lshl_b32 s{st}, s{sW}, 13')
    a(f'v_lshlrev_b32 v{t+1}, 4, v{L}')
    a(f'v_add_u32 v{t+2}, s{st}, v{t+1}')
    for k in range(1, 4):
        for j in range(4):
            a(f'ds_write_b128 v{t+2}, {vr(AR.O + 16*k + 4*j, 4)} offset:{offs[k-1] + j*1024}')
    a('s_waitcnt lgkmcnt(0)')
    a('s_barrier')
    for k in range(1, 4):
        a(f's_sub_u32 s{st}, s{sW}, {k}')
        a(f's_and_b32 s{st}, s{st}, 3')
        a(f's_lshl_b32 s{st}, s{st}, 13')
        a(f'v_add_u32 v{t+2+k}, s{st}, v{t+1}')
        for j in range(4):
            a(f'ds_read_b128 {vr(AR.K + 16*(k-1) + 4*j, 4)}, v{t+2+k} offset:{offs[k-1] + j*1024}')
    a('s_waitcnt lgkmcnt(0)')
    for i in range(16):
        a(f'v_add_f32 v{AR.O+i}, v{AR.O+i}, v{AR.K+i}')
        a(f'v_add_f32 v{AR.K+16+i}, v{AR.K+16+i}, v{AR.K+32+i}')
    for i in range(16):
        a(f'v_add_f32 v{AR.O+i}, v{AR.O+i}, v{AR.K+16+i}')
    for i in range(8):
        a(f'v_cvt_pk_bf16_f32 v{AR.P+i}, v{AR.O+2*i}, v{AR.O+2*i+1}')
    a(f's_lshl_b32 s{st}, s{sW}, 11')
    a(f'v_add_u32 v{t+1}, s{st}, v{t+1}')
    a(f'global_store_dwordx4 v{t+1}, {vr(AR.P,4)}, {sr(sOut,2)}')
    a(f'global_store_dwordx4 v{t+1}, {vr(AR.P+4,4)}, {sr(sOut,2)} offset:1024')
    a('s_waitcnt vmcnt(0)')

def gen_k3():
    a = Asm()
    a('s_cmp_ge_u32 s2, 256')
    a('s_cbranch_scc1 K3_end')
    a('s_load_dwordx2 s[4:5], s[0:1], 32')
    a('s_load_dwordx2 s[6:7], s[0:1], 72')
    a('s_load_dwordx2 s[8:9], s[0:1], 80')
    a('s_load_dwordx2 s[12:13], s[0:1], 96')
    a('v_lshrrev_b32 v1, 6, v0')
    a('v_and_b32 v200, 63, v0')
    a('v_readfirstlane_b32 s14, v1')
    a('s_and_b32 s15, s2, 7')
    a('s_lshr_b32 s16, s2, 3')
    a('s_and_b32 s17, s16, 1')
    a('s_lshl_b32 s15, s15, 1')
    a('s_add_u32 s15, s15, s17')
    a('s_lshr_b32 s16, s16, 1')
    a('s_and_b32 s18, s16, 7')
    a('s_lshr_b32 s17, s16, 3')
    a('s_waitcnt lgkmcnt(0)')
    a('s_cmp_eq_u32 s17, 0')
    a('s_cselect_b32 s4, s4, s6')
    a('s_cselect_b32 s5, s5, s7')
    a('s_lshl_b32 s19, s15, 6')
    a('s_add_u32 s20, s4, s19')
    a('s_addc_u32 s21, s5, 0')
    a('s_sub_u32 s24, 4194304, s19')
    srd(a, 20, 20, 21, 's24')
    a('s_lshl_b32 s25, s17, 3')
    a('s_add_u32 s25, s25, s18')
    a('s_lshl_b32 s25, s25, 5')
    a('s_lshl_b32 s26, s14, 3')
    a('s_add_u32 s25, s25, s26')
    a('s_lshl_b32 s25, s25, 13')
    a(f's_add_u32 s25, s25, {WS_O}')
    a('s_add_u32 s28, s12, s25')
    a('s_addc_u32 s29, s13, 0')
    srd(a, 28, 28, 29, 65536)
    vL = 200
    a(f'v_lshrrev_b32 v201, 2, v{vL}')
    a('v_lshlrev_b32 v201, 10, v201')
    a(f'v_and_b32 v202, 3, v{vL}')
    a('v_lshl_add_u32 v201, v202, 4, v201')
    a(f'v_lshlrev_b32 v203, 4, v{vL}')
    NS = 3
    a(f's_mul_i32 s32, s14, {NS*8192}')
    a(f'v_lshrrev_b32 v204, 5, v{vL}')
    a(f'v_bfe_u32 v205, v{vL}, 2, 2')
    a('v_lshl_add_u32 v204, v204, 2, v205')
    a('v_lshlrev_b32 v204, 6, v204')
    a(f'v_bfe_u32 v205, v{vL}, 4, 1')
    a('v_lshl_add_u32 v204, v205, 5, v204')
    a(f'v_and_b32 v205, 3, v{vL}')
    a('v_lshl_add_u32 v204, v205, 3, v204')
    a('v_add_u32 v204, s32, v204')
    OF = 0
    WF = 128
    ACC = 160
    a('s_lshl_b32 s33, s14, 20')
    def issue(i):
        slot = i % NS
        for p in range(8):
            a(f's_add_u32 m0, s32, {slot*8192 + p*1024}')
            a(f's_add_u32 s34, s33, {(i*128 + p*16) * 1024}')
            a(f'buffer_load_dwordx4 v201, s[20:23], s34 offen lds')
        a(f's_mov_b32 s35, {i*8192}')
        for p in range(8):
            if p < 4:
                a(f'buffer_load_dwordx4 {vr(OF + slot*32 + p*4, 4)}, v203, s[28:31], s35 offen offset:{p*1024}')
            else:
                if p == 4: a(f's_mov_b32 s35, {i*8192 + 4096}')
                a(f'buffer_load_dwordx4 {vr(OF + slot*32 + p*4, 4)}, v203, s[28:31], s35 offen offset:{(p-4)*1024}')
    for i in range(NS): issue(i)
    for i in range(8):
        rem = min(NS - 1, 7 - i)
        a(f's_waitcnt vmcnt({rem*16})')
        slot = i % NS
        for T in range(4):
            for u in range(2):
                for v in range(2):
                    a(f'ds_read_b64_tr_b16 {vr(WF + (T*2+u)*4 + v*2, 2)}, v204 offset:{slot*8192 + 2048*T + 1024*u + 512*v}')
        a('s_waitcnt lgkmcnt(0)')
        for st_ in range(8):
            c = '0' if (i == 0 and st_ == 0) else vr(ACC, 16)
            a(f'v_mfma_f32_32x32x16_bf16 {vr(ACC,16)}, {vr(WF + st_*4, 4)}, {vr(OF + slot*32 + st_*4, 4)}, {c}')
        if i + NS < 8:
            a('s_nop 7')
            issue(i + NS)
    a('s_waitcnt vmcnt(0)')
    a('s_barrier')
    a('s_lshl_b32 s34, s14, 12')
    a('v_add_u32 v205, s34, v203')
    for i in range(4):
        a(f'ds_write_b128 v205, {vr(ACC + 4*i, 4)} offset:{i*1024}')
    a('s_waitcnt lgkmcnt(0)')
    a('s_barrier')
    a('s_lshl_b32 s34, s14, 10')
    a('v_add_u32 v205, s34, v203')
    for src in range(4):
        a(f'ds_read_b128 {vr(4*src, 4)}, v205 offset:{src*4096}')
    a('s_waitcnt lgkmcnt(0)')
    for t in range(4):
        a(f'v_add_f32 v{t}, v{t}, v{4+t}')
        a(f'v_add_f32 v{8+t}, v{8+t}, v{12+t}')
    for t in range(4):
        a(f'v_add_f32 v{t}, v{t}, v{8+t}')
    a('v_cvt_pk_bf16_f32 v16, v0, v1')
    a('v_cvt_pk_bf16_f32 v17, v2, v3')
    a(f'v_and_b32 v18, 31, v{vL}')
    a('v_lshlrev_b32 v18, 11, v18')
    a(f'v_lshrrev_b32 v19, 5, v{vL}')
    a('v_lshl_add_u32 v18, v19, 3, v18')
    a('s_lshl_b32 s34, s18, 16')
    a('s_lshl_b32 s35, s17, 10')
    a('s_add_u32 s34, s34, s35')
    a('s_lshl_b32 s35, s15, 6')
    a('s_add_u32 s34, s34, s35')
    a('s_lshl_b32 s35, s14, 4')
    a('s_add_u32 s34, s34, s35')
    a('v_add_u32 v18, s34, v18')
    a('global_store_dwordx2 v18, v[16:17], s[8:9]')
    a('s_waitcnt vmcnt(0)')
    a.label('K3_end')
    a('s_endpgm')
    return finish(a)

if __name__ == '__main__':
    out = sys.argv[1] if len(sys.argv) > 1 else 'v0.s'
    ks = [('qproj_kernel', gen_k1(), 256, 64, None),
          ('attn_kernel', gen_k2(), AR.NV, 64, None),
          ('oproj_kernel', gen_k3(), 208, 64, None)]
    t = file_text([('qproj_kernel', 512, 256, 49152), ('attn_kernel', 512, 256, 65536 + 1024), ("oproj_kernel", 256, 256, 98304)], ks)
    open(out, 'w').write(t)
```

```python
import re

REG_RE = re.compile(r'^(v|a|s)(\d+)$|^(v|a|s)\[(\d+):(\d+)\]$')
TRANS = ('v_exp_f32', 'v_log_f32', 'v_rcp_f32', 'v_rsq_f32', 'v_sqrt_f32', 'v_sin_f32', 'v_cos_f32', 'v_rcp_iflag_f32')

def regs_of(tok):
    tok = tok.strip()
    if tok.startswith('-'): tok = tok[1:]
    if tok.startswith('abs(') and tok.endswith(')'): tok = tok[4:-1]
    if tok.startswith('|') and tok.endswith('|'): tok = tok[1:-1]
    m = REG_RE.match(tok)
    if m:
        if m.group(1):
            return {(m.group(1), int(m.group(2)))}
        return {(m.group(3), i) for i in range(int(m.group(4)), int(m.group(5)) + 1)}
    if tok == 'vcc': return {('s', 106), ('s', 107)}
    if tok == 'vcc_lo': return {('s', 106)}
    if tok == 'vcc_hi': return {('s', 107)}
    if tok == 'exec': return {('x', 0), ('x', 1)}
    if tok == 'm0': return {('m', 0)}
    return set()

class Ins:
    __slots__ = ('text', 'op', 'ops', 'kind', 'wr', 'rd', 'srcA', 'srcB', 'srcC', 'passes', 'label', 'target', 'nop', 'mods', 'dpp', 'lds', 'storedata')
    def __init__(self, text):
        self.text = text
        self.label = None; self.op = None; self.kind = None
        self.wr = set(); self.rd = set(); self.srcA = set(); self.srcB = set(); self.srcC = set()
        self.passes = 0; self.target = None; self.nop = 0; self.dpp = False; self.lds = False; self.storedata = set()
        t = text.split(';')[0].strip()
        if not t: return
        if t.endswith(':'):
            self.label = t[:-1]; return
        if t.startswith('.'):
            return
        parts = t.split(None, 1)
        op = parts[0]; self.op = op
        rest = parts[1] if len(parts) > 1 else ''
        toks = [x.strip() for x in rest.split(',')] if rest else []
        ops = []
        mods = []
        for i, tk in enumerate(toks):
            sp = tk.split()
            if sp:
                ops.append(sp[0]); mods += sp[1:]
        self.ops = ops; self.mods = mods
        R = [regs_of(o) for o in ops]
        base = op
        for suf in ('_e32', '_e64', '_dpp', '_sdwa'):
            if base.endswith(suf): base = base[:-len(suf)]
        if op.endswith('_dpp') or any(m.startswith(('row_', 'quad_perm', 'wave_')) for m in mods): self.dpp = True
        if op.startswith('v_mfma'):
            self.kind = 'mfma'
            self.wr = R[0]; self.srcA = R[1]; self.srcB = R[2]; self.srcC = R[3] if len(R) > 3 else set()
            self.rd = self.srcA | self.srcB | self.srcC
            if '32x32x16' in op or '32x32x8' in op: self.passes = 8
            elif '16x16x32' in op or '16x16x16' in op: self.passes = 4
            else: raise Exception('unknown mfma ' + op)
        elif op.startswith('v_'):
            self.kind = 'valu'
            if base.startswith('v_cmp'):
                self.wr = R[0]; self.rd = set().union(*R[1:]) if len(R) > 1 else set()
                if base.startswith('v_cmpx'): self.wr |= {('x', 0), ('x', 1)}
            elif base.startswith('v_permlane') and 'swap' in base:
                self.wr = R[0] | R[1]; self.rd = R[0] | R[1]
            elif base in ('v_add_co_u32', 'v_sub_co_u32', 'v_subrev_co_u32'):
                self.wr = R[0] | R[1]; self.rd = set().union(*R[2:])
            elif base in ('v_addc_co_u32', 'v_subb_co_u32'):
                self.wr = R[0] | R[1]; self.rd = set().union(*R[2:])
            elif base in ('v_fmac_f32', 'v_pk_fmac_f16', 'v_writelane_b32'):
                self.wr = R[0]; self.rd = set().union(*R)
            elif base == 'v_cndmask_b32':
                self.wr = R[0]; self.rd = set().union(*R[1:])
                if len(R) == 3: self.rd |= regs_of('vcc')
            elif base == 'v_nop':
                pass
            else:
                self.wr = R[0]; self.rd = set().union(*R[1:]) if len(R) > 1 else set()
        elif op.startswith('ds_'):
            self.kind = 'ds'
            if op.startswith(('ds_read', 'ds_bpermute', 'ds_permute', 'ds_swizzle')) or '_rtn' in op:
                self.wr = R[0]; self.rd = set().union(*R[1:]) if len(R) > 1 else set()
            else:
                self.rd = set().union(*R)
        elif op.startswith(('buffer_', 'global_', 'flat_', 'scratch_')):
            self.kind = 'vmem'
            self.lds = ('lds' in mods) or ('_lds_' in op)
            if op.startswith(('buffer_wbl2', 'buffer_inv')):
                pass
            elif self.lds:
                self.rd = set().union(*R) | {('m', 0)}
            elif 'load' in op:
                self.wr = R[0]; self.rd = set().union(*R[1:])
            elif 'atomic' in op:
                if 'sc0' in mods and op.startswith('global_'):
                    self.wr = R[0]; self.rd = set().union(*R[1:])
                else:
                    self.rd = set().union(*R)
            else:
                self.rd = set().union(*R)
                if op.endswith(('x3', 'x4')):
                    self.storedata = R[0] if op.startswith('buffer_') else R[1]
        elif op.startswith('s_'):
            self.kind = 'salu'
            if op == 's_nop':
                self.nop = int(ops[0], 0) + 1
            elif op in ('s_branch',) or op.startswith('s_cbranch'):
                self.target = ops[0]
            elif op == 's_call_b64':
                self.target = ops[1]; self.wr = R[0]
            elif op == 's_setpc_b64':
                self.rd = R[0]
            elif op.startswith(('s_cmp', 's_waitcnt', 's_barrier', 's_endpgm', 's_setprio', 's_sleep', 's_bitcmp')):
                self.rd = set().union(*R) if R else set()
            elif op.startswith(('s_load', 's_buffer_load', 's_memtime', 's_memrealtime', 's_getreg')):
                self.kind = 'smem' if 'load' in op or 'mem' in op else 'salu'
                self.wr = R[0]; self.rd = set().union(*R[1:]) if len(R) > 1 else set()
            else:
                self.wr = R[0] if R else set(); self.rd = set().union(*R[1:]) if len(R) > 1 else set()
                if 'saveexec' in op: self.wr |= {('x', 0), ('x', 1)}
        else:
            raise Exception('unknown op: ' + text)
    def states(self):
        if self.op is None: return 0
        if self.op == 's_nop': return self.nop
        return 1

def vset(s): return {r for r in s if r[0] in 'va'}
def sset(s): return {r for r in s if r[0] == 's'}

def required(p, c):
    need = 0
    if p.kind is None or c.kind is None: return 0
    pw = p.wr
    if p.kind == 'valu':
        pv = vset(pw); ps = sset(pw)
        if c.kind == 'mfma' and pv & c.rd: need = max(need, 2)
        if c.kind == 'valu':
            if c.op.startswith('v_permlane') and pv & c.rd: need = max(need, 2)
            if c.dpp and pv & c.rd: need = max(need, 2)
            if c.op.startswith(('v_readlane', 'v_readfirstlane')) and pv & c.rd: need = max(need, 1)
            if p.op.split('_e')[0] in TRANS or p.op in TRANS:
                if (pv & c.rd) and not (c.op in TRANS): need = max(need, 1)
            if ps & c.rd: need = max(need, 2)
            if c.op.startswith(('v_readlane', 'v_writelane')) and ps & c.rd: need = max(need, 4)
            if ('x', 0) in pw:
                need = max(need, 5 if c.dpp else 4)
        if c.kind == 'vmem' and ps & c.rd: need = max(need, 5)
        if c.kind == 'mfma' and ('x', 0) in pw: need = max(need, 4)
    if p.kind == 'mfma':
        n = p.passes
        d = p.wr
        if c.kind == 'mfma':
            if d & (c.srcA | c.srcB): need = max(need, {4: 8, 8: 12}[n])
            if d & c.srcC:
                if c.srcC == d and c.passes == n: pass
                else: need = max(need, {4: 6, 8: 10}[n])
            if (d & c.wr) and not (d & c.srcC): need = max(need, {4: 6, 8: 10}[n])
        elif c.kind in ('valu', 'vmem', 'ds'):
            if d & (c.rd | c.wr): need = max(need, {4: 8, 8: 12}[n])
            if c.kind == 'valu' and (p.srcC & c.wr): need = max(need, {4: 3, 8: 7}[n])
    if p.kind == 'salu' and ('m', 0) in pw:
        if c.kind == 'vmem' and c.lds: need = max(need, 1)
    if p.kind == 'vmem' and p.storedata:
        if p.storedata & c.wr: need = max(need, 2 if c.kind == 'valu' else 1)
    return need

MAXD = 13

def fix_hazards(lines, verbose=False):
    ins = [Ins(l) for l in lines]
    total = 0
    def maps():
        labels = {}
        for i, x in enumerate(ins):
            if x.label: labels[x.label] = i
        srcs = {}
        for i, x in enumerate(ins):
            if x.target and x.target in labels:
                srcs.setdefault(labels[x.target], []).append(i)
        return srcs
    srcs = maps()
    def preds(i):
        r = []
        if i > 0:
            p = ins[i - 1]
            if p.op == 's_call_b64':
                for j, x in enumerate(ins):
                    if x.op == 's_setpc_b64' and x.ops[0] == p.ops[0]: r.append(j)
            elif not (p.op in ('s_branch', 's_endpgm', 's_setpc_b64')): r.append(i - 1)
        if ins[i].label: r += srcs.get(i, [])
        return r
    i = 0
    while i < len(ins):
        c = ins[i]
        if c.kind is None or c.op == 's_nop':
            i += 1; continue
        worst = 0
        stack = [(p, 0) for p in preds(i)]
        seen = {}
        while stack:
            j, dist = stack.pop()
            if dist >= MAXD: continue
            if j in seen and seen[j] <= dist: continue
            seen[j] = dist
            p = ins[j]
            if p.kind is not None:
                need = required(p, c)
                if need > dist: worst = max(worst, need - dist)
            nd = dist + p.states()
            for k in preds(j): stack.append((k, nd))
        if worst > 0:
            if verbose: print(f'hazard: +{worst} before: {c.text.strip()}')
            n = worst
            new = []
            while n > 0:
                k = min(n, 16)
                new.append(Ins(f'    s_nop {k-1}'))
                n -= k
            ins[i:i] = new
            total += worst
            i += len(new)
            srcs = maps()
        i += 1
    return [x.text for x in ins], total
```

```python
import sys, math, struct
from asmgen import *
from hazard import fix_hazards

CSC = (128 ** -0.5) * math.log2(math.e)
def f2u(x): return struct.unpack('<I', struct.pack('<f', x))[0]
def vr(b, n): return f'v[{b}:{b+n-1}]'
def sr(b, n): return f's[{b}:{b+n-1}]'

FL_O = 0
FL_P = 8192
FL_Q = 12288
FL_Y = 16384
WS_Q = 1 << 20
WS_O = 4 << 20
WS_X = 8 << 20
WS_Y = 24 << 20
WS_TS = 32 << 20

S_W = 3; S_X = 4; S_R = 5; S_B = 6; S_H = 7
S_T = 8
P_AX, P_AK, P_AV, P_AWQ, P_AWO, P_BX, P_BK, P_BV = 16, 18, 20, 22, 24, 26, 28, 30
P_BWQ, P_BWO, P_OUT, P_DBG = 32, 34, 36, 38
P_WS = 40
S_WKL = 42; S_WKB = 43
SRD_X = 44; SRD_WQ = 48; SRD_K = 52; SRD_V = 56
S_C = 60; S_CNT = 61; S_KL = 62; S_VL = 63
S_ROT = 64; S_WB = 65; S_SO = 66; S_STEP = 67
S_P = 68
S_A = 70
S_U = 78
S_TB = 84; S_TN = 85
S_G = 86
S_JQ = 87
S_SPIN = 90; S_INIT = 91; S_PROB = 93
LK1 = 96
OOB = 0x7f000000

class AR:
    Q = 0; O = 32; K = 96; V = 96; WO = 128; S = 192; P = 208
    T = 216
    M = 232; L = 233
    AK = 234; AV = 242
    WD = 246; WR0 = 247; WR1 = 248
    DK = 250; DV = 254
    LANE = 255
S_WO = 88
S_WL = 89
STG = 65536
QR, QX, QAT, QACC, QT = 0, 128, 160, 176, 240
WF = 0; OF = 128; ACC = 224; WT = 232

SPIN_LIMIT = 400000
TS_ON = False
NOINIT = False
SLEEP0 = 1

def finish(a):
    lines, n = fix_hazards(a.lines)
    return '\n'.join(lines) + '\n'
def srd(a, d, size):
    a(f's_and_b32 s{d+1}, s{d+1}, 0xffff')
    a(f's_mov_b32 s{d+2}, {size}')
    a(f's_mov_b32 s{d+3}, 0x20000')
def poll(a, vaddr, sbase, vtmp, sleep=None):
    if sleep is None: sleep = SLEEP0
    L = a.newlabel('L_poll'); D = a.newlabel('L_polld')
    a(f's_mov_b32 s{S_SPIN}, {SPIN_LIMIT}')
    a.label(L)
    a(f'global_load_dword v{vtmp}, v{vaddr}, {sr(sbase,2)} sc1')
    a('s_waitcnt vmcnt(0)')
    a(f'v_cmp_eq_u32 vcc, 1, v{vtmp}')
    a('s_cmp_eq_u64 vcc, -1')
    a(f's_cbranch_scc1 {D}')
    if sleep: a(f's_sleep {sleep}')
    a(f's_sub_u32 s{S_SPIN}, s{S_SPIN}, 1')
    a(f's_cmp_lg_u32 s{S_SPIN}, 0')
    a(f's_cbranch_scc1 {L}')
    a.label(D)
def store_flag(a, sbase, vz, vone, n=1):
    a('s_mov_b64 exec, 1')
    op = {1: 'dword', 2: 'dwordx2', 4: 'dwordx4'}[n]
    src = f'v{vone}' if n == 1 else vr(vone, n)
    a(f'global_store_{op} v{vz}, {src}, {sr(sbase,2)} sc1')
    a('s_mov_b64 exec, -1')
def call(a, name, lk=LK1): a(f's_call_b64 {sr(lk,2)}, {name}')
def ret(a, lk=LK1): a(f's_setpc_b64 {sr(lk,2)}')
def ts(a, slot, sreg=None):
    if not TS_ON: return
    a('s_memrealtime s[94:95]')
    a('s_waitcnt lgkmcnt(0)')
    if sreg is None:
        a(f'v_writelane_b32 v249, s94, {slot}')
    else:
        a(f's_add_u32 m0, s{sreg}, {slot}')
        a('s_nop 4')
        a(f'v_writelane_b32 v249, s94, m0')
def ts_it(a, slot, it):
    if not TS_ON: return
    a('s_memrealtime s[94:95]')
    a(f's_cmp_eq_u32 s{S_CNT}, {it}')
    a(f's_cselect_b32 m0, {slot}, 63')
    a('s_waitcnt lgkmcnt(0)')
    a('s_nop 4')
    a(f'v_writelane_b32 v249, s94, m0')
def wait_init(a, vz, vt):
    a(f'v_mov_b32 v{vz}, 0')
    poll(a, vz, P_DBG, vt)

def qb_loads(a, P, pos, mid=None):
    pol = P['polw']
    vL = AR.LANE; X = QX; R = QR; vt = QT; st = S_T; sW = S_W
    t0, t1, t2, t3 = vt, vt+1, vt+2, vt+3
    a(f'v_and_b32 v{t0}, 3, v{vL}')
    a(f'v_add_u32 v{t0}, s{sW}, v{t0}')
    a(f'v_and_b32 v{t0}, 3, v{t0}')
    a(f'v_and_b32 v{t1}, 12, v{vL}')
    a(f'v_or_b32 v{t0}, v{t0}, v{t1}')
    a(f'v_lshlrev_b32 v{t0}, 4, v{t0}')
    a(f'v_lshrrev_b32 v{t1}, 4, v{vL}')
    a(f'v_lshlrev_b32 v{t2}, 16, v{t1}')
    a(f'v_add_u32 v{t0}, v{t0}, v{t2}')
    a(f'v_and_b32 v{t2}, 15, v{vL}')
    a(f'v_lshlrev_b32 v{t2}, 10, v{t2}')
    a(f'v_lshlrev_b32 v{t1}, 4, v{t1}')
    a(f'v_add_u32 v{t2}, v{t2}, v{t1}')
    a(f'v_add_u32 v{t3}, 16384, v{t2}')
    xfirst = P.get('xfirst', 1)
    if xfirst:
        for s in range(4):
            a(f's_add_u32 s{st}, s{S_STEP}, {s}')
            a(f's_and_b32 s{st}, s{st}, 3')
            a(f's_lshl_b32 s{st+1}, s{sW}, 2')
            a(f's_add_u32 s{st}, s{st}, s{st+1}')
            a(f's_lshl_b32 s{st}, s{st}, 6')
            a(f'buffer_load_dwordx4 {vr(X + (s*2+0)*4, 4)}, v{t2}, {sr(SRD_X,4)}, s{st} offen {P["polx"]}')
            a(f'buffer_load_dwordx4 {vr(X + (s*2+1)*4, 4)}, v{t3}, {sr(SRD_X,4)}, s{st} offen {P["polx"]}')
    for s in range(4):
        a(f's_add_u32 s{st}, s{S_STEP}, {s}')
        a(f's_and_b32 s{st}, s{st}, 3')
        a(f's_lshl_b32 s{st+1}, s{sW}, 2')
        a(f's_add_u32 s{st}, s{st}, s{st+1}')
        a(f's_lshl_b32 s{st+1}, s{st}, 18')
        a(f's_lshl_b32 s{st}, s{st}, 6')
        for j in range(8):
            if j == 0: so = st + 1
            else:
                so = st + 2 + (j & 1)
                a(f's_add_u32 s{so}, s{st+1}, {j * 8192}')
            a(f'buffer_load_dwordx4 {vr(R + s*32 + j*4, 4)}, v{t0}, {sr(SRD_WQ,4)}, s{so} offen {pol}')
        if not xfirst:
            a(f'buffer_load_dwordx4 {vr(X + (s*2+0)*4, 4)}, v{t2}, {sr(SRD_X,4)}, s{st} offen {P["polx"]}')
            a(f'buffer_load_dwordx4 {vr(X + (s*2+1)*4, 4)}, v{t3}, {sr(SRD_X,4)}, s{st} offen {P["polx"]}')
        if mid and s == pos: mid()

def qp_step(a, s, first):
    R, X, AT, A_ = QR, QX, QAT, QACC
    st = S_U
    for d in range(4):
        buf = AT + (d % 2) * 8
        for t in range(4):
            r0 = R + s*32 + (2*t)*4 + d
            r1 = R + s*32 + (2*t+1)*4 + d
            a(f'v_perm_b32 v{buf + t}, v{r1}, v{r0}, s{st}')
            a(f'v_perm_b32 v{buf + 4 + t}, v{r1}, v{r0}, s{st+1}')
        for eo in range(2):
            e = 2*d + eo
            for qt in range(2):
                acc = A_ + (e*2 + qt) * 4
                c = '0' if first else vr(acc, 4)
                a(f'v_mfma_f32_16x16x32_bf16 {vr(acc,4)}, {vr(buf + 4*eo, 4)}, {vr(X + (s*2+qt)*4, 4)}, {c}')

def qb_compute(a, P, pos, kl):
    a(f's_mov_b32 s{S_U}, 0x05040100')
    a(f's_mov_b32 s{S_U+1}, 0x07060302')
    for s in range(4):
        later = (3 - s) * (8 if P.get('xfirst', 1) else 10) + (kl if s <= pos else 0)
        a(f's_waitcnt vmcnt({later})')
        if s == 0: ts(a, 19)
        qp_step(a, s, s == 0)
    ts(a, 20)
    inbox_base = 32768
    sW = S_W; vL = AR.LANE; va = QT + 4; st = S_T + 4; A_ = QACC
    for k in range(1, 4):
        a(f's_add_u32 s{st}, s{sW}, {k}')
        a(f's_and_b32 s{st}, s{st}, 3')
        a(f's_mul_i32 s{st}, s{st}, 12288')
        a(f's_add_u32 s{st}, s{st}, {inbox_base + (k-1)*4096}')
        a(f'v_lshlrev_b32 v{va}, 4, v{vL}')
        a(f'v_add_u32 v{va}, s{st}, v{va}')
        TT = 16 * (k - 1)
        for qt in range(2):
            for e in range(8):
                a(f'v_mov_b32 v{TT + qt*8 + e}, v{A_ + (e*2+qt)*4 + k}')
        for j in range(4):
            a(f'ds_write_b128 v{va}, {vr(TT + 4*j, 4)} offset:{j*1024}')
    a('s_waitcnt lgkmcnt(0)')
    a('s_barrier')
    T = 48
    a(f's_mul_i32 s{st}, s{sW}, 12288')
    a(f's_add_u32 s{st}, s{st}, {inbox_base}')
    a(f'v_lshlrev_b32 v{va}, 4, v{vL}')
    a(f'v_add_u32 v{va}, s{st}, v{va}')
    for k in range(3):
        for j in range(4):
            a(f'ds_read_b128 {vr(T + 16*k + 4*j, 4)}, v{va} offset:{k*4096 + j*1024}')
    for k in range(3):
        a(f's_waitcnt lgkmcnt({8 - 4*k})')
        for qt in range(2):
            for e in range(8):
                r = A_ + (e*2+qt)*4
                a(f'v_add_f32 v{r}, v{r}, v{T + 16*k + qt*8 + e}')
    OUT = 16
    for qt in range(2):
        for p in range(4):
            a(f'v_cvt_pk_bf16_f32 v{OUT + qt*4 + p}, v{A_ + ((2*p)*2+qt)*4}, v{A_ + ((2*p+1)*2+qt)*4}')

def setup_dma_B(a):
    L = AR.LANE; t = QT + 4
    a(f'v_lshrrev_b32 v{t}, 4, v{L}')
    a(f'v_and_b32 v{t+1}, 15, v{L}')
    for p in range(4):
        a(f'v_add_u32 v{t+2}, {4*p}, v{t}')
        a(f'v_xor_b32 v{t+2}, v{t+2}, v{t+1}')
        a(f'v_lshlrev_b32 v{t+2}, 4, v{t+2}')
        a(f'v_lshl_add_u32 v{AR.DK+p}, v{t}, 8, v{t+2}')
    a(f'v_lshlrev_b32 v{t+2}, 2, v{t}')
    a(f'v_xor_b32 v{t+2}, v{t+2}, v{t+1}')
    a(f'v_lshlrev_b32 v{t+2}, 4, v{t+2}')
    a(f'v_lshl_add_u32 v{AR.DV}, v{t}, 8, v{t+2}')

def setup_dma_A(a):
    L = AR.LANE; t = QT + 4; st = S_T
    a(f'v_lshrrev_b32 v{t}, 4, v{L}')
    a(f'v_and_b32 v{t+1}, 15, v{L}')
    a(f's_lshl_b32 s{st}, s{S_W}, 3')
    for p in range(2):
        a(f's_add_u32 s{st+1}, s{st}, {4*p}')
        a(f's_and_b32 s{st+1}, s{st+1}, 15')
        a(f'v_add_u32 v{t+2}, s{st+1}, v{t}')
        a(f'v_xor_b32 v{t+2}, v{t+2}, v{t+1}')
        a(f'v_lshlrev_b32 v{t+2}, 4, v{t+2}')
        a(f'v_lshl_add_u32 v{AR.DK+p}, v{t}, 8, v{t+2}')
    a(f'v_lshlrev_b32 v{t+2}, 2, v{t}')
    a(f'v_xor_b32 v{t+2}, v{t+2}, v{t+1}')
    a(f'v_lshlrev_b32 v{t+2}, 4, v{t+2}')
    a(f'v_lshl_add_u32 v{AR.DV}, v{t}, 8, v{t+2}')

def sub_reads(a):
    s_kslot, s_vslot, s_rot = S_U+1, S_U+2, S_U+3
    L = AR.LANE; t = AR.T; st = S_T
    a.label('SUB_READS')
    a(f'v_and_b32 v{t}, 31, v{L}')
    a(f'v_lshrrev_b32 v{t+1}, 5, v{L}')
    a(f'v_and_b32 v{t+2}, 15, v{L}')
    a(f'v_lshlrev_b32 v{t+3}, 3, v{t+1}')
    a(f'v_xor_b32 v{t+2}, v{t+2}, v{t+3}')
    a(f'v_lshlrev_b32 v{t+2}, 4, v{t+2}')
    a(f'v_lshl_add_u32 v{t+2}, v{t}, 8, v{t+2}')
    for s in range(8):
        a(f'v_xor_b32 v{AR.AK+s}, {16*s}, v{t+2}')
        a(f'v_add_u32 v{AR.AK+s}, s{s_kslot}, v{AR.AK+s}')
    a(f'v_and_b32 v{t}, 15, v{L}')
    a(f'v_lshrrev_b32 v{t+2}, 2, v{t}')
    a(f'v_and_b32 v{t+3}, 3, v{t}')
    a(f'v_lshl_add_u32 v{t+4}, v{t+1}, 2, v{t+2}')
    a(f'v_lshlrev_b32 v{t+4}, 8, v{t+4}')
    a(f'v_bfe_u32 v{t+5}, v{L}, 4, 1')
    a(f'v_lshlrev_b32 v{t+5}, 1, v{t+5}')
    a(f'v_lshrrev_b32 v{t+6}, 1, v{t+3}')
    a(f'v_add_u32 v{t+5}, v{t+5}, v{t+6}')
    a(f'v_lshlrev_b32 v{t+6}, 2, v{t+2}')
    a(f'v_xor_b32 v{t+5}, v{t+5}, v{t+6}')
    a(f'v_lshl_add_u32 v{t+4}, v{t+5}, 4, v{t+4}')
    a(f'v_and_b32 v{t+3}, 1, v{t+3}')
    a(f'v_lshl_add_u32 v{t+4}, v{t+3}, 3, v{t+4}')
    for tau in range(4):
        a(f's_add_u32 s{st}, s{s_rot}, {tau}')
        a(f's_and_b32 s{st}, s{st}, 3')
        a(f's_lshl_b32 s{st}, s{st}, 6')
        a(f'v_xor_b32 v{AR.AV+tau}, s{st}, v{t+4}')
        a(f'v_add_u32 v{AR.AV+tau}, s{s_vslot}, v{AR.AV+tau}')
    for i in range(64):
        a(f'v_mov_b32 v{AR.O+i}, 0')
    a(f'v_mov_b32 v{AR.M}, 0xff800000')
    a(f'v_mov_b32 v{AR.L}, 0')
    a(f's_mov_b32 s{S_C}, {f2u(CSC)}')
    ret(a)

def read_k(a):
    for s in range(8):
        a(f'ds_read_b128 {vr(AR.K + 4*s, 4)}, v{AR.AK+s}')
def read_v(a):
    for ks in range(2):
        for tau in range(4):
            for u in range(2):
                r = AR.V + (tau*2 + ks)*4 + u*2
                a(f'ds_read_b64_tr_b16 {vr(r, 2)}, v{AR.AV+tau} offset:{4096*ks + 2048*u}')
def mfma_s(a):
    for s in range(8):
        c = '0' if s == 0 else vr(AR.S, 16)
        a(f'v_mfma_f32_32x32x16_bf16 {vr(AR.S,16)}, {vr(AR.K+4*s,4)}, {vr(AR.Q+4*s,4)}, {c}')
def softmax(a):
    sC = S_C; st = S_P
    S = AR.S; t = AR.T; M = AR.M; Lr = AR.L
    a(f'v_max3_f32 v{t}, v{S}, v{S+1}, v{S+2}')
    a(f'v_max3_f32 v{t+1}, v{S+3}, v{S+4}, v{S+5}')
    a(f'v_max3_f32 v{t}, v{t}, v{S+6}, v{S+7}')
    a(f'v_max3_f32 v{t+1}, v{t+1}, v{S+8}, v{S+9}')
    a(f'v_max3_f32 v{t}, v{t}, v{S+10}, v{S+11}')
    a(f'v_max3_f32 v{t+1}, v{t+1}, v{S+12}, v{S+13}')
    a(f'v_max3_f32 v{t}, v{t}, v{S+14}, v{S+15}')
    a(f'v_max_f32 v{t}, v{t}, v{t+1}')
    a(f'v_mov_b32 v{t+1}, v{t}')
    a(f'v_permlane32_swap_b32 v{t}, v{t+1}')
    a(f'v_max3_f32 v{t}, v{t}, v{t+1}, v{M}')
    a(f'v_cmp_gt_f32 {sr(st,2)}, v{t}, v{M}')
    skip = a.newlabel('L_skip')
    a(f's_cmp_eq_u64 {sr(st,2)}, 0')
    a(f's_cbranch_scc1 {skip}')
    a(f'v_sub_f32 v{t+1}, v{M}, v{t}')
    a(f'v_mul_f32 v{t+1}, s{sC}, v{t+1}')
    a(f'v_exp_f32 v{t+1}, v{t+1}')
    a(f'v_mov_b32 v{M}, v{t}')
    a(f'v_mul_f32 v{Lr}, v{Lr}, v{t+1}')
    for i in range(64):
        a(f'v_mul_f32 v{AR.O+i}, v{AR.O+i}, v{t+1}')
    a.label(skip)
    a(f'v_mul_f32 v{t+1}, s{sC}, v{M}')
    for i in range(16):
        a(f'v_fma_f32 v{S+i}, v{S+i}, s{sC}, -v{t+1}')
    for i in range(16):
        a(f'v_exp_f32 v{S+i}, v{S+i}')
    for i in range(8):
        a(f'v_cvt_pk_bf16_f32 v{AR.P+i}, v{S+2*i}, v{S+2*i+1}')
    a(f'v_add_f32 v{t}, v{S}, v{S+1}')
    a(f'v_add_f32 v{t+1}, v{S+2}, v{S+3}')
    for i in range(2, 8):
        a(f'v_add_f32 v{t + (i&1)}, v{t + (i&1)}, v{S+2*i}')
        a(f'v_add_f32 v{t + (i&1)}, v{t + (i&1)}, v{S+2*i+1}')
    a(f'v_add_f32 v{t}, v{t}, v{t+1}')
    a(f'v_add_f32 v{Lr}, v{Lr}, v{t}')
def sub_soft(a):
    a.label('SUB_SOFT')
    read_v(a)
    softmax(a)
    a('s_waitcnt lgkmcnt(0)')
    ret(a)
def sub_soft2(a):
    a.label('SUB_SOFT2')
    softmax(a)
    ret(a)
def mfma_pv(a):
    for ks in range(2):
        for tau in range(4):
            o = vr(AR.O + 16*tau, 16)
            a(f'v_mfma_f32_32x32x16_bf16 {o}, {vr(AR.V + (tau*2+ks)*4, 4)}, {vr(AR.P + 4*ks, 4)}, {o}')
def dma_tile8k(a, srdn, s_soff, s_lds, st, pol, vpat):
    for half in range(2):
        if half == 0:
            a(f's_mov_b32 m0, s{s_lds}')
            so = s_soff
        else:
            a(f's_add_u32 m0, s{s_lds}, 4096')
            a(f's_add_u32 s{st}, s{s_soff}, 4096')
            so = st
        for p in range(4):
            a(f'buffer_load_dwordx4 v{vpat(p)}, {sr(srdn,4)}, s{so} offen offset:{p*1024} {pol} lds')

def wo_dma(a, P, part):
    for i in range(8):
        a(f's_add_u32 m0, s{S_WL}, {part*32768 + i*1024}')
        a(f's_add_u32 s{S_U + (i&1)}, s{S_WO}, {(part*64 + i*8) * 1024}')
        a(f'buffer_load_dwordx4 v{AR.WD}, {sr(SRD_WQ,4)}, s{S_U + (i&1)} offen {P["polwo"]} lds')

def epi_b(a, role, P):
    sOut = S_A
    sW = S_W; sC = S_C; st = S_T
    t = AR.T; L = AR.LANE; M = AR.M; Lr = AR.L
    ML = STG
    MB = [0, 16, 96]
    vz, vi = AR.AK, AR.AK + 1
    a(f'v_mov_b32 v{vz}, 0')
    a(f'global_load_dword v{vi}, v{vz}, {sr(P_DBG,2)} sc1')
    a(f'v_mov_b32 v{t}, v{Lr}')
    a(f'v_permlane32_swap_b32 v{Lr}, v{t}')
    a(f'v_add_f32 v{Lr}, v{Lr}, v{t}')
    a(f'v_cmp_lt_u32 vcc, 31, v{L}')
    a(f'v_cndmask_b32 v{t}, v{M}, v{Lr}, vcc')
    a(f's_lshl_b32 s{st}, s{sW}, 12')
    a(f's_add_u32 s{st}, s{st}, {ML}')
    a(f'v_lshlrev_b32 v{t+1}, 2, v{L}')
    a(f'v_add_u32 v{t+1}, s{st}, v{t+1}')
    a(f'ds_write_b32 v{t+1}, v{t}')
    a('s_waitcnt lgkmcnt(0)')
    a('s_barrier')
    a(f'v_and_b32 v{t+1}, 31, v{L}')
    a(f'v_lshlrev_b32 v{t+1}, 2, v{t+1}')
    a(f'v_add_u32 v{t+1}, {ML}, v{t+1}')
    for w in range(4):
        a(f'v_add_u32 v{t+10+w}, {4096*w}, v{t+1}')
    for w in range(4):
        a(f'ds_read2_b32 {vr(t+2+2*w, 2)}, v{t+10+w} offset0:0 offset1:32')
    a('s_waitcnt lgkmcnt(0)')
    a('s_barrier')
    m = [t+2+2*w for w in range(4)]
    l = [t+3+2*w for w in range(4)]
    a(f'v_max3_f32 v{t}, v{m[0]}, v{m[1]}, v{m[2]}')
    a(f'v_max_f32 v{t}, v{t}, v{m[3]}')
    for w in range(4):
        a(f'v_sub_f32 v{m[w]}, v{m[w]}, v{t}')
        a(f'v_mul_f32 v{m[w]}, s{sC}, v{m[w]}')
        a(f'v_exp_f32 v{m[w]}, v{m[w]}')
    a(f'v_mul_f32 v{t+1}, v{m[0]}, v{l[0]}')
    for w in range(1, 4):
        a(f'v_fma_f32 v{t+1}, v{m[w]}, v{l[w]}, v{t+1}')
    a(f'v_rcp_f32 v{t+1}, v{t+1}')
    a(f'v_sub_f32 v{t}, v{M}, v{t}')
    a(f'v_mul_f32 v{t}, s{sC}, v{t}')
    a(f'v_exp_f32 v{t}, v{t}')
    a(f'v_mul_f32 v{t}, v{t}, v{t+1}')
    for i in range(64):
        a(f'v_mul_f32 v{AR.O+i}, v{AR.O+i}, v{t}')
    a(f's_lshl_b32 s{st}, s{sW}, 13')
    a(f's_add_u32 s{st}, s{st}, 32768')
    a(f's_lshl_b32 s{st+1}, s{sW}, 12')
    a(f's_add_u32 s{st+1}, s{st+1}, {STG}')
    a(f'v_lshlrev_b32 v{t+1}, 4, v{L}')
    a(f'v_add_u32 v{t+2}, s{st}, v{t+1}')
    a(f'v_add_u32 v{t+3}, s{st+1}, v{t+1}')
    for k in range(1, 4):
        for j in range(4):
            if k < 3: a(f'ds_write_b128 v{t+2}, {vr(AR.O + 16*k + 4*j, 4)} offset:{(k-1)*4096 + j*1024}')
            else: a(f'ds_write_b128 v{t+3}, {vr(AR.O + 16*k + 4*j, 4)} offset:{j*1024}')
    a('s_waitcnt lgkmcnt(0)')
    a('s_barrier')
    for k in range(1, 4):
        a(f's_sub_u32 s{st}, s{sW}, {k}')
        a(f's_and_b32 s{st}, s{st}, 3')
        if k < 3:
            a(f's_lshl_b32 s{st}, s{st}, 13')
            a(f's_add_u32 s{st}, s{st}, {32768 + (k-1)*4096}')
        else:
            a(f's_lshl_b32 s{st}, s{st}, 12')
            a(f's_add_u32 s{st}, s{st}, {STG}')
        a(f'v_add_u32 v{t+2+k}, s{st}, v{t+1}')
        for j in range(4):
            a(f'ds_read_b128 {vr(MB[k-1] + 4*j, 4)}, v{t+2+k} offset:{j*1024}')
    a(f's_add_u32 s{st}, s{S_B}, {8 if role == "B" else 0}')
    a(f's_lshl_b32 s{st}, s{st}, 5')
    a(f's_add_u32 s{st}, s{st}, s{S_H}')
    a(f's_lshl_b32 s{st+2}, s{st}, 4')
    a('s_waitcnt lgkmcnt(0)')
    for i in range(16):
        a(f'v_add_f32 v{AR.O+i}, v{AR.O+i}, v{MB[0]+i}')
        a(f'v_add_f32 v{MB[1]+i}, v{MB[1]+i}, v{MB[2]+i}')
    for i in range(16):
        a(f'v_add_f32 v{AR.O+i}, v{AR.O+i}, v{MB[1]+i}')
    for i in range(8):
        a(f'v_cvt_pk_bf16_f32 v{AR.P+i}, v{AR.O+2*i}, v{AR.O+2*i+1}')
    a(f's_lshl_b32 s{st}, s{sW}, 11')
    a(f'v_add_u32 v{t+1}, s{st}, v{t+1}')
    for i in range(4): a(f'v_mov_b32 v{vz+2+i}, 1')
    a(f'global_store_dwordx4 v{t+1}, {vr(AR.P,4)}, {sr(sOut,2)} sc1')
    a(f'global_store_dwordx4 v{t+1}, {vr(AR.P+4,4)}, {sr(sOut,2)} offset:1024 sc1')
    a('s_barrier')
    wo_dma(a, P, 1)
    a('s_waitcnt vmcnt(8)')
    ts(a, 4)
    a('s_barrier')
    a(f's_cmp_lg_u32 s{S_W}, 0')
    a(f's_cbranch_scc1 {role}_done')
    a(f'v_cmp_eq_u32 vcc, 1, v{vi}')
    a('s_cmp_eq_u64 vcc, -1')
    a(f's_cbranch_scc1 {role}_initok')
    if not NOINIT: poll(a, vz, P_DBG, vi)
    a.label(f'{role}_initok')
    a(f'v_mov_b32 v{vz}, s{st+2}')
    store_flag(a, P_WS, vz, vz+2, n=4)
    ts(a, 5)
    a.label(f'{role}_done')

def gen_unit(a, P, role):
    POL = P['polkv']
    isB = role == 'B'
    PX, PWQ, PK, PV = (P_BX, P_BWQ, P_BK, P_BV) if isB else (P_AX, P_AWQ, P_AK, P_AV)
    a.label('ROLE_' + role)
    if not isB:
        if P.get('noA'): a('s_branch L_end')
        a(f's_setprio {P["prio_A0"]}')
        a('s_cmp_lg_u32 s2, 256')
        a('s_cbranch_scc1 A_noclear')
        z = QT + 4
        for i in range(4): a(f'v_mov_b32 v{z+i}, 0')
        a(f's_lshl_b32 s{S_T}, s{S_W}, 13')
        a(f'v_lshlrev_b32 v{QT}, 4, v{AR.LANE}')
        a(f'v_add_u32 v{QT}, s{S_T}, v{QT}')
        a(f'v_add_u32 v{QT+1}, 4096, v{QT}')
        for i in range(8):
            a(f'global_store_dwordx4 v{QT + i//4}, {vr(z,4)}, {sr(P_WS,2)} offset:{(i%4)*1024} sc1')
        a('s_waitcnt vmcnt(0)')
        a('s_barrier')
        a(f's_cmp_lg_u32 s{S_W}, 0')
        a('s_cbranch_scc1 A_noclear')
        a(f'v_mov_b32 v{z+1}, 1')
        store_flag(a, P_DBG, z, z+1)
        a.label('A_noclear')
    a(f's_and_b32 s{S_T}, s{S_R}, 3')
    a(f's_lshr_b32 s{S_B}, s{S_R}, 2')
    a(f's_lshl_b32 s{S_H}, s{S_X}, 2')
    a(f's_add_u32 s{S_H}, s{S_H}, s{S_T}')
    a(f's_lshl_b32 s{S_T}, s{S_B}, 15')
    a(f's_add_u32 s{SRD_X}, s{PX}, s{S_T}')
    a(f's_addc_u32 s{SRD_X+1}, s{PX+1}, 0')
    srd(a, SRD_X, 32768)
    a(f's_lshl_b32 s{S_T}, s{S_H}, 8')
    a(f's_add_u32 s{SRD_WQ}, s{PWQ}, s{S_T}')
    a(f's_addc_u32 s{SRD_WQ+1}, s{PWQ+1}, 0')
    a(f's_sub_u32 s{S_T+1}, 4194304, s{S_T}')
    srd(a, SRD_WQ, f's{S_T+1}')
    a(f's_and_b32 s{S_STEP}, s{S_B}, 3')
    a(f's_lshl_b32 s{S_T}, s{S_B}, 5')
    a(f's_add_u32 s{S_T}, s{S_T}, s{S_H}')
    if isB:
        a(f's_mov_b32 s{S_G}, s{S_T}')
    else:
        a(f's_lshl_b32 s{S_G}, s{S_B}, 3')
        a(f's_add_u32 s{S_G}, s{S_G}, s{S_X}')
    a(f's_lshl_b32 s{S_T+1}, s{S_G}, 19')
    a(f's_lshr_b32 s{S_T+2}, s{S_G}, 13')
    a(f's_add_u32 s{SRD_K}, s{PK}, s{S_T+1}')
    a(f's_addc_u32 s{SRD_K+1}, s{PK+1}, s{S_T+2}')
    srd(a, SRD_K, 524288)
    a(f's_add_u32 s{SRD_V}, s{PV}, s{S_T+1}')
    a(f's_addc_u32 s{SRD_V+1}, s{PV+1}, s{S_T+2}')
    srd(a, SRD_V, 524288)
    if isB: a(f's_add_u32 s{S_T}, s{S_T}, 256')
    a(f's_lshl_b32 s{S_T}, s{S_T}, 13')
    a(f's_add_u32 s{S_T}, s{S_T}, {WS_O}')
    a(f's_add_u32 s{S_A}, s{P_WS}, s{S_T}')
    a(f's_addc_u32 s{S_A+1}, s{P_WS+1}, 0')
    setup_dma_B(a)
    a(f's_lshl_b32 s{S_KL}, s{S_W}, 13')
    a(f's_add_u32 s{S_VL}, s{S_KL}, 32768')
    a(f's_mul_i32 s{S_ROT}, s{2 if isB else S_G}, 5')
    a(f's_mul_i32 s{S_T}, s{S_W}, 3')
    a(f's_add_u32 s{S_ROT}, s{S_ROT}, s{S_T}')
    a(f's_and_b32 s{S_ROT}, s{S_ROT}, 15')
    a(f's_lshl_b32 s{S_ROT}, s{S_ROT}, 13')
    a(f's_lshl_b32 s{S_WB}, s{S_W}, 17')
    a(f's_add_u32 s{S_SO}, s{S_WB}, s{S_ROT}')
    kp = lambda p: AR.DK + p
    vp = lambda p: AR.DV
    def kdma(): dma_tile8k(a, SRD_K, S_SO, S_KL, S_U, POL, kp)
    kpos = P['kpos'] if isB else P['kposA']
    if kpos < 0: kdma()
    qb_loads(a, P, kpos, kdma if kpos >= 0 else None)
    ts(a, 21)
    qb_compute(a, P, kpos, 8)
    ts(a, 1)
    OUT = 16
    a('s_barrier')
    bmode = P['bmode'] if isB else P['bmodeA']
    if bmode == 0:
        dma_tile8k(a, SRD_V, S_SO, S_VL, S_U, POL, vp)
    t = AR.T; L = AR.LANE
    a(f'v_lshrrev_b32 v{t+8}, 4, v{L}')
    a(f'v_lshlrev_b32 v{t+8}, 11, v{t+8}')
    a(f'v_and_b32 v{t+9}, 15, v{L}')
    a(f'v_lshl_add_u32 v{t+8}, v{t+9}, 4, v{t+8}')
    a(f's_lshl_b32 s{S_T}, s{S_W}, 9')
    a(f's_add_u32 s{S_T}, s{S_T}, 65536')
    a(f'v_add_u32 v{t+8}, s{S_T}, v{t+8}')
    a(f'ds_write_b128 v{t+8}, {vr(OUT,4)}')
    a(f'ds_write_b128 v{t+8}, {vr(OUT+4,4)} offset:256')
    a(f's_mov_b32 s{S_U+1}, s{S_KL}')
    a(f's_mov_b32 s{S_U+2}, s{S_VL}')
    a(f's_mov_b32 s{S_U+3}, s{S_W}')
    call(a, 'SUB_READS')
    a('s_waitcnt lgkmcnt(0)')
    a('s_barrier')
    a(f'v_lshrrev_b32 v{t}, 5, v{L}')
    a(f'v_lshlrev_b32 v{t}, 12, v{t}')
    a(f'v_and_b32 v{t+1}, 31, v{L}')
    a(f'v_lshl_add_u32 v{t}, v{t+1}, 4, v{t}')
    a(f'v_add_u32 v{t}, 65536, v{t}')
    for s in range(8):
        a(f'ds_read_b128 {vr(AR.Q+4*s,4)}, v{t} offset:{s*512}')
    PWO = P_BWO if isB else P_AWO
    a(f's_lshr_b32 s{S_T}, s{S_R}, 2')
    a(f's_lshl_b32 s{S_T}, s{S_T}, 7')
    a(f's_add_u32 s{SRD_WQ}, s{PWO}, s{S_T}')
    a(f's_addc_u32 s{SRD_WQ+1}, s{PWO+1}, 0')
    a(f's_sub_u32 s{S_T+1}, 4194304, s{S_T}')
    srd(a, SRD_WQ, f's{S_T+1}')
    a(f's_lshl_b32 s{S_WO}, s{S_X}, 2')
    a(f's_add_u32 s{S_WO}, s{S_WO}, s{S_W}')
    a(f's_lshl_b32 s{S_WO}, s{S_WO}, 17')
    a(f's_lshl_b32 s{S_WL}, s{S_W}, 13')
    a(f'v_lshrrev_b32 v{AR.WD}, 3, v{L}')
    a(f'v_lshlrev_b32 v{AR.WD}, 10, v{AR.WD}')
    a(f'v_and_b32 v{t+4}, 7, v{L}')
    a(f'v_lshl_add_u32 v{AR.WD}, v{t+4}, 4, v{AR.WD}')
    a(f'v_lshrrev_b32 v{t+4}, 5, v{L}')
    a(f'v_lshlrev_b32 v{t+4}, 2, v{t+4}')
    a(f'v_bfe_u32 v{t+5}, v{L}, 2, 2')
    a(f'v_add_u32 v{t+4}, v{t+4}, v{t+5}')
    a(f'v_lshlrev_b32 v{t+4}, 7, v{t+4}')
    a(f'v_bfe_u32 v{t+5}, v{L}, 4, 1')
    a(f'v_lshl_add_u32 v{t+4}, v{t+5}, 5, v{t+4}')
    a(f'v_and_b32 v{t+5}, 3, v{L}')
    a(f'v_lshl_add_u32 v{t+4}, v{t+5}, 3, v{t+4}')
    a(f's_and_b32 s{S_T}, s{S_W}, 1')
    a(f's_lshl_b32 s{S_T}, s{S_T}, 6')
    a(f's_add_u32 s{S_T+1}, s{S_WL}, s{S_T}')
    a(f'v_add_u32 v{AR.WR0}, s{S_T+1}, v{t+4}')
    a(f's_xor_b32 s{S_T+1}, s{S_T+1}, 64')
    a(f'v_add_u32 v{AR.WR1}, s{S_T+1}, v{t+4}')
    a(f's_mov_b32 s{S_CNT}, 0')
    ts(a, 2)
    a(f's_setprio {P["prio_B" if isB else "prio_A"]}')
    a.label(role + '_loop')
    def adv():
        a(f's_add_u32 s{S_ROT}, s{S_ROT}, 8192')
        a(f's_and_b32 s{S_ROT}, s{S_ROT}, 0x1ffff')
        a(f's_add_u32 s{S_SO}, s{S_WB}, s{S_ROT}')
    if bmode == 0:
        IT = P.get('tsit', 10)
        ts_it(a, 48, IT)
        a('s_waitcnt vmcnt(8)')
        ts_it(a, 49, IT)
        read_k(a)
        adv()
        a('s_waitcnt lgkmcnt(0)')
        ts_it(a, 50, IT)
        dma_tile8k(a, SRD_K, S_SO, S_KL, S_U, POL, kp)
        ts_it(a, 51, IT)
        mfma_s(a)
        a('s_waitcnt vmcnt(8)')
        ts_it(a, 52, IT)
        call(a, 'SUB_SOFT')
        ts_it(a, 53, IT)
        dma_tile8k(a, SRD_V, S_SO, S_VL, S_U, POL, vp)
        ts_it(a, 54, IT)
        mfma_pv(a)
        ts_it(a, 55, IT)
    else:
        IT = P.get('tsit', 10)
        ts_it(a, 48, IT)
        a('s_waitcnt vmcnt(0)')
        ts_it(a, 49, IT)
        dma_tile8k(a, SRD_V, S_SO, S_VL, S_U, POL, vp)
        ts_it(a, 50, IT)
        read_k(a)
        adv()
        a('s_waitcnt lgkmcnt(0)')
        mfma_s(a)
        call(a, 'SUB_SOFT2')
        ts_it(a, 51, IT)
        a('s_waitcnt vmcnt(0)')
        ts_it(a, 52, IT)
        Lk = a.newlabel('L_knext'); Lk2 = a.newlabel('L_kdone')
        a(f's_cmp_eq_u32 s{S_CNT}, 15')
        a(f's_cbranch_scc0 {Lk}')
        wo_dma(a, P, 0)
        a(f's_branch {Lk2}')
        a.label(Lk)
        dma_tile8k(a, SRD_K, S_SO, S_KL, S_U, POL, kp)
        a.label(Lk2)
        ts_it(a, 53, IT)
        read_v(a)
        a('s_waitcnt lgkmcnt(0)')
        mfma_pv(a)
        ts_it(a, 54, IT)
        ts_it(a, 55, IT)
    ts(a, 32, S_CNT)
    a(f's_add_u32 s{S_CNT}, s{S_CNT}, 1')
    a(f's_cmp_lt_u32 s{S_CNT}, 16')
    a(f's_cbranch_scc1 {role}_loop')
    a(f's_setprio {P["prio_start"] if isB else P["prio_W"]}')
    ts(a, 3)
    epi_b(a, role, P)
    if P.get('sym'):
        a(f's_mov_b32 s{S_PROB}, {1 if isB else 0}')
        if isB: a('s_branch L_WORK')
        else:
            a.label('L_WORK')
            worky(a, P)
            a('s_branch L_end')
        return
    if not isB and P.get('astop') != 1: worky(a, P)
    a('s_branch L_end')

YWF = 128; YOF = 0; YAC = 64; YT = 216
def worky(a, P):
    T = YT; L = AR.LANE
    vD = T; vR0 = T+1; vR1 = T+2; vF = T+3; vL16 = T+4; vP = T+5; vOut = T+6; vY = T+7; vZ = T+8; vOne = T+9; t = T+10
    S_MT = S_TB; S_NT = S_TN
    a(f's_and_b32 s{S_MT}, s{S_R}, 3')
    a(f's_lshr_b32 s{S_NT}, s{S_R}, 2')
    a(f's_lshl_b32 s{S_WKL}, s{S_W}, 13')
    a(f'v_lshlrev_b32 v{vL16}, 4, v{L}')
    a(f's_lshl_b32 s{S_H}, s{S_X}, 2')
    a(f's_add_u32 s{S_H}, s{S_H}, s{S_W}')
    a(f'v_lshrrev_b32 v{vP}, 5, v{L}')
    a(f'v_lshlrev_b32 v{vP}, 12, v{vP}')
    a(f'v_and_b32 v{t}, 31, v{L}')
    a(f'v_lshl_add_u32 v{vP}, v{t}, 4, v{vP}')
    a(f's_lshl_b32 s{S_T}, s{S_X}, 9')
    a(f'v_add_u32 v{vP}, s{S_T}, v{vP}')
    a(f'v_mov_b32 v{vOne}, 1')
    if not P.get('sym'):
        a(f's_mov_b32 s{S_PROB}, 0')
    a.label('WK_loop')
    a(f's_lshl_b32 s{S_T}, s{S_PROB}, 3')
    a(f's_lshl_b32 s{S_T+1}, s{S_MT}, 1')
    a(f's_add_u32 s{S_T}, s{S_T}, s{S_T+1}')
    a(f's_lshl_b32 s{S_T}, s{S_T}, 5')
    a(f's_add_u32 s{S_T}, s{S_T}, s{S_H}')
    a(f's_lshl_b32 s{S_T+1}, s{S_T}, 13')
    a(f's_add_u32 s{S_T+1}, s{S_T+1}, {WS_O}')
    a(f's_add_u32 s{SRD_X}, s{P_WS}, s{S_T+1}')
    a(f's_addc_u32 s{SRD_X+1}, s{P_WS+1}, 0')
    srd(a, SRD_X, 262144 + 8192)
    a(f's_lshl_b32 s{S_T}, s{S_T}, 4')
    a(f'v_bfe_u32 v{t}, v{L}, 2, 1')
    a(f'v_lshlrev_b32 v{t}, 9, v{t}')
    a(f'v_and_b32 v{t+1}, 3, v{L}')
    a(f'v_lshl_add_u32 v{t}, v{t+1}, 2, v{t}')
    a(f'v_add_u32 v{vF}, s{S_T}, v{t}')
    a(f's_lshl_b32 s{S_T}, s{S_PROB}, 5')
    a(f's_lshl_b32 s{S_T+1}, s{S_MT}, 3')
    a(f's_add_u32 s{S_T}, s{S_T}, s{S_T+1}')
    a(f's_add_u32 s{S_T}, s{S_T}, s{S_NT}')
    a(f's_lshl_b32 s{S_T}, s{S_T}, 2')
    a(f's_add_u32 s{S_T}, s{S_T}, s{S_W}')
    a(f's_lshl_b32 s{S_T+1}, s{S_T}, 15')
    a(f's_add_u32 s{S_T+1}, s{S_T+1}, {WS_Y}')
    a(f's_add_u32 s{SRD_K}, s{P_WS}, s{S_T+1}')
    a(f's_addc_u32 s{SRD_K+1}, s{P_WS+1}, 0')
    srd(a, SRD_K, 32768)
    a(f's_lshl_b32 s{S_T}, s{S_T}, 5')
    a(f's_add_u32 s{S_T}, s{S_T}, {FL_Y}')
    a(f'v_and_b32 v{t}, 7, v{L}')
    a(f'v_lshlrev_b32 v{t}, 2, v{t}')
    a(f'v_add_u32 v{vY}, s{S_T}, v{t}')
    a(f's_lshl_b32 s{S_T+1}, s{S_X}, 2')
    a(f's_add_u32 s{S_T}, s{S_T}, s{S_T+1}')
    a(f'v_mov_b32 v{vZ}, s{S_T}')
    a(f's_lshl_b32 s{S_T}, s{S_MT}, 1')
    a(f's_lshr_b32 s{S_T+1}, s{S_W}, 1')
    a(f's_add_u32 s{S_T}, s{S_T}, s{S_T+1}')
    a(f's_lshl_b32 s{S_T}, s{S_T}, 16')
    a(f's_lshl_b32 s{S_T+1}, s{S_PROB}, 10')
    a(f's_add_u32 s{S_T}, s{S_T}, s{S_T+1}')
    a(f's_lshl_b32 s{S_T+1}, s{S_NT}, 7')
    a(f's_add_u32 s{S_T}, s{S_T}, s{S_T+1}')
    a(f's_and_b32 s{S_T+1}, s{S_W}, 1')
    a(f's_lshl_b32 s{S_T+1}, s{S_T+1}, 6')
    a(f's_add_u32 s{S_T}, s{S_T}, s{S_T+1}')
    a(f's_lshl_b32 s{S_T+1}, s{S_X}, 3')
    a(f's_add_u32 s{S_T}, s{S_T}, s{S_T+1}')
    a(f'v_and_b32 v{t}, 31, v{L}')
    a(f'v_lshlrev_b32 v{t}, 11, v{t}')
    a(f'v_add_u32 v{vOut}, s{S_T}, v{t}')
    a(f's_lshr_b32 s{S_T}, s{S_W}, 1')
    a(f's_lshl_b32 s{S_A}, s{S_T}, 18')
    a(f's_add_u32 s{S_A+1}, s{S_A}, 4096')
    a(f's_xor_b32 s{S_A+2}, s{S_A}, 262144')
    a(f's_add_u32 s{S_A+3}, s{S_A+2}, 4096')
    ts(a, 8)
    poll(a, vF, P_WS, t, sleep=P['sleep'])
    ts(a, 9)
    for beta in range(2):
        for i in range(8):
            a(f'buffer_load_dwordx4 {vr(YOF + (beta*8+i)*4, 4)}, v{vL16}, {sr(SRD_X,4)}, s{S_A + beta*2 + (i>>2)} offen offset:{(i&3)*1024} sc1')
    for Tt in range(4):
        for u in range(2):
            for nu in range(2):
                for v in range(2):
                    r = YWF + ((Tt*2+u)*2 + nu)*4 + 2*v
                    a(f'ds_read_b64_tr_b16 {vr(r, 2)}, v{AR.WR0 + nu} offset:{(Tt>>1)*32768 + (32*(Tt&1) + 16*u + 8*v) * 128}')
    a('s_waitcnt lgkmcnt(0)')
    for beta in range(2):
        a(f's_waitcnt vmcnt({8 * (1 - beta)})')
        for i in range(8):
            for nu in range(2):
                acc = vr(YAC + (beta*2+nu)*16, 16)
                c = '0' if i == 0 else acc
                a(f'v_mfma_f32_32x32x16_bf16 {acc}, {vr(YWF + (i*2+nu)*4, 4)}, {vr(YOF + (beta*8+i)*4, 4)}, {c}')
    ts(a, 10)
    yoffs = [0, 4096, 32768]
    a(f'v_add_u32 v{t}, s{S_WKL}, v{vL16}')
    for k in range(1, 4):
        for j in range(4):
            a(f'ds_write_b128 v{t}, {vr(YAC + 16*k + 4*j, 4)} offset:{yoffs[k-1] + j*1024}')
    a('s_waitcnt lgkmcnt(0)')
    a('s_barrier')
    for k in range(1, 4):
        a(f's_xor_b32 s{S_T}, s{S_W}, {k}')
        a(f's_lshl_b32 s{S_T}, s{S_T}, 13')
        a(f'v_add_u32 v{t+k}, s{S_T}, v{vL16}')
        for j in range(4):
            a(f'ds_read_b128 {vr(YOF + 16*(k-1) + 4*j, 4)}, v{t+k} offset:{yoffs[k-1] + j*1024}')
    a('s_waitcnt lgkmcnt(0)')
    for i in range(16):
        a(f'v_add_f32 v{YAC+i}, v{YAC+i}, v{YOF+i}')
        a(f'v_add_f32 v{YOF+16+i}, v{YOF+16+i}, v{YOF+32+i}')
    for i in range(16):
        a(f'v_add_f32 v{YAC+i}, v{YAC+i}, v{YOF+16+i}')
    a(f's_lshl_b32 s{S_U}, s{S_X}, 12')
    for j in range(4):
        a(f'buffer_store_dwordx4 {vr(YAC + 4*j, 4)}, v{vL16}, {sr(SRD_K,4)}, s{S_U} offen offset:{j*1024} sc1')
    a('s_waitcnt vmcnt(0)')
    store_flag(a, P_WS, vZ, vOne)
    ts(a, 11)
    poll(a, vY, P_WS, t, sleep=P['sleep'])
    ts(a, 12)
    for i in range(4):
        a(f's_mov_b32 s{S_U + i}, {i*8192}')
        a(f'buffer_load_dwordx4 {vr(YOF + 4*i, 4)}, v{vP}, {sr(SRD_K,4)}, s{S_U + i} offen sc1')
    a('s_waitcnt vmcnt(0)')
    for i in range(4):
        a(f'v_add_f32 v{YOF+i}, v{YOF+i}, v{YOF+4+i}')
        a(f'v_add_f32 v{YOF+8+i}, v{YOF+8+i}, v{YOF+12+i}')
    for i in range(4):
        a(f'v_add_f32 v{YOF+i}, v{YOF+i}, v{YOF+8+i}')
    for i in range(4):
        a(f'v_mov_b32 v{YOF+4+i}, v{YOF+i}')
    for i in range(4):
        a(f'v_permlane32_swap_b32 v{YOF+i}, v{YOF+4+i}')
    for i in range(4):
        a(f'v_add_f32 v{YOF+i}, v{YOF+i}, v{YOF+4+i}')
    a(f'v_cvt_pk_bf16_f32 v{YOF+16}, v{YOF}, v{YOF+1}')
    a(f'v_cvt_pk_bf16_f32 v{YOF+17}, v{YOF+2}, v{YOF+3}')
    a('s_mov_b32 exec_hi, 0')
    a(f'global_store_dwordx2 v{vOut}, {vr(YOF+16,2)}, {sr(P_OUT,2)}')
    a('s_mov_b32 exec_hi, -1')
    ts(a, 13)
    if TS_ON:
        L2 = a.newlabel('L_cp')
        a(f's_cmp_eq_u32 s{S_PROB}, 0')
        a(f's_cbranch_scc0 {L2}')
        for i in range(6):
            a(f'v_readlane_b32 s94, v249, {8+i}')
            a('s_nop 4')
            a(f'v_writelane_b32 v249, s94, {24+i}')
        a.label(L2)
    if not P.get('sym'):
        a(f's_add_u32 s{S_PROB}, s{S_PROB}, 1')
        a(f's_cmp_lt_u32 s{S_PROB}, {1 if P.get("astop") == 3 else 2}')
        a('s_cbranch_scc1 WK_loop')

def gen_fused(P):
    a = Asm()
    a('s_cmp_ge_u32 s2, 512')
    a('s_cbranch_scc1 L_exit')
    a('s_load_dwordx16 s[16:31], s[0:1], 0')
    a('s_load_dwordx8 s[32:39], s[0:1], 64')
    a('s_load_dwordx2 s[40:41], s[0:1], 96')
    a('v_lshrrev_b32 v1, 6, v0')
    a(f'v_and_b32 v{AR.LANE}, 63, v0')
    a(f'v_readfirstlane_b32 s{S_W}, v1')
    a(f's_and_b32 s{S_X}, s2, 7')
    a(f's_lshr_b32 s{S_R}, s2, 3')
    a(f's_and_b32 s{S_R}, s{S_R}, 31')
    a(f's_mov_b32 s{S_INIT}, 0')
    a(f's_setprio {P["prio_start"]}')
    a('s_waitcnt lgkmcnt(0)')
    if P.get('wsb'):
        a(f's_add_u32 s{P_WS}, s{P_WS}, {P["wsb"] << 20}')
        a(f's_addc_u32 s{P_WS+1}, s{P_WS+1}, 0')
    if TS_ON:
        a('v_mov_b32 v249, 0')
        ts(a, 0)
    a('s_cmp_ge_u32 s2, 256')
    a('s_cbranch_scc1 ROLE_A')
    gen_unit(a, P, 'B')
    sub_reads(a)
    if P['bmode'] == 0 or P['bmodeA'] == 0: sub_soft(a)
    if P['bmode'] != 0 or P['bmodeA'] != 0: sub_soft2(a)
    gen_unit(a, P, 'A')
    a.label('L_end')
    if TS_ON:
        ts(a, 16)
        a(f's_lshl_b32 s8, s2, 2')
        a(f's_add_u32 s8, s8, s{S_W}')
        a('s_lshl_b32 s8, s8, 8')
        a(f's_add_u32 s8, s8, {WS_TS}')
        if P.get('wsb'):
            a(f's_sub_u32 s{P_WS}, s{P_WS}, {P["wsb"] << 20}')
            a(f's_subb_u32 s{P_WS+1}, s{P_WS+1}, 0')
        a(f'v_lshlrev_b32 v248, 2, v{AR.LANE}')
        a('v_add_u32 v248, s8, v248')
        a(f'global_store_dword v248, v249, {sr(P_WS,2)}')
    a.label('L_exit')
    a('s_endpgm')
    return finish(a)

DEF = dict(polkv='nt', polw='nt', polx='nt', polwo='nt', ring=4, sleep=2, prio_start=3, prio_A0=2, prio_A=2, prio_B=0, prio_W=3,
           kpos=3, kposA=3, bmode=1, bmodeA=1, wo0=4, sym=1)

def build(out, **kw):
    global TS_ON, NOINIT, SLEEP0
    P = dict(DEF); P.update(kw)
    NOINIT = bool(P.get('noA'))
    SLEEP0 = P.get('sleep0', 1)
    TS_ON = P.get('ts', False)
    kn = NAME + '_kernel'
    t = file_text([(None, 512, 256, 81920)], [(kn, gen_fused(P), 256, 100, None)])
    open(out, 'w').write(t)

if __name__ == '__main__':
    import sys
    PR = dict(prio_start=3, prio_A0=2, prio_A=2, prio_B=0)
    build('m0.s', **PR)
    build('m0_ts.s', ts=True, **PR)
```

```python
import sys, math, struct
from asmgen import *
from hazard import fix_hazards

CSC = (128 ** -0.5) * math.log2(math.e)
def f2u(x): return struct.unpack('<I', struct.pack('<f', x))[0]
def vr(b, n): return f'v[{b}:{b+n-1}]'
def sr(b, n): return f's[{b}:{b+n-1}]'

FL_O = 0
FL_P = 8192
FL_Q = 12288
FL_Y = 16384
WS_Q = 1 << 20
WS_O = 4 << 20
WS_X = 8 << 20
WS_Y = 24 << 20
WS_TS = 32 << 20

S_W = 3; S_X = 4; S_R = 5; S_B = 6; S_H = 7
S_T = 8
P_AX, P_AK, P_AV, P_AWQ, P_AWO, P_BX, P_BK, P_BV = 16, 18, 20, 22, 24, 26, 28, 30
P_BWQ, P_BWO, P_OUT, P_DBG = 32, 34, 36, 38
P_WS = 40
S_WKL = 42; S_WKB = 43
SRD_X = 44; SRD_WQ = 48; SRD_K = 52; SRD_V = 56
S_C = 60; S_CNT = 61; S_KL = 62; S_VL = 63
S_ROT = 64; S_WB = 65; S_SO = 66; S_STEP = 67
S_P = 68
S_A = 70
S_U = 78
S_TB = 84; S_TN = 85
S_G = 86
S_JQ = 87
S_SPIN = 90; S_INIT = 91; S_PROB = 93
LK1 = 96
OOB = 0x7f000000

class AR:
    Q = 0; O = 32; K = 96; V = 96; WO = 128; S = 192; P = 208
    T = 216
    M = 232; L = 233
    AK = 234; AV = 242
    WD = 246; WR0 = 247; WR1 = 248
    DK = 250; DV = 254
    LANE = 255
S_WO = 88
S_WL = 89
STG = 65536
QR, QX, QAT, QACC, QT = 0, 128, 160, 176, 240
WF = 0; OF = 128; ACC = 224; WT = 232

SPIN_LIMIT = 400000
TS_ON = False
NOINIT = False
SLEEP0 = 1

def finish(a):
    lines, n = fix_hazards(a.lines)
    return '\n'.join(lines) + '\n'
def srd(a, d, size):
    a(f's_and_b32 s{d+1}, s{d+1}, 0xffff')
    a(f's_mov_b32 s{d+2}, {size}')
    a(f's_mov_b32 s{d+3}, 0x20000')
def poll(a, vaddr, sbase, vtmp, sleep=None):
    if sleep is None: sleep = SLEEP0
    L = a.newlabel('L_poll'); D = a.newlabel('L_polld')
    a(f's_mov_b32 s{S_SPIN}, {SPIN_LIMIT}')
    a.label(L)
    a(f'global_load_dword v{vtmp}, v{vaddr}, {sr(sbase,2)} sc1')
    a('s_waitcnt vmcnt(0)')
    a(f'v_cmp_eq_u32 vcc, 1, v{vtmp}')
    a('s_cmp_eq_u64 vcc, -1')
    a(f's_cbranch_scc1 {D}')
    if sleep: a(f's_sleep {sleep}')
    a(f's_sub_u32 s{S_SPIN}, s{S_SPIN}, 1')
    a(f's_cmp_lg_u32 s{S_SPIN}, 0')
    a(f's_cbranch_scc1 {L}')
    a.label(D)
def store_flag(a, sbase, vz, vone, n=1):
    a('s_mov_b64 exec, 1')
    op = {1: 'dword', 2: 'dwordx2', 4: 'dwordx4'}[n]
    src = f'v{vone}' if n == 1 else vr(vone, n)
    a(f'global_store_{op} v{vz}, {src}, {sr(sbase,2)} sc1')
    a('s_mov_b64 exec, -1')
def call(a, name, lk=LK1): a(f's_call_b64 {sr(lk,2)}, {name}')
def ret(a, lk=LK1): a(f's_setpc_b64 {sr(lk,2)}')
def ts(a, slot, sreg=None):
    if not TS_ON: return
    a('s_memrealtime s[94:95]')
    a('s_waitcnt lgkmcnt(0)')
    if sreg is None:
        a(f'v_writelane_b32 v249, s94, {slot}')
    else:
        a(f's_add_u32 m0, s{sreg}, {slot}')
        a('s_nop 4')
        a(f'v_writelane_b32 v249, s94, m0')
def ts_it(a, slot, it):
    if not TS_ON: return
    a('s_memrealtime s[94:95]')
    a(f's_cmp_eq_u32 s{S_CNT}, {it}')
    a(f's_cselect_b32 m0, {slot}, 63')
    a('s_waitcnt lgkmcnt(0)')
    a('s_nop 4')
    a(f'v_writelane_b32 v249, s94, m0')
def wait_init(a, vz, vt):
    a(f'v_mov_b32 v{vz}, 0')
    poll(a, vz, P_DBG, vt)

def qb_loads(a, P, pos, mid=None):
    pol = P['polw']
    vL = AR.LANE; X = QX; R = QR; vt = QT; st = S_T; sW = S_W
    t0, t1, t2, t3 = vt, vt+1, vt+2, vt+3
    a(f'v_and_b32 v{t0}, 3, v{vL}')
    a(f'v_add_u32 v{t0}, s{sW}, v{t0}')
    a(f'v_and_b32 v{t0}, 3, v{t0}')
    a(f'v_and_b32 v{t1}, 12, v{vL}')
    a(f'v_or_b32 v{t0}, v{t0}, v{t1}')
    a(f'v_lshlrev_b32 v{t0}, 4, v{t0}')
    a(f'v_lshrrev_b32 v{t1}, 4, v{vL}')
    a(f'v_lshlrev_b32 v{t2}, 16, v{t1}')
    a(f'v_add_u32 v{t0}, v{t0}, v{t2}')
    a(f'v_and_b32 v{t2}, 15, v{vL}')
    a(f'v_lshlrev_b32 v{t2}, 10, v{t2}')
    a(f'v_lshlrev_b32 v{t1}, 4, v{t1}')
    a(f'v_add_u32 v{t2}, v{t2}, v{t1}')
    a(f'v_add_u32 v{t3}, 16384, v{t2}')
    xfirst = P.get('xfirst', 1)
    if xfirst:
        for s in range(4):
            a(f's_add_u32 s{st}, s{S_STEP}, {s}')
            a(f's_and_b32 s{st}, s{st}, 3')
            a(f's_lshl_b32 s{st+1}, s{sW}, 2')
            a(f's_add_u32 s{st}, s{st}, s{st+1}')
            a(f's_lshl_b32 s{st}, s{st}, 6')
            a(f'buffer_load_dwordx4 {vr(X + (s*2+0)*4, 4)}, v{t2}, {sr(SRD_X,4)}, s{st} offen {P["polx"]}')
            a(f'buffer_load_dwordx4 {vr(X + (s*2+1)*4, 4)}, v{t3}, {sr(SRD_X,4)}, s{st} offen {P["polx"]}')
    for s in range(4):
        a(f's_add_u32 s{st}, s{S_STEP}, {s}')
        a(f's_and_b32 s{st}, s{st}, 3')
        a(f's_lshl_b32 s{st+1}, s{sW}, 2')
        a(f's_add_u32 s{st}, s{st}, s{st+1}')
        a(f's_lshl_b32 s{st+1}, s{st}, 18')
        a(f's_lshl_b32 s{st}, s{st}, 6')
        for j in range(8):
            if j == 0: so = st + 1
            else:
                so = st + 2 + (j & 1)
                a(f's_add_u32 s{so}, s{st+1}, {j * 8192}')
            a(f'buffer_load_dwordx4 {vr(R + s*32 + j*4, 4)}, v{t0}, {sr(SRD_WQ,4)}, s{so} offen {pol}')
        if not xfirst:
            a(f'buffer_load_dwordx4 {vr(X + (s*2+0)*4, 4)}, v{t2}, {sr(SRD_X,4)}, s{st} offen {P["polx"]}')
            a(f'buffer_load_dwordx4 {vr(X + (s*2+1)*4, 4)}, v{t3}, {sr(SRD_X,4)}, s{st} offen {P["polx"]}')
        if mid and s == pos: mid()

def qp_step(a, s, first):
    R, X, AT, A_ = QR, QX, QAT, QACC
    st = S_U
    for d in range(4):
        buf = AT + (d % 2) * 8
        for t in range(4):
            r0 = R + s*32 + (2*t)*4 + d
            r1 = R + s*32 + (2*t+1)*4 + d
            a(f'v_perm_b32 v{buf + t}, v{r1}, v{r0}, s{st}')
            a(f'v_perm_b32 v{buf + 4 + t}, v{r1}, v{r0}, s{st+1}')
        for eo in range(2):
            e = 2*d + eo
            for qt in range(2):
                acc = A_ + (e*2 + qt) * 4
                c = '0' if first else vr(acc, 4)
                a(f'v_mfma_f32_16x16x32_bf16 {vr(acc,4)}, {vr(buf + 4*eo, 4)}, {vr(X + (s*2+qt)*4, 4)}, {c}')

def qb_compute(a, P, pos, kl):
    a(f's_mov_b32 s{S_U}, 0x05040100')
    a(f's_mov_b32 s{S_U+1}, 0x07060302')
    for s in range(4):
        later = (3 - s) * (8 if P.get('xfirst', 1) else 10) + (kl if s <= pos else 0)
        a(f's_waitcnt vmcnt({later})')
        if s == 0: ts(a, 19)
        qp_step(a, s, s == 0)
    ts(a, 20)
    inbox_base = 32768
    sW = S_W; vL = AR.LANE; va = QT + 4; st = S_T + 4; A_ = QACC
    for k in range(1, 4):
        a(f's_add_u32 s{st}, s{sW}, {k}')
        a(f's_and_b32 s{st}, s{st}, 3')
        a(f's_mul_i32 s{st}, s{st}, 12288')
        a(f's_add_u32 s{st}, s{st}, {inbox_base + (k-1)*4096}')
        a(f'v_lshlrev_b32 v{va}, 4, v{vL}')
        a(f'v_add_u32 v{va}, s{st}, v{va}')
        TT = 16 * (k - 1)
        for qt in range(2):
            for e in range(8):
                a(f'v_mov_b32 v{TT + qt*8 + e}, v{A_ + (e*2+qt)*4 + k}')
        for j in range(4):
            a(f'ds_write_b128 v{va}, {vr(TT + 4*j, 4)} offset:{j*1024}')
    a('s_waitcnt lgkmcnt(0)')
    a('s_barrier')
    T = 48
    a(f's_mul_i32 s{st}, s{sW}, 12288')
    a(f's_add_u32 s{st}, s{st}, {inbox_base}')
    a(f'v_lshlrev_b32 v{va}, 4, v{vL}')
    a(f'v_add_u32 v{va}, s{st}, v{va}')
    for k in range(3):
        for j in range(4):
            a(f'ds_read_b128 {vr(T + 16*k + 4*j, 4)}, v{va} offset:{k*4096 + j*1024}')
    for k in range(3):
        a(f's_waitcnt lgkmcnt({8 - 4*k})')
        for qt in range(2):
            for e in range(8):
                r = A_ + (e*2+qt)*4
                a(f'v_add_f32 v{r}, v{r}, v{T + 16*k + qt*8 + e}')
    OUT = 16
    for qt in range(2):
        for p in range(4):
            a(f'v_cvt_pk_bf16_f32 v{OUT + qt*4 + p}, v{A_ + ((2*p)*2+qt)*4}, v{A_ + ((2*p+1)*2+qt)*4}')

def setup_dma_B(a):
    L = AR.LANE; t = QT + 4
    a(f'v_lshrrev_b32 v{t}, 4, v{L}')
    a(f'v_and_b32 v{t+1}, 15, v{L}')
    for p in range(4):
        a(f'v_add_u32 v{t+2}, {4*p}, v{t}')
        a(f'v_xor_b32 v{t+2}, v{t+2}, v{t+1}')
        a(f'v_lshlrev_b32 v{t+2}, 4, v{t+2}')
        a(f'v_lshl_add_u32 v{AR.DK+p}, v{t}, 8, v{t+2}')
    a(f'v_lshlrev_b32 v{t+2}, 2, v{t}')
    a(f'v_xor_b32 v{t+2}, v{t+2}, v{t+1}')
    a(f'v_lshlrev_b32 v{t+2}, 4, v{t+2}')
    a(f'v_lshl_add_u32 v{AR.DV}, v{t}, 8, v{t+2}')

def setup_dma_A(a):
    L = AR.LANE; t = QT + 4; st = S_T
    a(f'v_lshrrev_b32 v{t}, 4, v{L}')
    a(f'v_and_b32 v{t+1}, 15, v{L}')
    a(f's_lshl_b32 s{st}, s{S_W}, 3')
    for p in range(2):
        a(f's_add_u32 s{st+1}, s{st}, {4*p}')
        a(f's_and_b32 s{st+1}, s{st+1}, 15')
        a(f'v_add_u32 v{t+2}, s{st+1}, v{t}')
        a(f'v_xor_b32 v{t+2}, v{t+2}, v{t+1}')
        a(f'v_lshlrev_b32 v{t+2}, 4, v{t+2}')
        a(f'v_lshl_add_u32 v{AR.DK+p}, v{t}, 8, v{t+2}')
    a(f'v_lshlrev_b32 v{t+2}, 2, v{t}')
    a(f'v_xor_b32 v{t+2}, v{t+2}, v{t+1}')
    a(f'v_lshlrev_b32 v{t+2}, 4, v{t+2}')
    a(f'v_lshl_add_u32 v{AR.DV}, v{t}, 8, v{t+2}')

def sub_reads(a):
    s_kslot, s_vslot, s_rot = S_U+1, S_U+2, S_U+3
    L = AR.LANE; t = AR.T; st = S_T
    a.label('SUB_READS')
    a(f'v_and_b32 v{t}, 31, v{L}')
    a(f'v_lshrrev_b32 v{t+1}, 5, v{L}')
    a(f'v_and_b32 v{t+2}, 15, v{L}')
    a(f'v_lshlrev_b32 v{t+3}, 3, v{t+1}')
    a(f'v_xor_b32 v{t+2}, v{t+2}, v{t+3}')
    a(f'v_lshlrev_b32 v{t+2}, 4, v{t+2}')
    a(f'v_lshl_add_u32 v{t+2}, v{t}, 8, v{t+2}')
    for s in range(8):
        a(f'v_xor_b32 v{AR.AK+s}, {16*s}, v{t+2}')
        a(f'v_add_u32 v{AR.AK+s}, s{s_kslot}, v{AR.AK+s}')
    a(f'v_and_b32 v{t}, 15, v{L}')
    a(f'v_lshrrev_b32 v{t+2}, 2, v{t}')
    a(f'v_and_b32 v{t+3}, 3, v{t}')
    a(f'v_lshl_add_u32 v{t+4}, v{t+1}, 2, v{t+2}')
    a(f'v_lshlrev_b32 v{t+4}, 8, v{t+4}')
    a(f'v_bfe_u32 v{t+5}, v{L}, 4, 1')
    a(f'v_lshlrev_b32 v{t+5}, 1, v{t+5}')
    a(f'v_lshrrev_b32 v{t+6}, 1, v{t+3}')
    a(f'v_add_u32 v{t+5}, v{t+5}, v{t+6}')
    a(f'v_lshlrev_b32 v{t+6}, 2, v{t+2}')
    a(f'v_xor_b32 v{t+5}, v{t+5}, v{t+6}')
    a(f'v_lshl_add_u32 v{t+4}, v{t+5}, 4, v{t+4}')
    a(f'v_and_b32 v{t+3}, 1, v{t+3}')
    a(f'v_lshl_add_u32 v{t+4}, v{t+3}, 3, v{t+4}')
    for tau in range(4):
        a(f's_add_u32 s{st}, s{s_rot}, {tau}')
        a(f's_and_b32 s{st}, s{st}, 3')
        a(f's_lshl_b32 s{st}, s{st}, 6')
        a(f'v_xor_b32 v{AR.AV+tau}, s{st}, v{t+4}')
        a(f'v_add_u32 v{AR.AV+tau}, s{s_vslot}, v{AR.AV+tau}')
    for i in range(64):
        a(f'v_mov_b32 v{AR.O+i}, 0')
    a(f'v_mov_b32 v{AR.M}, 0xff800000')
    a(f'v_mov_b32 v{AR.L}, 0')
    a(f's_mov_b32 s{S_C}, {f2u(CSC)}')
    ret(a)

def read_k(a):
    for s in range(8):
        a(f'ds_read_b128 {vr(AR.K + 4*s, 4)}, v{AR.AK+s}')
def read_v(a):
    for ks in range(2):
        for tau in range(4):
            for u in range(2):
                r = AR.V + (tau*2 + ks)*4 + u*2
                a(f'ds_read_b64_tr_b16 {vr(r, 2)}, v{AR.AV+tau} offset:{4096*ks + 2048*u}')
def mfma_s(a):
    for s in range(8):
        c = '0' if s == 0 else vr(AR.S, 16)
        a(f'v_mfma_f32_32x32x16_bf16 {vr(AR.S,16)}, {vr(AR.K+4*s,4)}, {vr(AR.Q+4*s,4)}, {c}')
def softmax(a):
    sC = S_C; st = S_P
    S = AR.S; t = AR.T; M = AR.M; Lr = AR.L
    a(f'v_max3_f32 v{t}, v{S}, v{S+1}, v{S+2}')
    a(f'v_max3_f32 v{t+1}, v{S+3}, v{S+4}, v{S+5}')
    a(f'v_max3_f32 v{t}, v{t}, v{S+6}, v{S+7}')
    a(f'v_max3_f32 v{t+1}, v{t+1}, v{S+8}, v{S+9}')
    a(f'v_max3_f32 v{t}, v{t}, v{S+10}, v{S+11}')
    a(f'v_max3_f32 v{t+1}, v{t+1}, v{S+12}, v{S+13}')
    a(f'v_max3_f32 v{t}, v{t}, v{S+14}, v{S+15}')
    a(f'v_max_f32 v{t}, v{t}, v{t+1}')
    a(f'v_mov_b32 v{t+1}, v{t}')
    a(f'v_permlane32_swap_b32 v{t}, v{t+1}')
    a(f'v_max3_f32 v{t}, v{t}, v{t+1}, v{M}')
    a(f'v_cmp_gt_f32 {sr(st,2)}, v{t}, v{M}')
    skip = a.newlabel('L_skip')
    a(f's_cmp_eq_u64 {sr(st,2)}, 0')
    a(f's_cbranch_scc1 {skip}')
    a(f'v_sub_f32 v{t+1}, v{M}, v{t}')
    a(f'v_mul_f32 v{t+1}, s{sC}, v{t+1}')
    a(f'v_exp_f32 v{t+1}, v{t+1}')
    a(f'v_mov_b32 v{M}, v{t}')
    a(f'v_mul_f32 v{Lr}, v{Lr}, v{t+1}')
    for i in range(64):
        a(f'v_mul_f32 v{AR.O+i}, v{AR.O+i}, v{t+1}')
    a.label(skip)
    a(f'v_mul_f32 v{t+1}, s{sC}, v{M}')
    for i in range(16):
        a(f'v_fma_f32 v{S+i}, v{S+i}, s{sC}, -v{t+1}')
    for i in range(16):
        a(f'v_exp_f32 v{S+i}, v{S+i}')
    for i in range(8):
        a(f'v_cvt_pk_bf16_f32 v{AR.P+i}, v{S+2*i}, v{S+2*i+1}')
    a(f'v_add_f32 v{t}, v{S}, v{S+1}')
    a(f'v_add_f32 v{t+1}, v{S+2}, v{S+3}')
    for i in range(2, 8):
        a(f'v_add_f32 v{t + (i&1)}, v{t + (i&1)}, v{S+2*i}')
        a(f'v_add_f32 v{t + (i&1)}, v{t + (i&1)}, v{S+2*i+1}')
    a(f'v_add_f32 v{t}, v{t}, v{t+1}')
    a(f'v_add_f32 v{Lr}, v{Lr}, v{t}')
def sub_soft(a):
    a.label('SUB_SOFT')
    read_v(a)
    softmax(a)
    a('s_waitcnt lgkmcnt(0)')
    ret(a)
def sub_soft2(a):
    a.label('SUB_SOFT2')
    softmax(a)
    ret(a)
def mfma_pv(a):
    for ks in range(2):
        for tau in range(4):
            o = vr(AR.O + 16*tau, 16)
            a(f'v_mfma_f32_32x32x16_bf16 {o}, {vr(AR.V + (tau*2+ks)*4, 4)}, {vr(AR.P + 4*ks, 4)}, {o}')
def dma_tile8k(a, srdn, s_soff, s_lds, st, pol, vpat):
    for half in range(2):
        if half == 0:
            a(f's_mov_b32 m0, s{s_lds}')
            so = s_soff
        else:
            a(f's_add_u32 m0, s{s_lds}, 4096')
            a(f's_add_u32 s{st}, s{s_soff}, 4096')
            so = st
        for p in range(4):
            a(f'buffer_load_dwordx4 v{vpat(p)}, {sr(srdn,4)}, s{so} offen offset:{p*1024} {pol} lds')

def wo_dma(a, P, part):
    for i in range(8):
        a(f's_add_u32 m0, s{S_WL}, {part*32768 + i*1024}')
        a(f's_add_u32 s{S_U + (i&1)}, s{S_WO}, {(part*64 + i*8) * 1024}')
        a(f'buffer_load_dwordx4 v{AR.WD}, {sr(SRD_WQ,4)}, s{S_U + (i&1)} offen {P["polwo"]} lds')

def epi_b(a, role, P):
    sOut = S_A
    sW = S_W; sC = S_C; st = S_T
    t = AR.T; L = AR.LANE; M = AR.M; Lr = AR.L
    ML = STG
    MB = [0, 16, 96]
    vz, vi = AR.AK, AR.AK + 1
    a(f'v_mov_b32 v{vz}, 0')
    a(f'global_load_dword v{vi}, v{vz}, {sr(P_DBG,2)} sc1')
    a(f'v_mov_b32 v{t}, v{Lr}')
    a(f'v_permlane32_swap_b32 v{Lr}, v{t}')
    a(f'v_add_f32 v{Lr}, v{Lr}, v{t}')
    a(f'v_cmp_lt_u32 vcc, 31, v{L}')
    a(f'v_cndmask_b32 v{t}, v{M}, v{Lr}, vcc')
    a(f's_lshl_b32 s{st}, s{sW}, 12')
    a(f's_add_u32 s{st}, s{st}, {ML}')
    a(f'v_lshlrev_b32 v{t+1}, 2, v{L}')
    a(f'v_add_u32 v{t+1}, s{st}, v{t+1}')
    a(f'ds_write_b32 v{t+1}, v{t}')
    a('s_waitcnt lgkmcnt(0)')
    a('s_barrier')
    a(f'v_and_b32 v{t+1}, 31, v{L}')
    a(f'v_lshlrev_b32 v{t+1}, 2, v{t+1}')
    a(f'v_add_u32 v{t+1}, {ML}, v{t+1}')
    for w in range(4):
        a(f'v_add_u32 v{t+10+w}, {4096*w}, v{t+1}')
    for w in range(4):
        a(f'ds_read2_b32 {vr(t+2+2*w, 2)}, v{t+10+w} offset0:0 offset1:32')
    a('s_waitcnt lgkmcnt(0)')
    a('s_barrier')
    m = [t+2+2*w for w in range(4)]
    l = [t+3+2*w for w in range(4)]
    a(f'v_max3_f32 v{t}, v{m[0]}, v{m[1]}, v{m[2]}')
    a(f'v_max_f32 v{t}, v{t}, v{m[3]}')
    for w in range(4):
        a(f'v_sub_f32 v{m[w]}, v{m[w]}, v{t}')
        a(f'v_mul_f32 v{m[w]}, s{sC}, v{m[w]}')
        a(f'v_exp_f32 v{m[w]}, v{m[w]}')
    a(f'v_mul_f32 v{t+1}, v{m[0]}, v{l[0]}')
    for w in range(1, 4):
        a(f'v_fma_f32 v{t+1}, v{m[w]}, v{l[w]}, v{t+1}')
    a(f'v_rcp_f32 v{t+1}, v{t+1}')
    a(f'v_sub_f32 v{t}, v{M}, v{t}')
    a(f'v_mul_f32 v{t}, s{sC}, v{t}')
    a(f'v_exp_f32 v{t}, v{t}')
    a(f'v_mul_f32 v{t}, v{t}, v{t+1}')
    for i in range(64):
        a(f'v_mul_f32 v{AR.O+i}, v{AR.O+i}, v{t}')
    a(f's_lshl_b32 s{st}, s{sW}, 13')
    a(f's_add_u32 s{st}, s{st}, 32768')
    a(f's_lshl_b32 s{st+1}, s{sW}, 12')
    a(f's_add_u32 s{st+1}, s{st+1}, {STG}')
    a(f'v_lshlrev_b32 v{t+1}, 4, v{L}')
    a(f'v_add_u32 v{t+2}, s{st}, v{t+1}')
    a(f'v_add_u32 v{t+3}, s{st+1}, v{t+1}')
    for k in range(1, 4):
        for j in range(4):
            if k < 3: a(f'ds_write_b128 v{t+2}, {vr(AR.O + 16*k + 4*j, 4)} offset:{(k-1)*4096 + j*1024}')
            else: a(f'ds_write_b128 v{t+3}, {vr(AR.O + 16*k + 4*j, 4)} offset:{j*1024}')
    a('s_waitcnt lgkmcnt(0)')
    a('s_barrier')
    for k in range(1, 4):
        a(f's_sub_u32 s{st}, s{sW}, {k}')
        a(f's_and_b32 s{st}, s{st}, 3')
        if k < 3:
            a(f's_lshl_b32 s{st}, s{st}, 13')
            a(f's_add_u32 s{st}, s{st}, {32768 + (k-1)*4096}')
        else:
            a(f's_lshl_b32 s{st}, s{st}, 12')
            a(f's_add_u32 s{st}, s{st}, {STG}')
        a(f'v_add_u32 v{t+2+k}, s{st}, v{t+1}')
        for j in range(4):
            a(f'ds_read_b128 {vr(MB[k-1] + 4*j, 4)}, v{t+2+k} offset:{j*1024}')
    a(f's_add_u32 s{st}, s{S_B}, {8 if role == "B" else 0}')
    a(f's_lshl_b32 s{st}, s{st}, 5')
    a(f's_add_u32 s{st}, s{st}, s{S_H}')
    a(f's_lshl_b32 s{st+2}, s{st}, 4')
    a('s_waitcnt lgkmcnt(0)')
    for i in range(16):
        a(f'v_add_f32 v{AR.O+i}, v{AR.O+i}, v{MB[0]+i}')
        a(f'v_add_f32 v{MB[1]+i}, v{MB[1]+i}, v{MB[2]+i}')
    for i in range(16):
        a(f'v_add_f32 v{AR.O+i}, v{AR.O+i}, v{MB[1]+i}')
    for i in range(8):
        a(f'v_cvt_pk_bf16_f32 v{AR.P+i}, v{AR.O+2*i}, v{AR.O+2*i+1}')
    a(f's_lshl_b32 s{st}, s{sW}, 11')
    a(f'v_add_u32 v{t+1}, s{st}, v{t+1}')
    for i in range(4): a(f'v_mov_b32 v{vz+2+i}, 1')
    a(f'global_store_dwordx4 v{t+1}, {vr(AR.P,4)}, {sr(sOut,2)} sc1')
    a(f'global_store_dwordx4 v{t+1}, {vr(AR.P+4,4)}, {sr(sOut,2)} offset:1024 sc1')
    a('s_barrier')
    wo_dma(a, P, 1)
    a('s_waitcnt vmcnt(8)')
    ts(a, 4)
    a('s_barrier')
    a(f's_cmp_lg_u32 s{S_W}, 0')
    a(f's_cbranch_scc1 {role}_done')
    a(f'v_cmp_eq_u32 vcc, 1, v{vi}')
    a('s_cmp_eq_u64 vcc, -1')
    a(f's_cbranch_scc1 {role}_initok')
    if not NOINIT: poll(a, vz, P_DBG, vi)
    a.label(f'{role}_initok')
    a(f'v_mov_b32 v{vz}, s{st+2}')
    store_flag(a, P_WS, vz, vz+2, n=4)
    ts(a, 5)
    a.label(f'{role}_done')

def gen_unit(a, P, role):
    isB = role == 'B'
    POLK = P.get('polK' + role, P['polkv'])
    POLV = P.get('polV' + role, P['polkv'])
    PX, PWQ, PK, PV = (P_BX, P_BWQ, P_BK, P_BV) if isB else (P_AX, P_AWQ, P_AK, P_AV)
    a.label('ROLE_' + role)
    if not isB:
        if P.get('noA'): a('s_branch L_end')
        a(f's_setprio {P["prio_A0"]}')
        a('s_cmp_lg_u32 s2, 256')
        a('s_cbranch_scc1 A_noclear')
        z = QT + 4
        for i in range(4): a(f'v_mov_b32 v{z+i}, 0')
        a(f's_lshl_b32 s{S_T}, s{S_W}, 13')
        a(f'v_lshlrev_b32 v{QT}, 4, v{AR.LANE}')
        a(f'v_add_u32 v{QT}, s{S_T}, v{QT}')
        a(f'v_add_u32 v{QT+1}, 4096, v{QT}')
        for i in range(8):
            a(f'global_store_dwordx4 v{QT + i//4}, {vr(z,4)}, {sr(P_WS,2)} offset:{(i%4)*1024} sc1')
        a('s_waitcnt vmcnt(0)')
        a('s_barrier')
        a(f's_cmp_lg_u32 s{S_W}, 0')
        a('s_cbranch_scc1 A_noclear')
        a(f'v_mov_b32 v{z+1}, 1')
        store_flag(a, P_DBG, z, z+1)
        a.label('A_noclear')
    a(f's_and_b32 s{S_T}, s{S_R}, 3')
    a(f's_lshr_b32 s{S_B}, s{S_R}, 2')
    a(f's_lshl_b32 s{S_H}, s{S_X}, 2')
    a(f's_add_u32 s{S_H}, s{S_H}, s{S_T}')
    a(f's_lshl_b32 s{S_T}, s{S_B}, 15')
    a(f's_add_u32 s{SRD_X}, s{PX}, s{S_T}')
    a(f's_addc_u32 s{SRD_X+1}, s{PX+1}, 0')
    srd(a, SRD_X, 32768)
    a(f's_lshl_b32 s{S_T}, s{S_H}, 8')
    a(f's_add_u32 s{SRD_WQ}, s{PWQ}, s{S_T}')
    a(f's_addc_u32 s{SRD_WQ+1}, s{PWQ+1}, 0')
    a(f's_sub_u32 s{S_T+1}, 4194304, s{S_T}')
    srd(a, SRD_WQ, f's{S_T+1}')
    a(f's_and_b32 s{S_STEP}, s{S_B}, 3')
    a(f's_lshl_b32 s{S_T}, s{S_B}, 5')
    a(f's_add_u32 s{S_T}, s{S_T}, s{S_H}')
    if isB:
        a(f's_mov_b32 s{S_G}, s{S_T}')
    else:
        a(f's_lshl_b32 s{S_G}, s{S_B}, 3')
        a(f's_add_u32 s{S_G}, s{S_G}, s{S_X}')
    a(f's_lshl_b32 s{S_T+1}, s{S_G}, 19')
    a(f's_lshr_b32 s{S_T+2}, s{S_G}, 13')
    a(f's_add_u32 s{SRD_K}, s{PK}, s{S_T+1}')
    a(f's_addc_u32 s{SRD_K+1}, s{PK+1}, s{S_T+2}')
    srd(a, SRD_K, 524288)
    a(f's_add_u32 s{SRD_V}, s{PV}, s{S_T+1}')
    a(f's_addc_u32 s{SRD_V+1}, s{PV+1}, s{S_T+2}')
    srd(a, SRD_V, 524288)
    if isB: a(f's_add_u32 s{S_T}, s{S_T}, 256')
    a(f's_lshl_b32 s{S_T}, s{S_T}, 13')
    a(f's_add_u32 s{S_T}, s{S_T}, {WS_O}')
    a(f's_add_u32 s{S_A}, s{P_WS}, s{S_T}')
    a(f's_addc_u32 s{S_A+1}, s{P_WS+1}, 0')
    setup_dma_B(a)
    a(f's_lshl_b32 s{S_KL}, s{S_W}, 13')
    a(f's_add_u32 s{S_VL}, s{S_KL}, 32768')
    a(f's_mul_i32 s{S_ROT}, s{2 if isB else S_G}, 5')
    a(f's_mul_i32 s{S_T}, s{S_W}, 3')
    a(f's_add_u32 s{S_ROT}, s{S_ROT}, s{S_T}')
    a(f's_and_b32 s{S_ROT}, s{S_ROT}, 15')
    a(f's_lshl_b32 s{S_ROT}, s{S_ROT}, 13')
    a(f's_lshl_b32 s{S_WB}, s{S_W}, 17')
    a(f's_add_u32 s{S_SO}, s{S_WB}, s{S_ROT}')
    kp = lambda p: AR.DK + p
    vp = lambda p: AR.DV
    def kdma(): dma_tile8k(a, SRD_K, S_SO, S_KL, S_U, POLK, kp)
    kpos = P['kpos'] if isB else P['kposA']
    if kpos < 0: kdma()
    qb_loads(a, P, kpos, kdma if kpos >= 0 else None)
    ts(a, 21)
    qb_compute(a, P, kpos, 8)
    ts(a, 1)
    OUT = 16
    a('s_barrier')
    bmode = P['bmode'] if isB else P['bmodeA']
    if bmode == 0:
        dma_tile8k(a, SRD_V, S_SO, S_VL, S_U, POLV, vp)
    t = AR.T; L = AR.LANE
    a(f'v_lshrrev_b32 v{t+8}, 4, v{L}')
    a(f'v_lshlrev_b32 v{t+8}, 11, v{t+8}')
    a(f'v_and_b32 v{t+9}, 15, v{L}')
    a(f'v_lshl_add_u32 v{t+8}, v{t+9}, 4, v{t+8}')
    a(f's_lshl_b32 s{S_T}, s{S_W}, 9')
    a(f's_add_u32 s{S_T}, s{S_T}, 65536')
    a(f'v_add_u32 v{t+8}, s{S_T}, v{t+8}')
    a(f'ds_write_b128 v{t+8}, {vr(OUT,4)}')
    a(f'ds_write_b128 v{t+8}, {vr(OUT+4,4)} offset:256')
    a(f's_mov_b32 s{S_U+1}, s{S_KL}')
    a(f's_mov_b32 s{S_U+2}, s{S_VL}')
    a(f's_mov_b32 s{S_U+3}, s{S_W}')
    call(a, 'SUB_READS')
    a('s_waitcnt lgkmcnt(0)')
    a('s_barrier')
    a(f'v_lshrrev_b32 v{t}, 5, v{L}')
    a(f'v_lshlrev_b32 v{t}, 12, v{t}')
    a(f'v_and_b32 v{t+1}, 31, v{L}')
    a(f'v_lshl_add_u32 v{t}, v{t+1}, 4, v{t}')
    a(f'v_add_u32 v{t}, 65536, v{t}')
    for s in range(8):
        a(f'ds_read_b128 {vr(AR.Q+4*s,4)}, v{t} offset:{s*512}')
    PWO = P_BWO if isB else P_AWO
    a(f's_lshr_b32 s{S_T}, s{S_R}, 2')
    a(f's_lshl_b32 s{S_T}, s{S_T}, 7')
    a(f's_add_u32 s{SRD_WQ}, s{PWO}, s{S_T}')
    a(f's_addc_u32 s{SRD_WQ+1}, s{PWO+1}, 0')
    a(f's_sub_u32 s{S_T+1}, 4194304, s{S_T}')
    srd(a, SRD_WQ, f's{S_T+1}')
    a(f's_lshl_b32 s{S_WO}, s{S_X}, 2')
    a(f's_add_u32 s{S_WO}, s{S_WO}, s{S_W}')
    a(f's_lshl_b32 s{S_WO}, s{S_WO}, 17')
    a(f's_lshl_b32 s{S_WL}, s{S_W}, 13')
    a(f'v_lshrrev_b32 v{AR.WD}, 3, v{L}')
    a(f'v_lshlrev_b32 v{AR.WD}, 10, v{AR.WD}')
    a(f'v_and_b32 v{t+4}, 7, v{L}')
    a(f'v_lshl_add_u32 v{AR.WD}, v{t+4}, 4, v{AR.WD}')
    a(f'v_lshrrev_b32 v{t+4}, 5, v{L}')
    a(f'v_lshlrev_b32 v{t+4}, 2, v{t+4}')
    a(f'v_bfe_u32 v{t+5}, v{L}, 2, 2')
    a(f'v_add_u32 v{t+4}, v{t+4}, v{t+5}')
    a(f'v_lshlrev_b32 v{t+4}, 7, v{t+4}')
    a(f'v_bfe_u32 v{t+5}, v{L}, 4, 1')
    a(f'v_lshl_add_u32 v{t+4}, v{t+5}, 5, v{t+4}')
    a(f'v_and_b32 v{t+5}, 3, v{L}')
    a(f'v_lshl_add_u32 v{t+4}, v{t+5}, 3, v{t+4}')
    a(f's_and_b32 s{S_T}, s{S_W}, 1')
    a(f's_lshl_b32 s{S_T}, s{S_T}, 6')
    a(f's_add_u32 s{S_T+1}, s{S_WL}, s{S_T}')
    a(f'v_add_u32 v{AR.WR0}, s{S_T+1}, v{t+4}')
    a(f's_xor_b32 s{S_T+1}, s{S_T+1}, 64')
    a(f'v_add_u32 v{AR.WR1}, s{S_T+1}, v{t+4}')
    a(f's_mov_b32 s{S_CNT}, 0')
    ts(a, 2)
    a(f's_setprio {P["prio_B" if isB else "prio_A"]}')
    a.label(role + '_loop')
    def adv():
        a(f's_add_u32 s{S_ROT}, s{S_ROT}, 8192')
        a(f's_and_b32 s{S_ROT}, s{S_ROT}, 0x1ffff')
        a(f's_add_u32 s{S_SO}, s{S_WB}, s{S_ROT}')
    if bmode == 0:
        IT = P.get('tsit', 10)
        ts_it(a, 48, IT)
        a('s_waitcnt vmcnt(8)')
        ts_it(a, 49, IT)
        read_k(a)
        adv()
        a('s_waitcnt lgkmcnt(0)')
        ts_it(a, 50, IT)
        dma_tile8k(a, SRD_K, S_SO, S_KL, S_U, POLK, kp)
        ts_it(a, 51, IT)
        mfma_s(a)
        a('s_waitcnt vmcnt(8)')
        ts_it(a, 52, IT)
        call(a, 'SUB_SOFT')
        ts_it(a, 53, IT)
        dma_tile8k(a, SRD_V, S_SO, S_VL, S_U, POLV, vp)
        ts_it(a, 54, IT)
        mfma_pv(a)
        ts_it(a, 55, IT)
    else:
        IT = P.get('tsit', 10)
        ts_it(a, 48, IT)
        a('s_waitcnt vmcnt(0)')
        ts_it(a, 49, IT)
        dma_tile8k(a, SRD_V, S_SO, S_VL, S_U, POLV, vp)
        ts_it(a, 50, IT)
        read_k(a)
        adv()
        a('s_waitcnt lgkmcnt(0)')
        mfma_s(a)
        call(a, 'SUB_SOFT2')
        ts_it(a, 51, IT)
        a('s_waitcnt vmcnt(0)')
        ts_it(a, 52, IT)
        Lk = a.newlabel('L_knext'); Lk2 = a.newlabel('L_kdone')
        a(f's_cmp_eq_u32 s{S_CNT}, 15')
        a(f's_cbranch_scc0 {Lk}')
        wo_dma(a, P, 0)
        a(f's_branch {Lk2}')
        a.label(Lk)
        dma_tile8k(a, SRD_K, S_SO, S_KL, S_U, POLK, kp)
        a.label(Lk2)
        ts_it(a, 53, IT)
        read_v(a)
        a('s_waitcnt lgkmcnt(0)')
        mfma_pv(a)
        ts_it(a, 54, IT)
        ts_it(a, 55, IT)
    ts(a, 32, S_CNT)
    a(f's_add_u32 s{S_CNT}, s{S_CNT}, 1')
    a(f's_cmp_lt_u32 s{S_CNT}, 16')
    a(f's_cbranch_scc1 {role}_loop')
    a(f's_setprio {P["prio_start"] if isB else P["prio_W"]}')
    ts(a, 3)
    epi_b(a, role, P)
    if P.get('sym'):
        a(f's_mov_b32 s{S_PROB}, {1 if isB else 0}')
        if isB: a('s_branch L_WORK')
        else:
            a.label('L_WORK')
            worky(a, P)
            a('s_branch L_end')
        return
    if not isB and P.get('astop') != 1: worky(a, P)
    a('s_branch L_end')

YWF = 128; YOF = 0; YAC = 64; YT = 216
def worky(a, P):
    T = YT; L = AR.LANE
    vD = T; vR0 = T+1; vR1 = T+2; vF = T+3; vL16 = T+4; vP = T+5; vOut = T+6; vY = T+7; vZ = T+8; vOne = T+9; t = T+10
    S_MT = S_TB; S_NT = S_TN
    a(f's_and_b32 s{S_MT}, s{S_R}, 3')
    a(f's_lshr_b32 s{S_NT}, s{S_R}, 2')
    a(f's_lshl_b32 s{S_WKL}, s{S_W}, 13')
    a(f'v_lshlrev_b32 v{vL16}, 4, v{L}')
    a(f's_lshl_b32 s{S_H}, s{S_X}, 2')
    a(f's_add_u32 s{S_H}, s{S_H}, s{S_W}')
    a(f'v_lshrrev_b32 v{vP}, 5, v{L}')
    a(f'v_lshlrev_b32 v{vP}, 12, v{vP}')
    a(f'v_and_b32 v{t}, 31, v{L}')
    a(f'v_lshl_add_u32 v{vP}, v{t}, 4, v{vP}')
    a(f's_lshl_b32 s{S_T}, s{S_X}, 9')
    a(f'v_add_u32 v{vP}, s{S_T}, v{vP}')
    a(f'v_mov_b32 v{vOne}, 1')
    if not P.get('sym'):
        a(f's_mov_b32 s{S_PROB}, 0')
    a.label('WK_loop')
    a(f's_lshl_b32 s{S_T}, s{S_PROB}, 3')
    a(f's_lshl_b32 s{S_T+1}, s{S_MT}, 1')
    a(f's_add_u32 s{S_T}, s{S_T}, s{S_T+1}')
    a(f's_lshl_b32 s{S_T}, s{S_T}, 5')
    a(f's_add_u32 s{S_T}, s{S_T}, s{S_H}')
    a(f's_lshl_b32 s{S_T+1}, s{S_T}, 13')
    a(f's_add_u32 s{S_T+1}, s{S_T+1}, {WS_O}')
    a(f's_add_u32 s{SRD_X}, s{P_WS}, s{S_T+1}')
    a(f's_addc_u32 s{SRD_X+1}, s{P_WS+1}, 0')
    srd(a, SRD_X, 262144 + 8192)
    a(f's_lshl_b32 s{S_T}, s{S_T}, 4')
    a(f'v_bfe_u32 v{t}, v{L}, 2, 1')
    a(f'v_lshlrev_b32 v{t}, 9, v{t}')
    a(f'v_and_b32 v{t+1}, 3, v{L}')
    a(f'v_lshl_add_u32 v{t}, v{t+1}, 2, v{t}')
    a(f'v_add_u32 v{vF}, s{S_T}, v{t}')
    a(f's_lshl_b32 s{S_T}, s{S_PROB}, 5')
    a(f's_lshl_b32 s{S_T+1}, s{S_MT}, 3')
    a(f's_add_u32 s{S_T}, s{S_T}, s{S_T+1}')
    a(f's_add_u32 s{S_T}, s{S_T}, s{S_NT}')
    a(f's_lshl_b32 s{S_T}, s{S_T}, 2')
    a(f's_add_u32 s{S_T}, s{S_T}, s{S_W}')
    a(f's_lshl_b32 s{S_T+1}, s{S_T}, 15')
    a(f's_add_u32 s{S_T+1}, s{S_T+1}, {WS_Y}')
    a(f's_add_u32 s{SRD_K}, s{P_WS}, s{S_T+1}')
    a(f's_addc_u32 s{SRD_K+1}, s{P_WS+1}, 0')
    srd(a, SRD_K, 32768)
    a(f's_lshl_b32 s{S_T}, s{S_T}, 5')
    a(f's_add_u32 s{S_T}, s{S_T}, {FL_Y}')
    a(f'v_and_b32 v{t}, 7, v{L}')
    a(f'v_lshlrev_b32 v{t}, 2, v{t}')
    a(f'v_add_u32 v{vY}, s{S_T}, v{t}')
    a(f's_lshl_b32 s{S_T+1}, s{S_X}, 2')
    a(f's_add_u32 s{S_T}, s{S_T}, s{S_T+1}')
    a(f'v_mov_b32 v{vZ}, s{S_T}')
    a(f's_lshl_b32 s{S_T}, s{S_MT}, 1')
    a(f's_lshr_b32 s{S_T+1}, s{S_W}, 1')
    a(f's_add_u32 s{S_T}, s{S_T}, s{S_T+1}')
    a(f's_lshl_b32 s{S_T}, s{S_T}, 16')
    a(f's_lshl_b32 s{S_T+1}, s{S_PROB}, 10')
    a(f's_add_u32 s{S_T}, s{S_T}, s{S_T+1}')
    a(f's_lshl_b32 s{S_T+1}, s{S_NT}, 7')
    a(f's_add_u32 s{S_T}, s{S_T}, s{S_T+1}')
    a(f's_and_b32 s{S_T+1}, s{S_W}, 1')
    a(f's_lshl_b32 s{S_T+1}, s{S_T+1}, 6')
    a(f's_add_u32 s{S_T}, s{S_T}, s{S_T+1}')
    a(f's_lshl_b32 s{S_T+1}, s{S_X}, 3')
    a(f's_add_u32 s{S_T}, s{S_T}, s{S_T+1}')
    a(f'v_and_b32 v{t}, 31, v{L}')
    a(f'v_lshlrev_b32 v{t}, 11, v{t}')
    a(f'v_add_u32 v{vOut}, s{S_T}, v{t}')
    a(f's_lshr_b32 s{S_T}, s{S_W}, 1')
    a(f's_lshl_b32 s{S_A}, s{S_T}, 18')
    a(f's_add_u32 s{S_A+1}, s{S_A}, 4096')
    a(f's_xor_b32 s{S_A+2}, s{S_A}, 262144')
    a(f's_add_u32 s{S_A+3}, s{S_A+2}, 4096')
    ts(a, 8)
    poll(a, vF, P_WS, t, sleep=P['sleep'])
    ts(a, 9)
    for beta in range(2):
        for i in range(8):
            a(f'buffer_load_dwordx4 {vr(YOF + (beta*8+i)*4, 4)}, v{vL16}, {sr(SRD_X,4)}, s{S_A + beta*2 + (i>>2)} offen offset:{(i&3)*1024} sc1')
    for Tt in range(4):
        for u in range(2):
            for nu in range(2):
                for v in range(2):
                    r = YWF + ((Tt*2+u)*2 + nu)*4 + 2*v
                    a(f'ds_read_b64_tr_b16 {vr(r, 2)}, v{AR.WR0 + nu} offset:{(Tt>>1)*32768 + (32*(Tt&1) + 16*u + 8*v) * 128}')
    a('s_waitcnt lgkmcnt(0)')
    for beta in range(2):
        a(f's_waitcnt vmcnt({8 * (1 - beta)})')
        for i in range(8):
            for nu in range(2):
                acc = vr(YAC + (beta*2+nu)*16, 16)
                c = '0' if i == 0 else acc
                a(f'v_mfma_f32_32x32x16_bf16 {acc}, {vr(YWF + (i*2+nu)*4, 4)}, {vr(YOF + (beta*8+i)*4, 4)}, {c}')
    ts(a, 10)
    yoffs = [0, 4096, 32768]
    a(f'v_add_u32 v{t}, s{S_WKL}, v{vL16}')
    for k in range(1, 4):
        for j in range(4):
            a(f'ds_write_b128 v{t}, {vr(YAC + 16*k + 4*j, 4)} offset:{yoffs[k-1] + j*1024}')
    a('s_waitcnt lgkmcnt(0)')
    a('s_barrier')
    for k in range(1, 4):
        a(f's_xor_b32 s{S_T}, s{S_W}, {k}')
        a(f's_lshl_b32 s{S_T}, s{S_T}, 13')
        a(f'v_add_u32 v{t+k}, s{S_T}, v{vL16}')
        for j in range(4):
            a(f'ds_read_b128 {vr(YOF + 16*(k-1) + 4*j, 4)}, v{t+k} offset:{yoffs[k-1] + j*1024}')
    a('s_waitcnt lgkmcnt(0)')
    for i in range(16):
        a(f'v_add_f32 v{YAC+i}, v{YAC+i}, v{YOF+i}')
        a(f'v_add_f32 v{YOF+16+i}, v{YOF+16+i}, v{YOF+32+i}')
    for i in range(16):
        a(f'v_add_f32 v{YAC+i}, v{YAC+i}, v{YOF+16+i}')
    a(f's_lshl_b32 s{S_U}, s{S_X}, 12')
    for j in range(4):
        a(f'buffer_store_dwordx4 {vr(YAC + 4*j, 4)}, v{vL16}, {sr(SRD_K,4)}, s{S_U} offen offset:{j*1024} sc1')
    a('s_waitcnt vmcnt(0)')
    store_flag(a, P_WS, vZ, vOne)
    ts(a, 11)
    poll(a, vY, P_WS, t, sleep=P['sleep'])
    ts(a, 12)
    for i in range(4):
        a(f's_mov_b32 s{S_U + i}, {i*8192}')
        a(f'buffer_load_dwordx4 {vr(YOF + 4*i, 4)}, v{vP}, {sr(SRD_K,4)}, s{S_U + i} offen sc1')
    a('s_waitcnt vmcnt(0)')
    for i in range(4):
        a(f'v_add_f32 v{YOF+i}, v{YOF+i}, v{YOF+4+i}')
        a(f'v_add_f32 v{YOF+8+i}, v{YOF+8+i}, v{YOF+12+i}')
    for i in range(4):
        a(f'v_add_f32 v{YOF+i}, v{YOF+i}, v{YOF+8+i}')
    for i in range(4):
        a(f'v_mov_b32 v{YOF+4+i}, v{YOF+i}')
    for i in range(4):
        a(f'v_permlane32_swap_b32 v{YOF+i}, v{YOF+4+i}')
    for i in range(4):
        a(f'v_add_f32 v{YOF+i}, v{YOF+i}, v{YOF+4+i}')
    a(f'v_cvt_pk_bf16_f32 v{YOF+16}, v{YOF}, v{YOF+1}')
    a(f'v_cvt_pk_bf16_f32 v{YOF+17}, v{YOF+2}, v{YOF+3}')
    a('s_mov_b32 exec_hi, 0')
    a(f'global_store_dwordx2 v{vOut}, {vr(YOF+16,2)}, {sr(P_OUT,2)}')
    a('s_mov_b32 exec_hi, -1')
    ts(a, 13)
    if TS_ON:
        L2 = a.newlabel('L_cp')
        a(f's_cmp_eq_u32 s{S_PROB}, 0')
        a(f's_cbranch_scc0 {L2}')
        for i in range(6):
            a(f'v_readlane_b32 s94, v249, {8+i}')
            a('s_nop 4')
            a(f'v_writelane_b32 v249, s94, {24+i}')
        a.label(L2)
    if not P.get('sym'):
        a(f's_add_u32 s{S_PROB}, s{S_PROB}, 1')
        a(f's_cmp_lt_u32 s{S_PROB}, {1 if P.get("astop") == 3 else 2}')
        a('s_cbranch_scc1 WK_loop')

def gen_fused(P):
    a = Asm()
    a('s_cmp_ge_u32 s2, 512')
    a('s_cbranch_scc1 L_exit')
    a('s_load_dwordx16 s[16:31], s[0:1], 0')
    a('s_load_dwordx8 s[32:39], s[0:1], 64')
    a('s_load_dwordx2 s[40:41], s[0:1], 96')
    a('v_lshrrev_b32 v1, 6, v0')
    a(f'v_and_b32 v{AR.LANE}, 63, v0')
    a(f'v_readfirstlane_b32 s{S_W}, v1')
    a(f's_and_b32 s{S_X}, s2, 7')
    a(f's_lshr_b32 s{S_R}, s2, 3')
    a(f's_and_b32 s{S_R}, s{S_R}, 31')
    a(f's_mov_b32 s{S_INIT}, 0')
    a(f's_setprio {P["prio_start"]}')
    a('s_waitcnt lgkmcnt(0)')
    if P.get('wsb'):
        a(f's_add_u32 s{P_WS}, s{P_WS}, {P["wsb"] << 20}')
        a(f's_addc_u32 s{P_WS+1}, s{P_WS+1}, 0')
    if TS_ON:
        a('v_mov_b32 v249, 0')
        ts(a, 0)
    a('s_cmp_ge_u32 s2, 256')
    a('s_cbranch_scc1 ROLE_A')
    gen_unit(a, P, 'B')
    sub_reads(a)
    if P['bmode'] == 0 or P['bmodeA'] == 0: sub_soft(a)
    if P['bmode'] != 0 or P['bmodeA'] != 0: sub_soft2(a)
    gen_unit(a, P, 'A')
    a.label('L_end')
    if TS_ON:
        ts(a, 16)
        a(f's_lshl_b32 s8, s2, 2')
        a(f's_add_u32 s8, s8, s{S_W}')
        a('s_lshl_b32 s8, s8, 8')
        a(f's_add_u32 s8, s8, {WS_TS}')
        if P.get('wsb'):
            a(f's_sub_u32 s{P_WS}, s{P_WS}, {P["wsb"] << 20}')
            a(f's_subb_u32 s{P_WS+1}, s{P_WS+1}, 0')
        a(f'v_lshlrev_b32 v248, 2, v{AR.LANE}')
        a('v_add_u32 v248, s8, v248')
        a(f'global_store_dword v248, v249, {sr(P_WS,2)}')
    a.label('L_exit')
    a('s_endpgm')
    return finish(a)

DEF = dict(polkv='nt', polw='nt', polx='nt', polwo='nt', ring=4, sleep=2, prio_start=3, prio_A0=2, prio_A=2, prio_B=0, prio_W=3,
           kpos=3, kposA=3, bmode=1, bmodeA=1, wo0=4, sym=1)

def build(out, **kw):
    global TS_ON, NOINIT, SLEEP0
    P = dict(DEF); P.update(kw)
    NOINIT = bool(P.get('noA'))
    SLEEP0 = P.get('sleep0', 1)
    TS_ON = P.get('ts', False)
    kn = NAME + '_kernel'
    t = file_text([(None, 512, 256, 81920)], [(kn, gen_fused(P), 256, 100, None)])
    open(out, 'w').write(t)

if __name__ == '__main__':
    import sys
    build('m0.s')
    build('m0_ts.s', ts=True)
```

```python
from fused7 import build
build('p_nt.s')
build('p_plain.s', polkv='')
build('p_sc1.s', polkv='sc1')
build('p_sc01.s', polkv='sc0 sc1')
build('p_sc1nt.s', polkv='sc1 nt')
build('p_sc01nt.s', polkv='sc0 sc1 nt')
build('p_Bplain.s', polKB='', polVB='')
build('p_VBplain.s', polVB='')
build('p_Aplain.s', polKA='', polVA='')
build('p_KBplain.s', polKB='')
```

```python
from fused7 import build
A = dict(polKA='', polVA='')
build('r_A.s', **A)
build('r_VBA.s', polVB='', **A)
build('r_KBA.s', polKB='', **A)
build('r_VBAw.s', polVB='', polw='', polx='', polwo='', **A)
build('r_Aw.s', polw='', polx='', polwo='', **A)
build('r_VBAsc1.s', polVB='sc1', polKA='sc1', polVA='sc1', polw='sc1', polx='sc1', polwo='sc1')
```

```python
import sys, math, struct
from asmgen import *
from hazard import fix_hazards

CSC = (128 ** -0.5) * math.log2(math.e)
def f2u(x): return struct.unpack('<I', struct.pack('<f', x))[0]
def vr(b, n): return f'v[{b}:{b+n-1}]'
def sr(b, n): return f's[{b}:{b+n-1}]'

FL_O = 0
FL_P = 8192
FL_Q = 12288
FL_Y = 16384
WS_Q = 1 << 20
WS_O = 4 << 20
WS_X = 8 << 20
WS_Y = 24 << 20
WS_TS = 32 << 20

S_W = 3; S_X = 4; S_R = 5; S_B = 6; S_H = 7
S_T = 8
P_AX, P_AK, P_AV, P_AWQ, P_AWO, P_BX, P_BK, P_BV = 16, 18, 20, 22, 24, 26, 28, 30
P_BWQ, P_BWO, P_OUT, P_DBG = 32, 34, 36, 38
P_WS = 40
S_WKL = 42; S_WKB = 43
SRD_X = 44; SRD_WQ = 48; SRD_K = 52; SRD_V = 56
S_C = 60; S_CNT = 61; S_KL = 62; S_VL = 63
S_ROT = 64; S_WB = 65; S_SO = 66; S_STEP = 67
S_P = 68
S_A = 70
S_U = 78
S_TB = 84; S_TN = 85
S_G = 86
S_JQ = 87
S_SPIN = 90; S_INIT = 91; S_PROB = 93
LK1 = 96
OOB = 0x7f000000

class AR:
    Q = 0; O = 32; K = 96; V = 96; WO = 128; S = 192; P = 208
    T = 216
    M = 232; L = 233
    AK = 234; AV = 242
    WD = 246; WR0 = 247; WR1 = 248
    DK = 250; DV = 254
    LANE = 255
S_WO = 88
S_WL = 89
STG = 65536
QR, QX, QAT, QACC, QT = 0, 128, 160, 176, 240
WF = 0; OF = 128; ACC = 224; WT = 232

SPIN_LIMIT = 400000
TS_ON = False
NOINIT = False
SLEEP0 = 1

def finish(a):
    lines, n = fix_hazards(a.lines)
    return '\n'.join(lines) + '\n'
def srd(a, d, size):
    a(f's_and_b32 s{d+1}, s{d+1}, 0xffff')
    a(f's_mov_b32 s{d+2}, {size}')
    a(f's_mov_b32 s{d+3}, 0x20000')
def poll(a, vaddr, sbase, vtmp, sleep=None):
    if sleep is None: sleep = SLEEP0
    L = a.newlabel('L_poll'); D = a.newlabel('L_polld')
    a(f's_mov_b32 s{S_SPIN}, {SPIN_LIMIT}')
    a.label(L)
    a(f'global_load_dword v{vtmp}, v{vaddr}, {sr(sbase,2)} sc1')
    a('s_waitcnt vmcnt(0)')
    a(f'v_cmp_eq_u32 vcc, 1, v{vtmp}')
    a('s_cmp_eq_u64 vcc, -1')
    a(f's_cbranch_scc1 {D}')
    if sleep: a(f's_sleep {sleep}')
    a(f's_sub_u32 s{S_SPIN}, s{S_SPIN}, 1')
    a(f's_cmp_lg_u32 s{S_SPIN}, 0')
    a(f's_cbranch_scc1 {L}')
    a.label(D)
def store_flag(a, sbase, vz, vone, n=1):
    a('s_mov_b64 exec, 1')
    op = {1: 'dword', 2: 'dwordx2', 4: 'dwordx4'}[n]
    src = f'v{vone}' if n == 1 else vr(vone, n)
    a(f'global_store_{op} v{vz}, {src}, {sr(sbase,2)} sc1')
    a('s_mov_b64 exec, -1')
def call(a, name, lk=LK1): a(f's_call_b64 {sr(lk,2)}, {name}')
def ret(a, lk=LK1): a(f's_setpc_b64 {sr(lk,2)}')
def ts(a, slot, sreg=None):
    if not TS_ON: return
    a('s_memrealtime s[94:95]')
    a('s_waitcnt lgkmcnt(0)')
    if sreg is None:
        a(f'v_writelane_b32 v249, s94, {slot}')
    else:
        a(f's_add_u32 m0, s{sreg}, {slot}')
        a('s_nop 4')
        a(f'v_writelane_b32 v249, s94, m0')
def ts_it(a, slot, it):
    if not TS_ON: return
    a('s_memrealtime s[94:95]')
    a(f's_cmp_eq_u32 s{S_CNT}, {it}')
    a(f's_cselect_b32 m0, {slot}, 63')
    a('s_waitcnt lgkmcnt(0)')
    a('s_nop 4')
    a(f'v_writelane_b32 v249, s94, m0')
def wait_init(a, vz, vt):
    a(f'v_mov_b32 v{vz}, 0')
    poll(a, vz, P_DBG, vt)

def qb_loads(a, P, pos, mid=None):
    pol = P['polw']
    vL = AR.LANE; X = QX; R = QR; vt = QT; st = S_T; sW = S_W
    t0, t1, t2, t3 = vt, vt+1, vt+2, vt+3
    a(f'v_and_b32 v{t0}, 3, v{vL}')
    a(f'v_add_u32 v{t0}, s{sW}, v{t0}')
    a(f'v_and_b32 v{t0}, 3, v{t0}')
    a(f'v_and_b32 v{t1}, 12, v{vL}')
    a(f'v_or_b32 v{t0}, v{t0}, v{t1}')
    a(f'v_lshlrev_b32 v{t0}, 4, v{t0}')
    a(f'v_lshrrev_b32 v{t1}, 4, v{vL}')
    a(f'v_lshlrev_b32 v{t2}, 16, v{t1}')
    a(f'v_add_u32 v{t0}, v{t0}, v{t2}')
    a(f'v_and_b32 v{t2}, 15, v{vL}')
    a(f'v_lshlrev_b32 v{t2}, 10, v{t2}')
    a(f'v_lshlrev_b32 v{t1}, 4, v{t1}')
    a(f'v_add_u32 v{t2}, v{t2}, v{t1}')
    a(f'v_add_u32 v{t3}, 16384, v{t2}')
    xfirst = P.get('xfirst', 1)
    if xfirst:
        for s in range(4):
            a(f's_add_u32 s{st}, s{S_STEP}, {s}')
            a(f's_and_b32 s{st}, s{st}, 3')
            a(f's_lshl_b32 s{st+1}, s{sW}, 2')
            a(f's_add_u32 s{st}, s{st}, s{st+1}')
            a(f's_lshl_b32 s{st}, s{st}, 6')
            a(f'buffer_load_dwordx4 {vr(X + (s*2+0)*4, 4)}, v{t2}, {sr(SRD_X,4)}, s{st} offen {P["polx"]}')
            a(f'buffer_load_dwordx4 {vr(X + (s*2+1)*4, 4)}, v{t3}, {sr(SRD_X,4)}, s{st} offen {P["polx"]}')
    for s in range(4):
        a(f's_add_u32 s{st}, s{S_STEP}, {s}')
        a(f's_and_b32 s{st}, s{st}, 3')
        a(f's_lshl_b32 s{st+1}, s{sW}, 2')
        a(f's_add_u32 s{st}, s{st}, s{st+1}')
        a(f's_lshl_b32 s{st+1}, s{st}, 18')
        a(f's_lshl_b32 s{st}, s{st}, 6')
        for j in range(8):
            if j == 0: so = st + 1
            else:
                so = st + 2 + (j & 1)
                a(f's_add_u32 s{so}, s{st+1}, {j * 8192}')
            a(f'buffer_load_dwordx4 {vr(R + s*32 + j*4, 4)}, v{t0}, {sr(SRD_WQ,4)}, s{so} offen {pol}')
        if not xfirst:
            a(f'buffer_load_dwordx4 {vr(X + (s*2+0)*4, 4)}, v{t2}, {sr(SRD_X,4)}, s{st} offen {P["polx"]}')
            a(f'buffer_load_dwordx4 {vr(X + (s*2+1)*4, 4)}, v{t3}, {sr(SRD_X,4)}, s{st} offen {P["polx"]}')
        if mid and s == pos: mid()

def qp_step(a, s, first):
    R, X, AT, A_ = QR, QX, QAT, QACC
    st = S_U
    for d in range(4):
        buf = AT + (d % 2) * 8
        for t in range(4):
            r0 = R + s*32 + (2*t)*4 + d
            r1 = R + s*32 + (2*t+1)*4 + d
            a(f'v_perm_b32 v{buf + t}, v{r1}, v{r0}, s{st}')
            a(f'v_perm_b32 v{buf + 4 + t}, v{r1}, v{r0}, s{st+1}')
        for eo in range(2):
            e = 2*d + eo
            for qt in range(2):
                acc = A_ + (e*2 + qt) * 4
                c = '0' if first else vr(acc, 4)
                a(f'v_mfma_f32_16x16x32_bf16 {vr(acc,4)}, {vr(buf + 4*eo, 4)}, {vr(X + (s*2+qt)*4, 4)}, {c}')

def qb_compute(a, P, pos, kl):
    a(f's_mov_b32 s{S_U}, 0x05040100')
    a(f's_mov_b32 s{S_U+1}, 0x07060302')
    for s in range(4):
        later = (3 - s) * (8 if P.get('xfirst', 1) else 10) + (kl if s <= pos else 0)
        a(f's_waitcnt vmcnt({later})')
        if s == 0: ts(a, 19)
        qp_step(a, s, s == 0)
    ts(a, 20)
    inbox_base = 32768
    sW = S_W; vL = AR.LANE; va = QT + 4; st = S_T + 4; A_ = QACC
    for k in range(1, 4):
        a(f's_add_u32 s{st}, s{sW}, {k}')
        a(f's_and_b32 s{st}, s{st}, 3')
        a(f's_mul_i32 s{st}, s{st}, 12288')
        a(f's_add_u32 s{st}, s{st}, {inbox_base + (k-1)*4096}')
        a(f'v_lshlrev_b32 v{va}, 4, v{vL}')
        a(f'v_add_u32 v{va}, s{st}, v{va}')
        TT = 16 * (k - 1)
        for qt in range(2):
            for e in range(8):
                a(f'v_mov_b32 v{TT + qt*8 + e}, v{A_ + (e*2+qt)*4 + k}')
        for j in range(4):
            a(f'ds_write_b128 v{va}, {vr(TT + 4*j, 4)} offset:{j*1024}')
    a('s_waitcnt lgkmcnt(0)')
    a('s_barrier')
    T = 48
    a(f's_mul_i32 s{st}, s{sW}, 12288')
    a(f's_add_u32 s{st}, s{st}, {inbox_base}')
    a(f'v_lshlrev_b32 v{va}, 4, v{vL}')
    a(f'v_add_u32 v{va}, s{st}, v{va}')
    for k in range(3):
        for j in range(4):
            a(f'ds_read_b128 {vr(T + 16*k + 4*j, 4)}, v{va} offset:{k*4096 + j*1024}')
    for k in range(3):
        a(f's_waitcnt lgkmcnt({8 - 4*k})')
        for qt in range(2):
            for e in range(8):
                r = A_ + (e*2+qt)*4
                a(f'v_add_f32 v{r}, v{r}, v{T + 16*k + qt*8 + e}')
    OUT = 16
    for qt in range(2):
        for p in range(4):
            a(f'v_cvt_pk_bf16_f32 v{OUT + qt*4 + p}, v{A_ + ((2*p)*2+qt)*4}, v{A_ + ((2*p+1)*2+qt)*4}')

def setup_dma_B(a):
    L = AR.LANE; t = QT + 4
    a(f'v_lshrrev_b32 v{t}, 4, v{L}')
    a(f'v_and_b32 v{t+1}, 15, v{L}')
    for p in range(4):
        a(f'v_add_u32 v{t+2}, {4*p}, v{t}')
        a(f'v_xor_b32 v{t+2}, v{t+2}, v{t+1}')
        a(f'v_lshlrev_b32 v{t+2}, 4, v{t+2}')
        a(f'v_lshl_add_u32 v{AR.DK+p}, v{t}, 8, v{t+2}')
    a(f'v_lshlrev_b32 v{t+2}, 2, v{t}')
    a(f'v_xor_b32 v{t+2}, v{t+2}, v{t+1}')
    a(f'v_lshlrev_b32 v{t+2}, 4, v{t+2}')
    a(f'v_lshl_add_u32 v{AR.DV}, v{t}, 8, v{t+2}')

def setup_dma_A(a):
    L = AR.LANE; t = QT + 4; st = S_T
    a(f'v_lshrrev_b32 v{t}, 4, v{L}')
    a(f'v_and_b32 v{t+1}, 15, v{L}')
    a(f's_lshl_b32 s{st}, s{S_W}, 3')
    for p in range(2):
        a(f's_add_u32 s{st+1}, s{st}, {4*p}')
        a(f's_and_b32 s{st+1}, s{st+1}, 15')
        a(f'v_add_u32 v{t+2}, s{st+1}, v{t}')
        a(f'v_xor_b32 v{t+2}, v{t+2}, v{t+1}')
        a(f'v_lshlrev_b32 v{t+2}, 4, v{t+2}')
        a(f'v_lshl_add_u32 v{AR.DK+p}, v{t}, 8, v{t+2}')
    a(f'v_lshlrev_b32 v{t+2}, 2, v{t}')
    a(f'v_xor_b32 v{t+2}, v{t+2}, v{t+1}')
    a(f'v_lshlrev_b32 v{t+2}, 4, v{t+2}')
    a(f'v_lshl_add_u32 v{AR.DV}, v{t}, 8, v{t+2}')

def sub_reads(a):
    s_kslot, s_vslot, s_rot = S_U+1, S_U+2, S_U+3
    L = AR.LANE; t = AR.T; st = S_T
    a.label('SUB_READS')
    a(f'v_and_b32 v{t}, 31, v{L}')
    a(f'v_lshrrev_b32 v{t+1}, 5, v{L}')
    a(f'v_and_b32 v{t+2}, 15, v{L}')
    a(f'v_lshlrev_b32 v{t+3}, 3, v{t+1}')
    a(f'v_xor_b32 v{t+2}, v{t+2}, v{t+3}')
    a(f'v_lshlrev_b32 v{t+2}, 4, v{t+2}')
    a(f'v_lshl_add_u32 v{t+2}, v{t}, 8, v{t+2}')
    for s in range(8):
        a(f'v_xor_b32 v{AR.AK+s}, {16*s}, v{t+2}')
        a(f'v_add_u32 v{AR.AK+s}, s{s_kslot}, v{AR.AK+s}')
    a(f'v_and_b32 v{t}, 15, v{L}')
    a(f'v_lshrrev_b32 v{t+2}, 2, v{t}')
    a(f'v_and_b32 v{t+3}, 3, v{t}')
    a(f'v_lshl_add_u32 v{t+4}, v{t+1}, 2, v{t+2}')
    a(f'v_lshlrev_b32 v{t+4}, 8, v{t+4}')
    a(f'v_bfe_u32 v{t+5}, v{L}, 4, 1')
    a(f'v_lshlrev_b32 v{t+5}, 1, v{t+5}')
    a(f'v_lshrrev_b32 v{t+6}, 1, v{t+3}')
    a(f'v_add_u32 v{t+5}, v{t+5}, v{t+6}')
    a(f'v_lshlrev_b32 v{t+6}, 2, v{t+2}')
    a(f'v_xor_b32 v{t+5}, v{t+5}, v{t+6}')
    a(f'v_lshl_add_u32 v{t+4}, v{t+5}, 4, v{t+4}')
    a(f'v_and_b32 v{t+3}, 1, v{t+3}')
    a(f'v_lshl_add_u32 v{t+4}, v{t+3}, 3, v{t+4}')
    for tau in range(4):
        a(f's_add_u32 s{st}, s{s_rot}, {tau}')
        a(f's_and_b32 s{st}, s{st}, 3')
        a(f's_lshl_b32 s{st}, s{st}, 6')
        a(f'v_xor_b32 v{AR.AV+tau}, s{st}, v{t+4}')
        a(f'v_add_u32 v{AR.AV+tau}, s{s_vslot}, v{AR.AV+tau}')
    for i in range(64):
        a(f'v_mov_b32 v{AR.O+i}, 0')
    a(f'v_mov_b32 v{AR.M}, 0xff800000')
    a(f'v_mov_b32 v{AR.L}, 0')
    a(f's_mov_b32 s{S_C}, {f2u(CSC)}')
    ret(a)

def read_k(a):
    for s in range(8):
        a(f'ds_read_b128 {vr(AR.K + 4*s, 4)}, v{AR.AK+s}')
def read_v(a):
    for ks in range(2):
        for tau in range(4):
            for u in range(2):
                r = AR.V + (tau*2 + ks)*4 + u*2
                a(f'ds_read_b64_tr_b16 {vr(r, 2)}, v{AR.AV+tau} offset:{4096*ks + 2048*u}')
def mfma_s(a):
    for s in range(8):
        c = '0' if s == 0 else vr(AR.S, 16)
        a(f'v_mfma_f32_32x32x16_bf16 {vr(AR.S,16)}, {vr(AR.K+4*s,4)}, {vr(AR.Q+4*s,4)}, {c}')
def softmax(a):
    sC = S_C; st = S_P
    S = AR.S; t = AR.T; M = AR.M; Lr = AR.L
    a(f'v_max3_f32 v{t}, v{S}, v{S+1}, v{S+2}')
    a(f'v_max3_f32 v{t+1}, v{S+3}, v{S+4}, v{S+5}')
    a(f'v_max3_f32 v{t}, v{t}, v{S+6}, v{S+7}')
    a(f'v_max3_f32 v{t+1}, v{t+1}, v{S+8}, v{S+9}')
    a(f'v_max3_f32 v{t}, v{t}, v{S+10}, v{S+11}')
    a(f'v_max3_f32 v{t+1}, v{t+1}, v{S+12}, v{S+13}')
    a(f'v_max3_f32 v{t}, v{t}, v{S+14}, v{S+15}')
    a(f'v_max_f32 v{t}, v{t}, v{t+1}')
    a(f'v_mov_b32 v{t+1}, v{t}')
    a(f'v_permlane32_swap_b32 v{t}, v{t+1}')
    a(f'v_max3_f32 v{t}, v{t}, v{t+1}, v{M}')
    a(f'v_cmp_gt_f32 {sr(st,2)}, v{t}, v{M}')
    skip = a.newlabel('L_skip')
    a(f's_cmp_eq_u64 {sr(st,2)}, 0')
    a(f's_cbranch_scc1 {skip}')
    a(f'v_sub_f32 v{t+1}, v{M}, v{t}')
    a(f'v_mul_f32 v{t+1}, s{sC}, v{t+1}')
    a(f'v_exp_f32 v{t+1}, v{t+1}')
    a(f'v_mov_b32 v{M}, v{t}')
    a(f'v_mul_f32 v{Lr}, v{Lr}, v{t+1}')
    for i in range(64):
        a(f'v_mul_f32 v{AR.O+i}, v{AR.O+i}, v{t+1}')
    a.label(skip)
    a(f'v_mul_f32 v{t+1}, s{sC}, v{M}')
    for i in range(16):
        a(f'v_fma_f32 v{S+i}, v{S+i}, s{sC}, -v{t+1}')
    for i in range(16):
        a(f'v_exp_f32 v{S+i}, v{S+i}')
    for i in range(8):
        a(f'v_cvt_pk_bf16_f32 v{AR.P+i}, v{S+2*i}, v{S+2*i+1}')
    a(f'v_add_f32 v{t}, v{S}, v{S+1}')
    a(f'v_add_f32 v{t+1}, v{S+2}, v{S+3}')
    for i in range(2, 8):
        a(f'v_add_f32 v{t + (i&1)}, v{t + (i&1)}, v{S+2*i}')
        a(f'v_add_f32 v{t + (i&1)}, v{t + (i&1)}, v{S+2*i+1}')
    a(f'v_add_f32 v{t}, v{t}, v{t+1}')
    a(f'v_add_f32 v{Lr}, v{Lr}, v{t}')
def sub_soft(a):
    a.label('SUB_SOFT')
    read_v(a)
    softmax(a)
    a('s_waitcnt lgkmcnt(0)')
    ret(a)
def sub_soft2(a):
    a.label('SUB_SOFT2')
    softmax(a)
    ret(a)
def mfma_pv(a):
    for ks in range(2):
        for tau in range(4):
            o = vr(AR.O + 16*tau, 16)
            a(f'v_mfma_f32_32x32x16_bf16 {o}, {vr(AR.V + (tau*2+ks)*4, 4)}, {vr(AR.P + 4*ks, 4)}, {o}')
def dma_tile8k(a, srdn, s_soff, s_lds, st, pol, vpat):
    if isinstance(pol, tuple):
        lo, hi, thr = pol
        L1 = a.newlabel('L_ph'); L2 = a.newlabel('L_pd')
        a(f's_cmp_ge_u32 s{S_B}, {thr}')
        a(f's_cbranch_scc1 {L1}')
        dma_tile8k(a, srdn, s_soff, s_lds, st, lo, vpat)
        a(f's_branch {L2}')
        a.label(L1)
        dma_tile8k(a, srdn, s_soff, s_lds, st, hi, vpat)
        a.label(L2)
        return
    for half in range(2):
        if half == 0:
            a(f's_mov_b32 m0, s{s_lds}')
            so = s_soff
        else:
            a(f's_add_u32 m0, s{s_lds}, 4096')
            a(f's_add_u32 s{st}, s{s_soff}, 4096')
            so = st
        for p in range(4):
            a(f'buffer_load_dwordx4 v{vpat(p)}, {sr(srdn,4)}, s{so} offen offset:{p*1024} {pol} lds')

def wo_dma(a, P, part):
    for i in range(8):
        a(f's_add_u32 m0, s{S_WL}, {part*32768 + i*1024}')
        a(f's_add_u32 s{S_U + (i&1)}, s{S_WO}, {(part*64 + i*8) * 1024}')
        a(f'buffer_load_dwordx4 v{AR.WD}, {sr(SRD_WQ,4)}, s{S_U + (i&1)} offen {P["polwo"]} lds')

def epi_b(a, role, P):
    sOut = S_A
    sW = S_W; sC = S_C; st = S_T
    t = AR.T; L = AR.LANE; M = AR.M; Lr = AR.L
    ML = STG
    MB = [0, 16, 96]
    vz, vi = AR.AK, AR.AK + 1
    a(f'v_mov_b32 v{vz}, 0')
    a(f'global_load_dword v{vi}, v{vz}, {sr(P_DBG,2)} sc1')
    a(f'v_mov_b32 v{t}, v{Lr}')
    a(f'v_permlane32_swap_b32 v{Lr}, v{t}')
    a(f'v_add_f32 v{Lr}, v{Lr}, v{t}')
    a(f'v_cmp_lt_u32 vcc, 31, v{L}')
    a(f'v_cndmask_b32 v{t}, v{M}, v{Lr}, vcc')
    a(f's_lshl_b32 s{st}, s{sW}, 12')
    a(f's_add_u32 s{st}, s{st}, {ML}')
    a(f'v_lshlrev_b32 v{t+1}, 2, v{L}')
    a(f'v_add_u32 v{t+1}, s{st}, v{t+1}')
    a(f'ds_write_b32 v{t+1}, v{t}')
    a('s_waitcnt lgkmcnt(0)')
    a('s_barrier')
    a(f'v_and_b32 v{t+1}, 31, v{L}')
    a(f'v_lshlrev_b32 v{t+1}, 2, v{t+1}')
    a(f'v_add_u32 v{t+1}, {ML}, v{t+1}')
    for w in range(4):
        a(f'v_add_u32 v{t+10+w}, {4096*w}, v{t+1}')
    for w in range(4):
        a(f'ds_read2_b32 {vr(t+2+2*w, 2)}, v{t+10+w} offset0:0 offset1:32')
    a('s_waitcnt lgkmcnt(0)')
    a('s_barrier')
    m = [t+2+2*w for w in range(4)]
    l = [t+3+2*w for w in range(4)]
    a(f'v_max3_f32 v{t}, v{m[0]}, v{m[1]}, v{m[2]}')
    a(f'v_max_f32 v{t}, v{t}, v{m[3]}')
    for w in range(4):
        a(f'v_sub_f32 v{m[w]}, v{m[w]}, v{t}')
        a(f'v_mul_f32 v{m[w]}, s{sC}, v{m[w]}')
        a(f'v_exp_f32 v{m[w]}, v{m[w]}')
    a(f'v_mul_f32 v{t+1}, v{m[0]}, v{l[0]}')
    for w in range(1, 4):
        a(f'v_fma_f32 v{t+1}, v{m[w]}, v{l[w]}, v{t+1}')
    a(f'v_rcp_f32 v{t+1}, v{t+1}')
    a(f'v_sub_f32 v{t}, v{M}, v{t}')
    a(f'v_mul_f32 v{t}, s{sC}, v{t}')
    a(f'v_exp_f32 v{t}, v{t}')
    a(f'v_mul_f32 v{t}, v{t}, v{t+1}')
    for i in range(64):
        a(f'v_mul_f32 v{AR.O+i}, v{AR.O+i}, v{t}')
    a(f's_lshl_b32 s{st}, s{sW}, 13')
    a(f's_add_u32 s{st}, s{st}, 32768')
    a(f's_lshl_b32 s{st+1}, s{sW}, 12')
    a(f's_add_u32 s{st+1}, s{st+1}, {STG}')
    a(f'v_lshlrev_b32 v{t+1}, 4, v{L}')
    a(f'v_add_u32 v{t+2}, s{st}, v{t+1}')
    a(f'v_add_u32 v{t+3}, s{st+1}, v{t+1}')
    for k in range(1, 4):
        for j in range(4):
            if k < 3: a(f'ds_write_b128 v{t+2}, {vr(AR.O + 16*k + 4*j, 4)} offset:{(k-1)*4096 + j*1024}')
            else: a(f'ds_write_b128 v{t+3}, {vr(AR.O + 16*k + 4*j, 4)} offset:{j*1024}')
    a('s_waitcnt lgkmcnt(0)')
    a('s_barrier')
    for k in range(1, 4):
        a(f's_sub_u32 s{st}, s{sW}, {k}')
        a(f's_and_b32 s{st}, s{st}, 3')
        if k < 3:
            a(f's_lshl_b32 s{st}, s{st}, 13')
            a(f's_add_u32 s{st}, s{st}, {32768 + (k-1)*4096}')
        else:
            a(f's_lshl_b32 s{st}, s{st}, 12')
            a(f's_add_u32 s{st}, s{st}, {STG}')
        a(f'v_add_u32 v{t+2+k}, s{st}, v{t+1}')
        for j in range(4):
            a(f'ds_read_b128 {vr(MB[k-1] + 4*j, 4)}, v{t+2+k} offset:{j*1024}')
    a(f's_add_u32 s{st}, s{S_B}, {8 if role == "B" else 0}')
    a(f's_lshl_b32 s{st}, s{st}, 5')
    a(f's_add_u32 s{st}, s{st}, s{S_H}')
    a(f's_lshl_b32 s{st+2}, s{st}, 4')
    a('s_waitcnt lgkmcnt(0)')
    for i in range(16):
        a(f'v_add_f32 v{AR.O+i}, v{AR.O+i}, v{MB[0]+i}')
        a(f'v_add_f32 v{MB[1]+i}, v{MB[1]+i}, v{MB[2]+i}')
    for i in range(16):
        a(f'v_add_f32 v{AR.O+i}, v{AR.O+i}, v{MB[1]+i}')
    for i in range(8):
        a(f'v_cvt_pk_bf16_f32 v{AR.P+i}, v{AR.O+2*i}, v{AR.O+2*i+1}')
    a(f's_lshl_b32 s{st}, s{sW}, 11')
    a(f'v_add_u32 v{t+1}, s{st}, v{t+1}')
    for i in range(4): a(f'v_mov_b32 v{vz+2+i}, 1')
    a(f'global_store_dwordx4 v{t+1}, {vr(AR.P,4)}, {sr(sOut,2)} sc1')
    a(f'global_store_dwordx4 v{t+1}, {vr(AR.P+4,4)}, {sr(sOut,2)} offset:1024 sc1')
    a('s_barrier')
    wo_dma(a, P, 1)
    a('s_waitcnt vmcnt(8)')
    ts(a, 4)
    a('s_barrier')
    a(f's_cmp_lg_u32 s{S_W}, 0')
    a(f's_cbranch_scc1 {role}_done')
    a(f'v_cmp_eq_u32 vcc, 1, v{vi}')
    a('s_cmp_eq_u64 vcc, -1')
    a(f's_cbranch_scc1 {role}_initok')
    if not NOINIT: poll(a, vz, P_DBG, vi)
    a.label(f'{role}_initok')
    a(f'v_mov_b32 v{vz}, s{st+2}')
    store_flag(a, P_WS, vz, vz+2, n=4)
    ts(a, 5)
    a.label(f'{role}_done')

def gen_unit(a, P, role):
    isB = role == 'B'
    POLK = P.get('polK' + role, P['polkv'])
    POLV = P.get('polV' + role, P['polkv'])
    PX, PWQ, PK, PV = (P_BX, P_BWQ, P_BK, P_BV) if isB else (P_AX, P_AWQ, P_AK, P_AV)
    a.label('ROLE_' + role)
    if not isB:
        if P.get('noA'): a('s_branch L_end')
        a(f's_setprio {P["prio_A0"]}')
        a('s_cmp_lg_u32 s2, 256')
        a('s_cbranch_scc1 A_noclear')
        z = QT + 4
        for i in range(4): a(f'v_mov_b32 v{z+i}, 0')
        a(f's_lshl_b32 s{S_T}, s{S_W}, 13')
        a(f'v_lshlrev_b32 v{QT}, 4, v{AR.LANE}')
        a(f'v_add_u32 v{QT}, s{S_T}, v{QT}')
        a(f'v_add_u32 v{QT+1}, 4096, v{QT}')
        for i in range(8):
            a(f'global_store_dwordx4 v{QT + i//4}, {vr(z,4)}, {sr(P_WS,2)} offset:{(i%4)*1024} sc1')
        a('s_waitcnt vmcnt(0)')
        a('s_barrier')
        a(f's_cmp_lg_u32 s{S_W}, 0')
        a('s_cbranch_scc1 A_noclear')
        a(f'v_mov_b32 v{z+1}, 1')
        store_flag(a, P_DBG, z, z+1)
        a.label('A_noclear')
    a(f's_and_b32 s{S_T}, s{S_R}, 3')
    a(f's_lshr_b32 s{S_B}, s{S_R}, 2')
    a(f's_lshl_b32 s{S_H}, s{S_X}, 2')
    a(f's_add_u32 s{S_H}, s{S_H}, s{S_T}')
    a(f's_lshl_b32 s{S_T}, s{S_B}, 15')
    a(f's_add_u32 s{SRD_X}, s{PX}, s{S_T}')
    a(f's_addc_u32 s{SRD_X+1}, s{PX+1}, 0')
    srd(a, SRD_X, 32768)
    a(f's_lshl_b32 s{S_T}, s{S_H}, 8')
    a(f's_add_u32 s{SRD_WQ}, s{PWQ}, s{S_T}')
    a(f's_addc_u32 s{SRD_WQ+1}, s{PWQ+1}, 0')
    a(f's_sub_u32 s{S_T+1}, 4194304, s{S_T}')
    srd(a, SRD_WQ, f's{S_T+1}')
    a(f's_and_b32 s{S_STEP}, s{S_B}, 3')
    a(f's_lshl_b32 s{S_T}, s{S_B}, 5')
    a(f's_add_u32 s{S_T}, s{S_T}, s{S_H}')
    if isB:
        a(f's_mov_b32 s{S_G}, s{S_T}')
    else:
        a(f's_lshl_b32 s{S_G}, s{S_B}, 3')
        a(f's_add_u32 s{S_G}, s{S_G}, s{S_X}')
    a(f's_lshl_b32 s{S_T+1}, s{S_G}, 19')
    a(f's_lshr_b32 s{S_T+2}, s{S_G}, 13')
    a(f's_add_u32 s{SRD_K}, s{PK}, s{S_T+1}')
    a(f's_addc_u32 s{SRD_K+1}, s{PK+1}, s{S_T+2}')
    srd(a, SRD_K, 524288)
    a(f's_add_u32 s{SRD_V}, s{PV}, s{S_T+1}')
    a(f's_addc_u32 s{SRD_V+1}, s{PV+1}, s{S_T+2}')
    srd(a, SRD_V, 524288)
    if isB: a(f's_add_u32 s{S_T}, s{S_T}, 256')
    a(f's_lshl_b32 s{S_T}, s{S_T}, 13')
    a(f's_add_u32 s{S_T}, s{S_T}, {WS_O}')
    a(f's_add_u32 s{S_A}, s{P_WS}, s{S_T}')
    a(f's_addc_u32 s{S_A+1}, s{P_WS+1}, 0')
    setup_dma_B(a)
    a(f's_lshl_b32 s{S_KL}, s{S_W}, 13')
    a(f's_add_u32 s{S_VL}, s{S_KL}, 32768')
    a(f's_mul_i32 s{S_ROT}, s{2 if isB else S_G}, 5')
    a(f's_mul_i32 s{S_T}, s{S_W}, 3')
    a(f's_add_u32 s{S_ROT}, s{S_ROT}, s{S_T}')
    a(f's_and_b32 s{S_ROT}, s{S_ROT}, 15')
    a(f's_lshl_b32 s{S_ROT}, s{S_ROT}, 13')
    a(f's_lshl_b32 s{S_WB}, s{S_W}, 17')
    a(f's_add_u32 s{S_SO}, s{S_WB}, s{S_ROT}')
    kp = lambda p: AR.DK + p
    vp = lambda p: AR.DV
    def kdma(): dma_tile8k(a, SRD_K, S_SO, S_KL, S_U, POLK, kp)
    kpos = P['kpos'] if isB else P['kposA']
    if kpos < 0: kdma()
    qb_loads(a, P, kpos, kdma if kpos >= 0 else None)
    ts(a, 21)
    qb_compute(a, P, kpos, 8)
    ts(a, 1)
    OUT = 16
    a('s_barrier')
    bmode = P['bmode'] if isB else P['bmodeA']
    if bmode == 0:
        dma_tile8k(a, SRD_V, S_SO, S_VL, S_U, POLV, vp)
    t = AR.T; L = AR.LANE
    a(f'v_lshrrev_b32 v{t+8}, 4, v{L}')
    a(f'v_lshlrev_b32 v{t+8}, 11, v{t+8}')
    a(f'v_and_b32 v{t+9}, 15, v{L}')
    a(f'v_lshl_add_u32 v{t+8}, v{t+9}, 4, v{t+8}')
    a(f's_lshl_b32 s{S_T}, s{S_W}, 9')
    a(f's_add_u32 s{S_T}, s{S_T}, 65536')
    a(f'v_add_u32 v{t+8}, s{S_T}, v{t+8}')
    a(f'ds_write_b128 v{t+8}, {vr(OUT,4)}')
    a(f'ds_write_b128 v{t+8}, {vr(OUT+4,4)} offset:256')
    a(f's_mov_b32 s{S_U+1}, s{S_KL}')
    a(f's_mov_b32 s{S_U+2}, s{S_VL}')
    a(f's_mov_b32 s{S_U+3}, s{S_W}')
    call(a, 'SUB_READS')
    a('s_waitcnt lgkmcnt(0)')
    a('s_barrier')
    a(f'v_lshrrev_b32 v{t}, 5, v{L}')
    a(f'v_lshlrev_b32 v{t}, 12, v{t}')
    a(f'v_and_b32 v{t+1}, 31, v{L}')
    a(f'v_lshl_add_u32 v{t}, v{t+1}, 4, v{t}')
    a(f'v_add_u32 v{t}, 65536, v{t}')
    for s in range(8):
        a(f'ds_read_b128 {vr(AR.Q+4*s,4)}, v{t} offset:{s*512}')
    PWO = P_BWO if isB else P_AWO
    a(f's_lshr_b32 s{S_T}, s{S_R}, 2')
    a(f's_lshl_b32 s{S_T}, s{S_T}, 7')
    a(f's_add_u32 s{SRD_WQ}, s{PWO}, s{S_T}')
    a(f's_addc_u32 s{SRD_WQ+1}, s{PWO+1}, 0')
    a(f's_sub_u32 s{S_T+1}, 4194304, s{S_T}')
    srd(a, SRD_WQ, f's{S_T+1}')
    a(f's_lshl_b32 s{S_WO}, s{S_X}, 2')
    a(f's_add_u32 s{S_WO}, s{S_WO}, s{S_W}')
    a(f's_lshl_b32 s{S_WO}, s{S_WO}, 17')
    a(f's_lshl_b32 s{S_WL}, s{S_W}, 13')
    a(f'v_lshrrev_b32 v{AR.WD}, 3, v{L}')
    a(f'v_lshlrev_b32 v{AR.WD}, 10, v{AR.WD}')
    a(f'v_and_b32 v{t+4}, 7, v{L}')
    a(f'v_lshl_add_u32 v{AR.WD}, v{t+4}, 4, v{AR.WD}')
    a(f'v_lshrrev_b32 v{t+4}, 5, v{L}')
    a(f'v_lshlrev_b32 v{t+4}, 2, v{t+4}')
    a(f'v_bfe_u32 v{t+5}, v{L}, 2, 2')
    a(f'v_add_u32 v{t+4}, v{t+4}, v{t+5}')
    a(f'v_lshlrev_b32 v{t+4}, 7, v{t+4}')
    a(f'v_bfe_u32 v{t+5}, v{L}, 4, 1')
    a(f'v_lshl_add_u32 v{t+4}, v{t+5}, 5, v{t+4}')
    a(f'v_and_b32 v{t+5}, 3, v{L}')
    a(f'v_lshl_add_u32 v{t+4}, v{t+5}, 3, v{t+4}')
    a(f's_and_b32 s{S_T}, s{S_W}, 1')
    a(f's_lshl_b32 s{S_T}, s{S_T}, 6')
    a(f's_add_u32 s{S_T+1}, s{S_WL}, s{S_T}')
    a(f'v_add_u32 v{AR.WR0}, s{S_T+1}, v{t+4}')
    a(f's_xor_b32 s{S_T+1}, s{S_T+1}, 64')
    a(f'v_add_u32 v{AR.WR1}, s{S_T+1}, v{t+4}')
    a(f's_mov_b32 s{S_CNT}, 0')
    ts(a, 2)
    a(f's_setprio {P["prio_B" if isB else "prio_A"]}')
    a.label(role + '_loop')
    def adv():
        a(f's_add_u32 s{S_ROT}, s{S_ROT}, 8192')
        a(f's_and_b32 s{S_ROT}, s{S_ROT}, 0x1ffff')
        a(f's_add_u32 s{S_SO}, s{S_WB}, s{S_ROT}')
    if bmode == 0:
        IT = P.get('tsit', 10)
        ts_it(a, 48, IT)
        a('s_waitcnt vmcnt(8)')
        ts_it(a, 49, IT)
        read_k(a)
        adv()
        a('s_waitcnt lgkmcnt(0)')
        ts_it(a, 50, IT)
        dma_tile8k(a, SRD_K, S_SO, S_KL, S_U, POLK, kp)
        ts_it(a, 51, IT)
        mfma_s(a)
        a('s_waitcnt vmcnt(8)')
        ts_it(a, 52, IT)
        call(a, 'SUB_SOFT')
        ts_it(a, 53, IT)
        dma_tile8k(a, SRD_V, S_SO, S_VL, S_U, POLV, vp)
        ts_it(a, 54, IT)
        mfma_pv(a)
        ts_it(a, 55, IT)
    else:
        IT = P.get('tsit', 10)
        ts_it(a, 48, IT)
        a('s_waitcnt vmcnt(0)')
        ts_it(a, 49, IT)
        dma_tile8k(a, SRD_V, S_SO, S_VL, S_U, POLV, vp)
        ts_it(a, 50, IT)
        read_k(a)
        adv()
        a('s_waitcnt lgkmcnt(0)')
        mfma_s(a)
        call(a, 'SUB_SOFT2')
        ts_it(a, 51, IT)
        a('s_waitcnt vmcnt(0)')
        ts_it(a, 52, IT)
        Lk = a.newlabel('L_knext'); Lk2 = a.newlabel('L_kdone')
        a(f's_cmp_eq_u32 s{S_CNT}, 15')
        a(f's_cbranch_scc0 {Lk}')
        wo_dma(a, P, 0)
        a(f's_branch {Lk2}')
        a.label(Lk)
        dma_tile8k(a, SRD_K, S_SO, S_KL, S_U, POLK, kp)
        a.label(Lk2)
        ts_it(a, 53, IT)
        read_v(a)
        a('s_waitcnt lgkmcnt(0)')
        mfma_pv(a)
        ts_it(a, 54, IT)
        ts_it(a, 55, IT)
    ts(a, 32, S_CNT)
    a(f's_add_u32 s{S_CNT}, s{S_CNT}, 1')
    a(f's_cmp_lt_u32 s{S_CNT}, 16')
    a(f's_cbranch_scc1 {role}_loop')
    a(f's_setprio {P["prio_start"] if isB else P["prio_W"]}')
    ts(a, 3)
    epi_b(a, role, P)
    if P.get('sym'):
        a(f's_mov_b32 s{S_PROB}, {1 if isB else 0}')
        if isB: a('s_branch L_WORK')
        else:
            a.label('L_WORK')
            worky(a, P)
            a('s_branch L_end')
        return
    if not isB and P.get('astop') != 1: worky(a, P)
    a('s_branch L_end')

YWF = 128; YOF = 0; YAC = 64; YT = 216
def worky(a, P):
    T = YT; L = AR.LANE
    vD = T; vR0 = T+1; vR1 = T+2; vF = T+3; vL16 = T+4; vP = T+5; vOut = T+6; vY = T+7; vZ = T+8; vOne = T+9; t = T+10
    S_MT = S_TB; S_NT = S_TN
    a(f's_and_b32 s{S_MT}, s{S_R}, 3')
    a(f's_lshr_b32 s{S_NT}, s{S_R}, 2')
    a(f's_lshl_b32 s{S_WKL}, s{S_W}, 13')
    a(f'v_lshlrev_b32 v{vL16}, 4, v{L}')
    a(f's_lshl_b32 s{S_H}, s{S_X}, 2')
    a(f's_add_u32 s{S_H}, s{S_H}, s{S_W}')
    a(f'v_lshrrev_b32 v{vP}, 5, v{L}')
    a(f'v_lshlrev_b32 v{vP}, 12, v{vP}')
    a(f'v_and_b32 v{t}, 31, v{L}')
    a(f'v_lshl_add_u32 v{vP}, v{t}, 4, v{vP}')
    a(f's_lshl_b32 s{S_T}, s{S_X}, 9')
    a(f'v_add_u32 v{vP}, s{S_T}, v{vP}')
    a(f'v_mov_b32 v{vOne}, 1')
    if not P.get('sym'):
        a(f's_mov_b32 s{S_PROB}, 0')
    a.label('WK_loop')
    a(f's_lshl_b32 s{S_T}, s{S_PROB}, 3')
    a(f's_lshl_b32 s{S_T+1}, s{S_MT}, 1')
    a(f's_add_u32 s{S_T}, s{S_T}, s{S_T+1}')
    a(f's_lshl_b32 s{S_T}, s{S_T}, 5')
    a(f's_add_u32 s{S_T}, s{S_T}, s{S_H}')
    a(f's_lshl_b32 s{S_T+1}, s{S_T}, 13')
    a(f's_add_u32 s{S_T+1}, s{S_T+1}, {WS_O}')
    a(f's_add_u32 s{SRD_X}, s{P_WS}, s{S_T+1}')
    a(f's_addc_u32 s{SRD_X+1}, s{P_WS+1}, 0')
    srd(a, SRD_X, 262144 + 8192)
    a(f's_lshl_b32 s{S_T}, s{S_T}, 4')
    a(f'v_bfe_u32 v{t}, v{L}, 2, 1')
    a(f'v_lshlrev_b32 v{t}, 9, v{t}')
    a(f'v_and_b32 v{t+1}, 3, v{L}')
    a(f'v_lshl_add_u32 v{t}, v{t+1}, 2, v{t}')
    a(f'v_add_u32 v{vF}, s{S_T}, v{t}')
    a(f's_lshl_b32 s{S_T}, s{S_PROB}, 5')
    a(f's_lshl_b32 s{S_T+1}, s{S_MT}, 3')
    a(f's_add_u32 s{S_T}, s{S_T}, s{S_T+1}')
    a(f's_add_u32 s{S_T}, s{S_T}, s{S_NT}')
    a(f's_lshl_b32 s{S_T}, s{S_T}, 2')
    a(f's_add_u32 s{S_T}, s{S_T}, s{S_W}')
    a(f's_lshl_b32 s{S_T+1}, s{S_T}, 15')
    a(f's_add_u32 s{S_T+1}, s{S_T+1}, {WS_Y}')
    a(f's_add_u32 s{SRD_K}, s{P_WS}, s{S_T+1}')
    a(f's_addc_u32 s{SRD_K+1}, s{P_WS+1}, 0')
    srd(a, SRD_K, 32768)
    a(f's_lshl_b32 s{S_T}, s{S_T}, 5')
    a(f's_add_u32 s{S_T}, s{S_T}, {FL_Y}')
    a(f'v_and_b32 v{t}, 7, v{L}')
    a(f'v_lshlrev_b32 v{t}, 2, v{t}')
    a(f'v_add_u32 v{vY}, s{S_T}, v{t}')
    a(f's_lshl_b32 s{S_T+1}, s{S_X}, 2')
    a(f's_add_u32 s{S_T}, s{S_T}, s{S_T+1}')
    a(f'v_mov_b32 v{vZ}, s{S_T}')
    a(f's_lshl_b32 s{S_T}, s{S_MT}, 1')
    a(f's_lshr_b32 s{S_T+1}, s{S_W}, 1')
    a(f's_add_u32 s{S_T}, s{S_T}, s{S_T+1}')
    a(f's_lshl_b32 s{S_T}, s{S_T}, 16')
    a(f's_lshl_b32 s{S_T+1}, s{S_PROB}, 10')
    a(f's_add_u32 s{S_T}, s{S_T}, s{S_T+1}')
    a(f's_lshl_b32 s{S_T+1}, s{S_NT}, 7')
    a(f's_add_u32 s{S_T}, s{S_T}, s{S_T+1}')
    a(f's_and_b32 s{S_T+1}, s{S_W}, 1')
    a(f's_lshl_b32 s{S_T+1}, s{S_T+1}, 6')
    a(f's_add_u32 s{S_T}, s{S_T}, s{S_T+1}')
    a(f's_lshl_b32 s{S_T+1}, s{S_X}, 3')
    a(f's_add_u32 s{S_T}, s{S_T}, s{S_T+1}')
    a(f'v_and_b32 v{t}, 31, v{L}')
    a(f'v_lshlrev_b32 v{t}, 11, v{t}')
    a(f'v_add_u32 v{vOut}, s{S_T}, v{t}')
    a(f's_lshr_b32 s{S_T}, s{S_W}, 1')
    a(f's_lshl_b32 s{S_A}, s{S_T}, 18')
    a(f's_add_u32 s{S_A+1}, s{S_A}, 4096')
    a(f's_xor_b32 s{S_A+2}, s{S_A}, 262144')
    a(f's_add_u32 s{S_A+3}, s{S_A+2}, 4096')
    ts(a, 8)
    poll(a, vF, P_WS, t, sleep=P['sleep'])
    ts(a, 9)
    for beta in range(2):
        for i in range(8):
            a(f'buffer_load_dwordx4 {vr(YOF + (beta*8+i)*4, 4)}, v{vL16}, {sr(SRD_X,4)}, s{S_A + beta*2 + (i>>2)} offen offset:{(i&3)*1024} sc1')
    for Tt in range(4):
        for u in range(2):
            for nu in range(2):
                for v in range(2):
                    r = YWF + ((Tt*2+u)*2 + nu)*4 + 2*v
                    a(f'ds_read_b64_tr_b16 {vr(r, 2)}, v{AR.WR0 + nu} offset:{(Tt>>1)*32768 + (32*(Tt&1) + 16*u + 8*v) * 128}')
    a('s_waitcnt lgkmcnt(0)')
    for beta in range(2):
        a(f's_waitcnt vmcnt({8 * (1 - beta)})')
        for i in range(8):
            for nu in range(2):
                acc = vr(YAC + (beta*2+nu)*16, 16)
                c = '0' if i == 0 else acc
                a(f'v_mfma_f32_32x32x16_bf16 {acc}, {vr(YWF + (i*2+nu)*4, 4)}, {vr(YOF + (beta*8+i)*4, 4)}, {c}')
    ts(a, 10)
    yoffs = [0, 4096, 32768]
    a(f'v_add_u32 v{t}, s{S_WKL}, v{vL16}')
    for k in range(1, 4):
        for j in range(4):
            a(f'ds_write_b128 v{t}, {vr(YAC + 16*k + 4*j, 4)} offset:{yoffs[k-1] + j*1024}')
    a('s_waitcnt lgkmcnt(0)')
    a('s_barrier')
    for k in range(1, 4):
        a(f's_xor_b32 s{S_T}, s{S_W}, {k}')
        a(f's_lshl_b32 s{S_T}, s{S_T}, 13')
        a(f'v_add_u32 v{t+k}, s{S_T}, v{vL16}')
        for j in range(4):
            a(f'ds_read_b128 {vr(YOF + 16*(k-1) + 4*j, 4)}, v{t+k} offset:{yoffs[k-1] + j*1024}')
    a('s_waitcnt lgkmcnt(0)')
    for i in range(16):
        a(f'v_add_f32 v{YAC+i}, v{YAC+i}, v{YOF+i}')
        a(f'v_add_f32 v{YOF+16+i}, v{YOF+16+i}, v{YOF+32+i}')
    for i in range(16):
        a(f'v_add_f32 v{YAC+i}, v{YAC+i}, v{YOF+16+i}')
    a(f's_lshl_b32 s{S_U}, s{S_X}, 12')
    for j in range(4):
        a(f'buffer_store_dwordx4 {vr(YAC + 4*j, 4)}, v{vL16}, {sr(SRD_K,4)}, s{S_U} offen offset:{j*1024} sc1')
    a('s_waitcnt vmcnt(0)')
    store_flag(a, P_WS, vZ, vOne)
    ts(a, 11)
    poll(a, vY, P_WS, t, sleep=P['sleep'])
    ts(a, 12)
    for i in range(4):
        a(f's_mov_b32 s{S_U + i}, {i*8192}')
        a(f'buffer_load_dwordx4 {vr(YOF + 4*i, 4)}, v{vP}, {sr(SRD_K,4)}, s{S_U + i} offen sc1')
    a('s_waitcnt vmcnt(0)')
    for i in range(4):
        a(f'v_add_f32 v{YOF+i}, v{YOF+i}, v{YOF+4+i}')
        a(f'v_add_f32 v{YOF+8+i}, v{YOF+8+i}, v{YOF+12+i}')
    for i in range(4):
        a(f'v_add_f32 v{YOF+i}, v{YOF+i}, v{YOF+8+i}')
    for i in range(4):
        a(f'v_mov_b32 v{YOF+4+i}, v{YOF+i}')
    for i in range(4):
        a(f'v_permlane32_swap_b32 v{YOF+i}, v{YOF+4+i}')
    for i in range(4):
        a(f'v_add_f32 v{YOF+i}, v{YOF+i}, v{YOF+4+i}')
    a(f'v_cvt_pk_bf16_f32 v{YOF+16}, v{YOF}, v{YOF+1}')
    a(f'v_cvt_pk_bf16_f32 v{YOF+17}, v{YOF+2}, v{YOF+3}')
    a('s_mov_b32 exec_hi, 0')
    a(f'global_store_dwordx2 v{vOut}, {vr(YOF+16,2)}, {sr(P_OUT,2)}')
    a('s_mov_b32 exec_hi, -1')
    ts(a, 13)
    if TS_ON:
        L2 = a.newlabel('L_cp')
        a(f's_cmp_eq_u32 s{S_PROB}, 0')
        a(f's_cbranch_scc0 {L2}')
        for i in range(6):
            a(f'v_readlane_b32 s94, v249, {8+i}')
            a('s_nop 4')
            a(f'v_writelane_b32 v249, s94, {24+i}')
        a.label(L2)
    if not P.get('sym'):
        a(f's_add_u32 s{S_PROB}, s{S_PROB}, 1')
        a(f's_cmp_lt_u32 s{S_PROB}, {1 if P.get("astop") == 3 else 2}')
        a('s_cbranch_scc1 WK_loop')

def gen_fused(P):
    a = Asm()
    a('s_cmp_ge_u32 s2, 512')
    a('s_cbranch_scc1 L_exit')
    a('s_load_dwordx16 s[16:31], s[0:1], 0')
    a('s_load_dwordx8 s[32:39], s[0:1], 64')
    a('s_load_dwordx2 s[40:41], s[0:1], 96')
    a('v_lshrrev_b32 v1, 6, v0')
    a(f'v_and_b32 v{AR.LANE}, 63, v0')
    a(f'v_readfirstlane_b32 s{S_W}, v1')
    a(f's_and_b32 s{S_X}, s2, 7')
    a(f's_lshr_b32 s{S_R}, s2, 3')
    a(f's_and_b32 s{S_R}, s{S_R}, 31')
    a(f's_mov_b32 s{S_INIT}, 0')
    a(f's_setprio {P["prio_start"]}')
    a('s_waitcnt lgkmcnt(0)')
    if P.get('wsb'):
        a(f's_add_u32 s{P_WS}, s{P_WS}, {P["wsb"] << 20}')
        a(f's_addc_u32 s{P_WS+1}, s{P_WS+1}, 0')
    if TS_ON:
        a('v_mov_b32 v249, 0')
        ts(a, 0)
    a('s_cmp_ge_u32 s2, 256')
    a('s_cbranch_scc1 ROLE_A')
    gen_unit(a, P, 'B')
    sub_reads(a)
    if P['bmode'] == 0 or P['bmodeA'] == 0: sub_soft(a)
    if P['bmode'] != 0 or P['bmodeA'] != 0: sub_soft2(a)
    gen_unit(a, P, 'A')
    a.label('L_end')
    if TS_ON:
        ts(a, 16)
        a(f's_lshl_b32 s8, s2, 2')
        a(f's_add_u32 s8, s8, s{S_W}')
        a('s_lshl_b32 s8, s8, 8')
        a(f's_add_u32 s8, s8, {WS_TS}')
        if P.get('wsb'):
            a(f's_sub_u32 s{P_WS}, s{P_WS}, {P["wsb"] << 20}')
            a(f's_subb_u32 s{P_WS+1}, s{P_WS+1}, 0')
        a(f'v_lshlrev_b32 v248, 2, v{AR.LANE}')
        a('v_add_u32 v248, s8, v248')
        a(f'global_store_dword v248, v249, {sr(P_WS,2)}')
    a.label('L_exit')
    a('s_endpgm')
    return finish(a)

DEF = dict(polkv='nt', polw='nt', polx='nt', polwo='nt', ring=4, sleep=2, prio_start=3, prio_A0=2, prio_A=2, prio_B=0, prio_W=3,
           kpos=3, kposA=3, bmode=1, bmodeA=1, wo0=4, sym=1)

def build(out, **kw):
    global TS_ON, NOINIT, SLEEP0
    P = dict(DEF); P.update(kw)
    NOINIT = bool(P.get('noA'))
    SLEEP0 = P.get('sleep0', 1)
    TS_ON = P.get('ts', False)
    kn = NAME + '_kernel'
    t = file_text([(None, 512, 256, 81920)], [(kn, gen_fused(P), 256, 100, None)])
    open(out, 'w').write(t)

if __name__ == '__main__':
    import sys
    build('m0.s')
    build('m0_ts.s', ts=True)
```

```python
from fused7 import build
A = dict(polKA='', polVA='', polw='', polx='', polwo='')
build('s_ref.s', **A)
build('s_hi4.s', polKB=('nt','',4), polVB=('nt','',4), **A)
build('s_lo4.s', polKB=('','nt',4), polVB=('','nt',4), **A)
build('s_hi6.s', polKB=('nt','',6), polVB=('nt','',6), **A)
build('s_lo2.s', polKB=('','nt',2), polVB=('','nt',2), **A)
build('s_Ant_lo.s', polKA=('nt','',4), polVA=('nt','',4), polw='', polx='', polwo='')
```

```python
from fused7 import build
A = dict(polKA='', polVA='')
W = dict(polw='', polx='', polwo='')
build('w_p00.s', prio_A=0, **A, **W)
build('w_b0p0.s', bmodeA=0, prio_A=0, **A, **W)
build('w_bb0p0.s', bmodeA=0, bmode=0, prio_A=0, **A, **W)
build('w_b0p01.s', bmodeA=0, prio_A=0, prio_B=1, **A, **W)
build('w_b0p0_k0.s', bmodeA=0, prio_A=0, kposA=0, **A, **W)
build('w_b0p0_A0.s', bmodeA=0, prio_A=0, prio_A0=3, **A, **W)
build('w_b0p0_wnt.s', bmodeA=0, prio_A=0, **A)
build('w_b0p0_W0.s', bmodeA=0, prio_A=0, prio_W=0, **A, **W)
```

```python
import sys, math, struct
from asmgen import *
from hazard import fix_hazards

CSC = (128 ** -0.5) * math.log2(math.e)
def f2u(x): return struct.unpack('<I', struct.pack('<f', x))[0]
def vr(b, n): return f'v[{b}:{b+n-1}]'
def sr(b, n): return f's[{b}:{b+n-1}]'

FL_O = 0
FL_P = 8192
FL_Q = 12288
FL_Y = 65536
WS_Q = 1 << 20
WS_O = 4 << 20
WS_X = 8 << 20
WS_Y = 24 << 20
WS_TS = 32 << 20

S_W = 3; S_X = 4; S_R = 5; S_B = 6; S_H = 7
S_T = 8
P_AX, P_AK, P_AV, P_AWQ, P_AWO, P_BX, P_BK, P_BV = 16, 18, 20, 22, 24, 26, 28, 30
P_BWQ, P_BWO, P_OUT, P_DBG = 32, 34, 36, 38
P_WS = 40
S_WKL = 42; S_WKB = 43
SRD_X = 44; SRD_WQ = 48; SRD_K = 52; SRD_V = 56
S_C = 60; S_CNT = 61; S_KL = 62; S_VL = 63
S_ROT = 64; S_WB = 65; S_SO = 66; S_STEP = 67
S_P = 68
S_A = 70
S_U = 78
S_TB = 84; S_TN = 85
S_G = 86
S_WH = 87
S_FO = 92
S_SPIN = 90; S_INIT = 91; S_PROB = 93
LK1 = 96
OOB = 0x7f000000

class AR:
    Q = 0; O = 32; K = 96; V = 96; WO = 128; S = 192; P = 208
    T = 216
    M = 232; L = 233
    AK = 234; AV = 242
    WD = 246; WR0 = 247; WR1 = 248
    DK = 250; DV = 254
    LANE = 255
S_WO = 88
S_WL = 89
STG = 65536
QR, QX, QAT, QACC, QT = 0, 128, 160, 176, 240
WF = 0; OF = 128; ACC = 224; WT = 232

SPIN_LIMIT = 400000
TS_ON = False
NOINIT = False
SLEEP0 = 1
ABL = []

def finish(a):
    lines, n = fix_hazards(a.lines)
    return '\n'.join(lines) + '\n'
def srd(a, d, size):
    a(f's_and_b32 s{d+1}, s{d+1}, 0xffff')
    a(f's_mov_b32 s{d+2}, {size}')
    a(f's_mov_b32 s{d+3}, 0x20000')
def poll(a, vaddr, sbase, vtmp, sleep=None):
    if sleep is None: sleep = SLEEP0
    L = a.newlabel('L_poll'); D = a.newlabel('L_polld')
    a(f's_mov_b32 s{S_SPIN}, {SPIN_LIMIT}')
    a.label(L)
    a(f'global_load_dword v{vtmp}, v{vaddr}, {sr(sbase,2)} sc1')
    a('s_waitcnt vmcnt(0)')
    a(f'v_cmp_eq_u32 vcc, 1, v{vtmp}')
    a('s_cmp_eq_u64 vcc, -1')
    a(f's_cbranch_scc1 {D}')
    if sleep: a(f's_sleep {sleep}')
    a(f's_sub_u32 s{S_SPIN}, s{S_SPIN}, 1')
    a(f's_cmp_lg_u32 s{S_SPIN}, 0')
    a(f's_cbranch_scc1 {L}')
    a.label(D)
def store_flag(a, sbase, vz, vone, n=1):
    a('s_mov_b64 exec, 1')
    op = {1: 'dword', 2: 'dwordx2', 4: 'dwordx4'}[n]
    src = f'v{vone}' if n == 1 else vr(vone, n)
    a(f'global_store_{op} v{vz}, {src}, {sr(sbase,2)} sc1')
    a('s_mov_b64 exec, -1')
def call(a, name, lk=LK1): a(f's_call_b64 {sr(lk,2)}, {name}')
def ret(a, lk=LK1): a(f's_setpc_b64 {sr(lk,2)}')
def ts(a, slot, sreg=None):
    if not TS_ON: return
    a('s_memrealtime s[94:95]')
    a('s_waitcnt lgkmcnt(0)')
    if sreg is None:
        a(f'v_writelane_b32 v249, s94, {slot}')
    else:
        a(f's_add_u32 m0, s{sreg}, {slot}')
        a('s_nop 4')
        a(f'v_writelane_b32 v249, s94, m0')
def ts_it(a, slot, it):
    if not TS_ON: return
    a('s_memrealtime s[94:95]')
    a(f's_cmp_eq_u32 s{S_CNT}, {it}')
    a(f's_cselect_b32 m0, {slot}, 63')
    a('s_waitcnt lgkmcnt(0)')
    a('s_nop 4')
    a(f'v_writelane_b32 v249, s94, m0')
def wait_init(a, vz, vt):
    a(f'v_mov_b32 v{vz}, 0')
    poll(a, vz, P_DBG, vt)

def qb_loads(a, P, pos, mid=None):
    pol = P['polw']
    vL = AR.LANE; X = QX; R = QR; vt = QT; st = S_T; sW = S_W
    t0, t1, t2, t3 = vt, vt+1, vt+2, vt+3
    a(f'v_and_b32 v{t0}, 3, v{vL}')
    a(f'v_add_u32 v{t0}, s{sW}, v{t0}')
    a(f'v_and_b32 v{t0}, 3, v{t0}')
    a(f'v_and_b32 v{t1}, 12, v{vL}')
    a(f'v_or_b32 v{t0}, v{t0}, v{t1}')
    a(f'v_lshlrev_b32 v{t0}, 4, v{t0}')
    a(f'v_lshrrev_b32 v{t1}, 4, v{vL}')
    a(f'v_lshlrev_b32 v{t2}, 16, v{t1}')
    a(f'v_add_u32 v{t0}, v{t0}, v{t2}')
    a(f'v_and_b32 v{t2}, 15, v{vL}')
    a(f'v_lshlrev_b32 v{t2}, 10, v{t2}')
    a(f'v_lshlrev_b32 v{t1}, 4, v{t1}')
    a(f'v_add_u32 v{t2}, v{t2}, v{t1}')
    a(f'v_add_u32 v{t3}, 16384, v{t2}')
    xfirst = P.get('xfirst', 1)
    if xfirst:
        for s in range(4):
            a(f's_add_u32 s{st}, s{S_STEP}, {s}')
            a(f's_and_b32 s{st}, s{st}, 3')
            a(f's_lshl_b32 s{st+1}, s{sW}, 2')
            a(f's_add_u32 s{st}, s{st}, s{st+1}')
            a(f's_lshl_b32 s{st}, s{st}, 6')
            a(f'buffer_load_dwordx4 {vr(X + (s*2+0)*4, 4)}, v{t2}, {sr(SRD_X,4)}, s{st} offen {P["polx"]}')
            a(f'buffer_load_dwordx4 {vr(X + (s*2+1)*4, 4)}, v{t3}, {sr(SRD_X,4)}, s{st} offen {P["polx"]}')
    for s in range(4):
        a(f's_add_u32 s{st}, s{S_STEP}, {s}')
        a(f's_and_b32 s{st}, s{st}, 3')
        a(f's_lshl_b32 s{st+1}, s{sW}, 2')
        a(f's_add_u32 s{st}, s{st}, s{st+1}')
        a(f's_lshl_b32 s{st+1}, s{st}, 18')
        a(f's_lshl_b32 s{st}, s{st}, 6')
        for j in range(8):
            if j == 0: so = st + 1
            else:
                so = st + 2 + (j & 1)
                a(f's_add_u32 s{so}, s{st+1}, {j * 8192}')
            a(f'buffer_load_dwordx4 {vr(R + s*32 + j*4, 4)}, v{t0}, {sr(SRD_WQ,4)}, s{so} offen {pol}')
        if not xfirst:
            a(f'buffer_load_dwordx4 {vr(X + (s*2+0)*4, 4)}, v{t2}, {sr(SRD_X,4)}, s{st} offen {P["polx"]}')
            a(f'buffer_load_dwordx4 {vr(X + (s*2+1)*4, 4)}, v{t3}, {sr(SRD_X,4)}, s{st} offen {P["polx"]}')
        if mid and s == pos: mid()

def qp_step(a, s, first):
    R, X, AT, A_ = QR, QX, QAT, QACC
    st = S_U
    for d in range(4):
        buf = AT + (d % 2) * 8
        for t in range(4):
            r0 = R + s*32 + (2*t)*4 + d
            r1 = R + s*32 + (2*t+1)*4 + d
            a(f'v_perm_b32 v{buf + t}, v{r1}, v{r0}, s{st}')
            a(f'v_perm_b32 v{buf + 4 + t}, v{r1}, v{r0}, s{st+1}')
        for eo in range(2):
            e = 2*d + eo
            for qt in range(2):
                acc = A_ + (e*2 + qt) * 4
                c = '0' if first else vr(acc, 4)
                a(f'v_mfma_f32_16x16x32_bf16 {vr(acc,4)}, {vr(buf + 4*eo, 4)}, {vr(X + (s*2+qt)*4, 4)}, {c}')

def qb_compute(a, P, pos, kl):
    a(f's_mov_b32 s{S_U}, 0x05040100')
    a(f's_mov_b32 s{S_U+1}, 0x07060302')
    for s in range(4):
        later = (3 - s) * (8 if P.get('xfirst', 1) else 10) + (kl if s <= pos else 0)
        a(f's_waitcnt vmcnt({later})')
        if s == 0: ts(a, 19)
        qp_step(a, s, s == 0)
    ts(a, 20)
    inbox_base = 32768
    sW = S_W; vL = AR.LANE; va = QT + 4; st = S_T + 4; A_ = QACC
    for k in range(1, 4):
        a(f's_add_u32 s{st}, s{sW}, {k}')
        a(f's_and_b32 s{st}, s{st}, 3')
        a(f's_mul_i32 s{st}, s{st}, 12288')
        a(f's_add_u32 s{st}, s{st}, {inbox_base + (k-1)*4096}')
        a(f'v_lshlrev_b32 v{va}, 4, v{vL}')
        a(f'v_add_u32 v{va}, s{st}, v{va}')
        TT = 16 * (k - 1)
        for qt in range(2):
            for e in range(8):
                a(f'v_mov_b32 v{TT + qt*8 + e}, v{A_ + (e*2+qt)*4 + k}')
        for j in range(4):
            a(f'ds_write_b128 v{va}, {vr(TT + 4*j, 4)} offset:{j*1024}')
    a('s_waitcnt lgkmcnt(0)')
    a('s_barrier')
    T = 48
    a(f's_mul_i32 s{st}, s{sW}, 12288')
    a(f's_add_u32 s{st}, s{st}, {inbox_base}')
    a(f'v_lshlrev_b32 v{va}, 4, v{vL}')
    a(f'v_add_u32 v{va}, s{st}, v{va}')
    for k in range(3):
        for j in range(4):
            a(f'ds_read_b128 {vr(T + 16*k + 4*j, 4)}, v{va} offset:{k*4096 + j*1024}')
    for k in range(3):
        a(f's_waitcnt lgkmcnt({8 - 4*k})')
        for qt in range(2):
            for e in range(8):
                r = A_ + (e*2+qt)*4
                a(f'v_add_f32 v{r}, v{r}, v{T + 16*k + qt*8 + e}')
    OUT = 16
    for qt in range(2):
        for p in range(4):
            a(f'v_cvt_pk_bf16_f32 v{OUT + qt*4 + p}, v{A_ + ((2*p)*2+qt)*4}, v{A_ + ((2*p+1)*2+qt)*4}')

def setup_dma_B(a):
    L = AR.LANE; t = QT + 4
    a(f'v_lshrrev_b32 v{t}, 4, v{L}')
    a(f'v_and_b32 v{t+1}, 15, v{L}')
    for p in range(4):
        a(f'v_add_u32 v{t+2}, {4*p}, v{t}')
        a(f'v_xor_b32 v{t+2}, v{t+2}, v{t+1}')
        a(f'v_lshlrev_b32 v{t+2}, 4, v{t+2}')
        a(f'v_lshl_add_u32 v{AR.DK+p}, v{t}, 8, v{t+2}')
    a(f'v_lshlrev_b32 v{t+2}, 2, v{t}')
    a(f'v_xor_b32 v{t+2}, v{t+2}, v{t+1}')
    a(f'v_lshlrev_b32 v{t+2}, 4, v{t+2}')
    a(f'v_lshl_add_u32 v{AR.DV}, v{t}, 8, v{t+2}')

def setup_dma_A(a):
    L = AR.LANE; t = QT + 4; st = S_T
    a(f'v_lshrrev_b32 v{t}, 4, v{L}')
    a(f'v_and_b32 v{t+1}, 15, v{L}')
    a(f's_lshl_b32 s{st}, s{S_W}, 3')
    for p in range(2):
        a(f's_add_u32 s{st+1}, s{st}, {4*p}')
        a(f's_and_b32 s{st+1}, s{st+1}, 15')
        a(f'v_add_u32 v{t+2}, s{st+1}, v{t}')
        a(f'v_xor_b32 v{t+2}, v{t+2}, v{t+1}')
        a(f'v_lshlrev_b32 v{t+2}, 4, v{t+2}')
        a(f'v_lshl_add_u32 v{AR.DK+p}, v{t}, 8, v{t+2}')
    a(f'v_lshlrev_b32 v{t+2}, 2, v{t}')
    a(f'v_xor_b32 v{t+2}, v{t+2}, v{t+1}')
    a(f'v_lshlrev_b32 v{t+2}, 4, v{t+2}')
    a(f'v_lshl_add_u32 v{AR.DV}, v{t}, 8, v{t+2}')

def sub_reads(a):
    s_kslot, s_vslot, s_rot = S_U+1, S_U+2, S_U+3
    L = AR.LANE; t = AR.T; st = S_T
    a.label('SUB_READS')
    a(f'v_and_b32 v{t}, 31, v{L}')
    a(f'v_lshrrev_b32 v{t+1}, 5, v{L}')
    a(f'v_and_b32 v{t+2}, 15, v{L}')
    a(f'v_lshlrev_b32 v{t+3}, 3, v{t+1}')
    a(f'v_xor_b32 v{t+2}, v{t+2}, v{t+3}')
    a(f'v_lshlrev_b32 v{t+2}, 4, v{t+2}')
    a(f'v_lshl_add_u32 v{t+2}, v{t}, 8, v{t+2}')
    for s in range(8):
        a(f'v_xor_b32 v{AR.AK+s}, {16*s}, v{t+2}')
        a(f'v_add_u32 v{AR.AK+s}, s{s_kslot}, v{AR.AK+s}')
    a(f'v_and_b32 v{t}, 15, v{L}')
    a(f'v_lshrrev_b32 v{t+2}, 2, v{t}')
    a(f'v_and_b32 v{t+3}, 3, v{t}')
    a(f'v_lshl_add_u32 v{t+4}, v{t+1}, 2, v{t+2}')
    a(f'v_lshlrev_b32 v{t+4}, 8, v{t+4}')
    a(f'v_bfe_u32 v{t+5}, v{L}, 4, 1')
    a(f'v_lshlrev_b32 v{t+5}, 1, v{t+5}')
    a(f'v_lshrrev_b32 v{t+6}, 1, v{t+3}')
    a(f'v_add_u32 v{t+5}, v{t+5}, v{t+6}')
    a(f'v_lshlrev_b32 v{t+6}, 2, v{t+2}')
    a(f'v_xor_b32 v{t+5}, v{t+5}, v{t+6}')
    a(f'v_lshl_add_u32 v{t+4}, v{t+5}, 4, v{t+4}')
    a(f'v_and_b32 v{t+3}, 1, v{t+3}')
    a(f'v_lshl_add_u32 v{t+4}, v{t+3}, 3, v{t+4}')
    for tau in range(4):
        a(f's_add_u32 s{st}, s{s_rot}, {tau}')
        a(f's_and_b32 s{st}, s{st}, 3')
        a(f's_lshl_b32 s{st}, s{st}, 6')
        a(f'v_xor_b32 v{AR.AV+tau}, s{st}, v{t+4}')
        a(f'v_add_u32 v{AR.AV+tau}, s{s_vslot}, v{AR.AV+tau}')
    for i in range(64):
        a(f'v_mov_b32 v{AR.O+i}, 0')
    a(f'v_mov_b32 v{AR.M}, 0xff800000')
    a(f'v_mov_b32 v{AR.L}, 0')
    a(f's_mov_b32 s{S_C}, {f2u(CSC)}')
    ret(a)

def read_k(a):
    for s in range(8):
        a(f'ds_read_b128 {vr(AR.K + 4*s, 4)}, v{AR.AK+s}')
def read_v(a):
    for ks in range(2):
        for tau in range(4):
            for u in range(2):
                r = AR.V + (tau*2 + ks)*4 + u*2
                a(f'ds_read_b64_tr_b16 {vr(r, 2)}, v{AR.AV+tau} offset:{4096*ks + 2048*u}')
def mfma_s(a):
    for s in range(8):
        c = '0' if s == 0 else vr(AR.S, 16)
        a(f'v_mfma_f32_32x32x16_bf16 {vr(AR.S,16)}, {vr(AR.K+4*s,4)}, {vr(AR.Q+4*s,4)}, {c}')
def softmax(a):
    sC = S_C; st = S_P
    S = AR.S; t = AR.T; M = AR.M; Lr = AR.L
    a(f'v_max3_f32 v{t}, v{S}, v{S+1}, v{S+2}')
    a(f'v_max3_f32 v{t+1}, v{S+3}, v{S+4}, v{S+5}')
    a(f'v_max3_f32 v{t}, v{t}, v{S+6}, v{S+7}')
    a(f'v_max3_f32 v{t+1}, v{t+1}, v{S+8}, v{S+9}')
    a(f'v_max3_f32 v{t}, v{t}, v{S+10}, v{S+11}')
    a(f'v_max3_f32 v{t+1}, v{t+1}, v{S+12}, v{S+13}')
    a(f'v_max3_f32 v{t}, v{t}, v{S+14}, v{S+15}')
    a(f'v_max_f32 v{t}, v{t}, v{t+1}')
    a(f'v_mov_b32 v{t+1}, v{t}')
    a(f'v_permlane32_swap_b32 v{t}, v{t+1}')
    a(f'v_max3_f32 v{t}, v{t}, v{t+1}, v{M}')
    a(f'v_cmp_gt_f32 {sr(st,2)}, v{t}, v{M}')
    skip = a.newlabel('L_skip')
    a(f's_cmp_eq_u64 {sr(st,2)}, 0')
    a(f's_cbranch_scc1 {skip}')
    a(f'v_sub_f32 v{t+1}, v{M}, v{t}')
    a(f'v_mul_f32 v{t+1}, s{sC}, v{t+1}')
    a(f'v_exp_f32 v{t+1}, v{t+1}')
    a(f'v_mov_b32 v{M}, v{t}')
    a(f'v_mul_f32 v{Lr}, v{Lr}, v{t+1}')
    for i in range(64):
        a(f'v_mul_f32 v{AR.O+i}, v{AR.O+i}, v{t+1}')
    a.label(skip)
    a(f'v_mul_f32 v{t+1}, s{sC}, v{M}')
    for i in range(16):
        a(f'v_fma_f32 v{S+i}, v{S+i}, s{sC}, -v{t+1}')
    for i in range(16):
        a(f'v_exp_f32 v{S+i}, v{S+i}')
    for i in range(8):
        a(f'v_cvt_pk_bf16_f32 v{AR.P+i}, v{S+2*i}, v{S+2*i+1}')
    a(f'v_add_f32 v{t}, v{S}, v{S+1}')
    a(f'v_add_f32 v{t+1}, v{S+2}, v{S+3}')
    for i in range(2, 8):
        a(f'v_add_f32 v{t + (i&1)}, v{t + (i&1)}, v{S+2*i}')
        a(f'v_add_f32 v{t + (i&1)}, v{t + (i&1)}, v{S+2*i+1}')
    a(f'v_add_f32 v{t}, v{t}, v{t+1}')
    a(f'v_add_f32 v{Lr}, v{Lr}, v{t}')
def sub_soft(a):
    a.label('SUB_SOFT')
    read_v(a)
    softmax(a)
    a('s_waitcnt lgkmcnt(0)')
    ret(a)
def sub_soft2(a):
    a.label('SUB_SOFT2')
    softmax(a)
    ret(a)
def mfma_pv(a):
    for ks in range(2):
        for tau in range(4):
            o = vr(AR.O + 16*tau, 16)
            a(f'v_mfma_f32_32x32x16_bf16 {o}, {vr(AR.V + (tau*2+ks)*4, 4)}, {vr(AR.P + 4*ks, 4)}, {o}')
def dma_tile8k(a, srdn, s_soff, s_lds, st, pol, vpat):
    if isinstance(pol, tuple):
        lo, hi, thr = pol
        L1 = a.newlabel('L_ph'); L2 = a.newlabel('L_pd')
        a(f's_cmp_ge_u32 s{S_B}, {thr}')
        a(f's_cbranch_scc1 {L1}')
        dma_tile8k(a, srdn, s_soff, s_lds, st, lo, vpat)
        a(f's_branch {L2}')
        a.label(L1)
        dma_tile8k(a, srdn, s_soff, s_lds, st, hi, vpat)
        a.label(L2)
        return
    for half in range(2):
        if half == 0:
            a(f's_mov_b32 m0, s{s_lds}')
            so = s_soff
        else:
            a(f's_add_u32 m0, s{s_lds}, 4096')
            a(f's_add_u32 s{st}, s{s_soff}, 4096')
            so = st
        for p in range(4):
            a(f'buffer_load_dwordx4 v{vpat(p)}, {sr(srdn,4)}, s{so} offen offset:{p*1024} {pol} lds')

def wo_dma(a, P, part):
    lst = [(i, i * 1024) for i in range(7)] if part == 0 else [(7, 7168)] + [(8 + i, 32768 + i * 1024) for i in range(8)]
    for n, (g, lo) in enumerate(lst):
        a(f's_add_u32 m0, s{S_WL}, {lo}')
        a(f's_add_u32 s{S_U + (n&1)}, s{S_WO}, {g * 8 * 1024}')
        a(f'buffer_load_dwordx4 v{AR.WD}, {sr(SRD_WQ,4)}, s{S_U + (n&1)} offen {P["polwo"]} lds')

VDBG = 128
def init_issue(a):
    a(f'global_load_dwordx4 {vr(VDBG,4)}, v{VDBG+4}, {sr(P_DBG,2)} sc1')
def init_check(a, role):
    L = a.newlabel('L_ichk'); D = a.newlabel('L_iok')
    a(f's_mov_b32 s{S_SPIN}, {SPIN_LIMIT}')
    a.label(L)
    a(f'v_and_b32 v{VDBG+5}, v{VDBG}, v{VDBG+1}')
    a(f'v_and_b32 v{VDBG+6}, v{VDBG+2}, v{VDBG+3}')
    a(f'v_and_b32 v{VDBG+5}, v{VDBG+5}, v{VDBG+6}')
    a(f'v_cmp_eq_u32 vcc, 1, v{VDBG+5}')
    a('s_cmp_eq_u64 vcc, -1')
    a(f's_cbranch_scc1 {D}')
    a('s_sleep 1')
    init_issue(a)
    a('s_waitcnt vmcnt(0)')
    a(f's_sub_u32 s{S_SPIN}, s{S_SPIN}, 1')
    a(f's_cmp_lg_u32 s{S_SPIN}, 0')
    a(f's_cbranch_scc1 {L}')
    a.label(D)

def epi_c(a, role, P):
    sOut = S_A
    sW = S_W; sC = S_C; st = S_T
    t = AR.T; L = AR.LANE; M = AR.M; Lr = AR.L
    MB = [0, 16, 96]
    a(f'v_mov_b32 v{t}, v{Lr}')
    a(f's_add_u32 s{st}, s{S_KL}, 7168')
    a(f'v_lshlrev_b32 v{t+1}, 2, v{L}')
    a(f'v_permlane32_swap_b32 v{Lr}, v{t}')
    a(f'v_add_u32 v{t+1}, s{st}, v{t+1}')
    a(f'v_cmp_lt_u32 vcc, 31, v{L}')
    a(f'v_add_f32 v{Lr}, v{Lr}, v{t}')
    a(f's_lshl_b32 s{st+1}, s{sW}, 12')
    a(f's_add_u32 s{st+1}, s{st+1}, {STG}')
    a(f'v_cndmask_b32 v{t}, v{M}, v{Lr}, vcc')
    a(f'ds_write_b32 v{t+1}, v{t}')
    a(f'v_lshlrev_b32 v{t+1}, 4, v{L}')
    a(f'v_add_u32 v{t+2}, s{S_VL}, v{t+1}')
    a(f'v_add_u32 v{t+3}, s{st+1}, v{t+1}')
    for k in range(1, 4):
        for j in range(4):
            if k < 3: a(f'ds_write_b128 v{t+2}, {vr(AR.O + 16*k + 4*j, 4)} offset:{(k-1)*4096 + j*1024}')
            else: a(f'ds_write_b128 v{t+3}, {vr(AR.O + 16*k + 4*j, 4)} offset:{j*1024}')
    a(f'v_and_b32 v{t+14}, 31, v{L}')
    a(f'v_lshlrev_b32 v{t+14}, 2, v{t+14}')
    for k in range(4):
        a(f's_sub_u32 s{st}, s{sW}, {k}')
        a(f's_and_b32 s{st}, s{st}, 3')
        a(f's_lshl_b32 s{st+1}, s{st}, 13')
        a(f's_add_u32 s{st+2}, s{st+1}, 7168')
        a(f'v_add_u32 v{t+10+k}, s{st+2}, v{t+14}')
        if k >= 1:
            if k < 3:
                a(f's_add_u32 s{st+1}, s{st+1}, {32768 + (k-1)*4096}')
            else:
                a(f's_lshl_b32 s{st+1}, s{st}, 12')
                a(f's_add_u32 s{st+1}, s{st+1}, {STG}')
            a(f'v_add_u32 v{AR.AK+k}, s{st+1}, v{t+1}')
    a('s_waitcnt lgkmcnt(0)')
    a('s_barrier')
    for k in range(4):
        a(f'ds_read2_b32 {vr(t+2+2*k, 2)}, v{t+10+k} offset0:0 offset1:32')
    for k in range(1, 4):
        for j in range(4):
            a(f'ds_read_b128 {vr(MB[k-1] + 4*j, 4)}, v{AR.AK+k} offset:{j*1024}')
    a(f's_add_u32 s{st}, s{S_B}, {8 if role == "B" else 0}')
    a(f's_lshl_b32 s{st}, s{st}, 5')
    a(f's_add_u32 s{st}, s{st}, s{S_H}')
    a(f's_lshl_b32 s{S_FO}, s{st}, 7')
    a('s_waitcnt lgkmcnt(12)')
    m = [t+2+2*w for w in range(4)]
    l = [t+3+2*w for w in range(4)]
    a(f'v_max3_f32 v{t}, v{m[0]}, v{m[1]}, v{m[2]}')
    a(f'v_max_f32 v{t}, v{t}, v{m[3]}')
    for w in range(4):
        a(f'v_sub_f32 v{m[w]}, v{m[w]}, v{t}')
    for w in range(4):
        a(f'v_mul_f32 v{m[w]}, s{sC}, v{m[w]}')
    for w in range(4):
        a(f'v_exp_f32 v{m[w]}, v{m[w]}')
    a(f'v_mul_f32 v{t}, v{m[0]}, v{l[0]}')
    for w in range(1, 4):
        a(f'v_fma_f32 v{t}, v{m[w]}, v{l[w]}, v{t}')
    a(f'v_rcp_f32 v{t}, v{t}')
    for w in range(4):
        a(f'v_mul_f32 v{m[w]}, v{m[w]}, v{t}')
    for i in range(16):
        a(f'v_mul_f32 v{AR.O+i}, v{AR.O+i}, v{m[0]}')
    for k in range(1, 4):
        a(f's_waitcnt lgkmcnt({12 - 4*k})')
        for i in range(16):
            a(f'v_fma_f32 v{AR.O+i}, v{MB[k-1]+i}, v{m[k]}, v{AR.O+i}')
    for i in range(8):
        a(f'v_cvt_pk_bf16_f32 v{AR.P+i}, v{AR.O+2*i}, v{AR.O+2*i+1}')
    a(f's_lshl_b32 s{st}, s{sW}, 11')
    a(f'v_add_u32 v{t+1}, s{st}, v{t+1}')
    a(f'global_store_dwordx4 v{t+1}, {vr(AR.P,4)}, {sr(sOut,2)} sc1')
    a(f'global_store_dwordx4 v{t+1}, {vr(AR.P+4,4)}, {sr(sOut,2)} offset:1024 sc1')
    a(f's_mov_b32 s{S_PROB}, {1 if role == "B" else 0}')
    if role == 'B': a('s_branch L_EPI2')

def epi2(a, P):
    a.label('L_EPI2')
    worky_setup(a, P)
    a('s_waitcnt vmcnt(0)')
    ts(a, 4)
    a('s_barrier')
    a(f's_cmp_lg_u32 s{S_W}, 0')
    a('s_cbranch_scc1 L_noflag')
    init_check(a, '')
    a(f'v_mov_b32 v{VDBG+5}, s{S_FO}')
    store_flag(a, P_WS, VDBG+5, WK.vOne)
    ts(a, 5)
    a.label('L_noflag')
    if 'nowo2' not in ABL: wo_dma(a, P, 1)

def icheck_site(a):
    L = a.newlabel('L_nic')
    a(f's_cmp_eq_u32 s{S_CNT}, 4')
    a(f's_cbranch_scc0 {L}')
    init_issue(a)
    a.label(L)

def gen_unit(a, P, role):
    isB = role == 'B'
    POLK = P.get('polK' + role, P['polkv'])
    POLV = P.get('polV' + role, P['polkv'])
    PX, PWQ, PK, PV = (P_BX, P_BWQ, P_BK, P_BV) if isB else (P_AX, P_AWQ, P_AK, P_AV)
    a.label('ROLE_' + role)
    if not isB:
        if P.get('noA'): a('s_branch L_end')
        a(f's_setprio {P["prio_A0"]}')
        a(f's_sub_u32 s{S_T+1}, s2, 256')
        a(f's_cmp_lt_u32 s{S_T+1}, 4')
        a('s_cbranch_scc0 A_noclear')
        z = QT + 4
        for i in range(4): a(f'v_mov_b32 v{z+i}, 0')
        a(f's_lshl_b32 s{S_T}, s{S_W}, 13')
        a(f's_lshl_b32 s{S_T+2}, s{S_T+1}, 15')
        a(f's_add_u32 s{S_T}, s{S_T}, s{S_T+2}')
        a(f'v_lshlrev_b32 v{QT}, 4, v{AR.LANE}')
        a(f'v_add_u32 v{QT}, s{S_T}, v{QT}')
        a(f'v_add_u32 v{QT+1}, 4096, v{QT}')
        for i in range(8):
            a(f'global_store_dwordx4 v{QT + i//4}, {vr(z,4)}, {sr(P_WS,2)} offset:{(i%4)*1024} sc1')
        a('s_waitcnt vmcnt(0)')
        a('s_barrier')
        a(f's_cmp_lg_u32 s{S_W}, 0')
        a('s_cbranch_scc1 A_noclear')
        a(f's_lshl_b32 s{S_T+1}, s{S_T+1}, 2')
        a(f'v_mov_b32 v{z}, s{S_T+1}')
        a(f'v_mov_b32 v{z+1}, 1')
        store_flag(a, P_DBG, z, z+1)
        a.label('A_noclear')
    a(f's_and_b32 s{S_T}, s{S_R}, 3')
    a(f's_lshr_b32 s{S_B}, s{S_R}, 2')
    a(f's_lshl_b32 s{S_H}, s{S_X}, 2')
    a(f's_add_u32 s{S_H}, s{S_H}, s{S_T}')
    a(f's_lshl_b32 s{S_T}, s{S_B}, 15')
    a(f's_add_u32 s{SRD_X}, s{PX}, s{S_T}')
    a(f's_addc_u32 s{SRD_X+1}, s{PX+1}, 0')
    srd(a, SRD_X, 32768)
    a(f's_lshl_b32 s{S_T}, s{S_H}, 8')
    a(f's_add_u32 s{SRD_WQ}, s{PWQ}, s{S_T}')
    a(f's_addc_u32 s{SRD_WQ+1}, s{PWQ+1}, 0')
    a(f's_sub_u32 s{S_T+1}, 4194304, s{S_T}')
    srd(a, SRD_WQ, f's{S_T+1}')
    a(f's_and_b32 s{S_STEP}, s{S_B}, 3')
    a(f's_lshl_b32 s{S_T}, s{S_B}, 5')
    a(f's_add_u32 s{S_T}, s{S_T}, s{S_H}')
    if isB:
        a(f's_mov_b32 s{S_G}, s{S_T}')
    else:
        a(f's_lshl_b32 s{S_G}, s{S_B}, 3')
        a(f's_add_u32 s{S_G}, s{S_G}, s{S_X}')
    a(f's_lshl_b32 s{S_T+1}, s{S_G}, 19')
    a(f's_lshr_b32 s{S_T+2}, s{S_G}, 13')
    a(f's_add_u32 s{SRD_K}, s{PK}, s{S_T+1}')
    a(f's_addc_u32 s{SRD_K+1}, s{PK+1}, s{S_T+2}')
    srd(a, SRD_K, 524288)
    a(f's_add_u32 s{SRD_V}, s{PV}, s{S_T+1}')
    a(f's_addc_u32 s{SRD_V+1}, s{PV+1}, s{S_T+2}')
    srd(a, SRD_V, 524288)
    if isB: a(f's_add_u32 s{S_T}, s{S_T}, 256')
    a(f's_lshl_b32 s{S_T}, s{S_T}, 13')
    a(f's_add_u32 s{S_T}, s{S_T}, {WS_O}')
    a(f's_add_u32 s{S_A}, s{P_WS}, s{S_T}')
    a(f's_addc_u32 s{S_A+1}, s{P_WS+1}, 0')
    setup_dma_B(a)
    a(f's_lshl_b32 s{S_KL}, s{S_W}, 13')
    a(f's_add_u32 s{S_VL}, s{S_KL}, 32768')
    a(f's_mul_i32 s{S_ROT}, s{2 if isB else S_G}, 5')
    a(f's_mul_i32 s{S_T}, s{S_W}, 3')
    a(f's_add_u32 s{S_ROT}, s{S_ROT}, s{S_T}')
    a(f's_and_b32 s{S_ROT}, s{S_ROT}, 15')
    a(f's_lshl_b32 s{S_ROT}, s{S_ROT}, 13')
    a(f's_lshl_b32 s{S_WB}, s{S_W}, 17')
    a(f's_add_u32 s{S_SO}, s{S_WB}, s{S_ROT}')
    kp = lambda p: AR.DK + p
    vp = lambda p: AR.DV
    def kdma(): dma_tile8k(a, SRD_K, S_SO, S_KL, S_U, POLK, kp)
    kpos = P['kpos'] if isB else P['kposA']
    if kpos < 0: kdma()
    qb_loads(a, P, kpos, kdma if kpos >= 0 else None)
    ts(a, 21)
    qb_compute(a, P, kpos, 8)
    ts(a, 1)
    OUT = 16
    a('s_barrier')
    bmode = P['bmode'] if isB else P['bmodeA']
    if bmode == 0:
        dma_tile8k(a, SRD_V, S_SO, S_VL, S_U, POLV, vp)
    t = AR.T; L = AR.LANE
    a(f'v_lshrrev_b32 v{t+8}, 4, v{L}')
    a(f'v_lshlrev_b32 v{t+8}, 11, v{t+8}')
    a(f'v_and_b32 v{t+9}, 15, v{L}')
    a(f'v_lshl_add_u32 v{t+8}, v{t+9}, 4, v{t+8}')
    a(f's_lshl_b32 s{S_T}, s{S_W}, 9')
    a(f's_add_u32 s{S_T}, s{S_T}, 65536')
    a(f'v_add_u32 v{t+8}, s{S_T}, v{t+8}')
    a(f'ds_write_b128 v{t+8}, {vr(OUT,4)}')
    a(f'ds_write_b128 v{t+8}, {vr(OUT+4,4)} offset:256')
    a(f's_mov_b32 s{S_U+1}, s{S_KL}')
    a(f's_mov_b32 s{S_U+2}, s{S_VL}')
    a(f's_mov_b32 s{S_U+3}, s{S_W}')
    call(a, 'SUB_READS')
    a('s_waitcnt lgkmcnt(0)')
    a('s_barrier')
    a(f'v_lshrrev_b32 v{t}, 5, v{L}')
    a(f'v_lshlrev_b32 v{t}, 12, v{t}')
    a(f'v_and_b32 v{t+1}, 31, v{L}')
    a(f'v_lshl_add_u32 v{t}, v{t+1}, 4, v{t}')
    a(f'v_add_u32 v{t}, 65536, v{t}')
    for s in range(8):
        a(f'ds_read_b128 {vr(AR.Q+4*s,4)}, v{t} offset:{s*512}')
    PWO = P_BWO if isB else P_AWO
    a(f's_lshr_b32 s{S_T}, s{S_R}, 2')
    a(f's_lshl_b32 s{S_T}, s{S_T}, 7')
    a(f's_add_u32 s{SRD_WQ}, s{PWO}, s{S_T}')
    a(f's_addc_u32 s{SRD_WQ+1}, s{PWO+1}, 0')
    a(f's_sub_u32 s{S_T+1}, 4194304, s{S_T}')
    srd(a, SRD_WQ, f's{S_T+1}')
    a(f's_lshl_b32 s{S_WO}, s{S_X}, 2')
    a(f's_add_u32 s{S_WO}, s{S_WO}, s{S_W}')
    a(f's_lshl_b32 s{S_WO}, s{S_WO}, 17')
    a(f's_lshl_b32 s{S_WL}, s{S_W}, 13')
    a(f'v_lshrrev_b32 v{AR.WD}, 3, v{L}')
    a(f'v_lshlrev_b32 v{AR.WD}, 10, v{AR.WD}')
    a(f'v_and_b32 v{t+4}, 7, v{L}')
    a(f'v_lshl_add_u32 v{AR.WD}, v{t+4}, 4, v{AR.WD}')
    a(f'v_lshrrev_b32 v{t+4}, 5, v{L}')
    a(f'v_lshlrev_b32 v{t+4}, 2, v{t+4}')
    a(f'v_bfe_u32 v{t+5}, v{L}, 2, 2')
    a(f'v_add_u32 v{t+4}, v{t+4}, v{t+5}')
    a(f'v_lshlrev_b32 v{t+4}, 7, v{t+4}')
    a(f'v_bfe_u32 v{t+5}, v{L}, 4, 1')
    a(f'v_lshl_add_u32 v{t+4}, v{t+5}, 5, v{t+4}')
    a(f'v_and_b32 v{t+5}, 3, v{L}')
    a(f'v_lshl_add_u32 v{t+4}, v{t+5}, 3, v{t+4}')
    a(f's_and_b32 s{S_T}, s{S_W}, 1')
    a(f's_lshl_b32 s{S_T}, s{S_T}, 6')
    a(f's_add_u32 s{S_T+1}, s{S_WL}, s{S_T}')
    a(f'v_add_u32 v{AR.WR0}, s{S_T+1}, v{t+4}')
    a(f's_xor_b32 s{S_T+1}, s{S_T+1}, 64')
    a(f'v_add_u32 v{AR.WR1}, s{S_T+1}, v{t+4}')
    a(f's_mov_b32 s{S_CNT}, 0')
    a(f'v_mov_b32 v{VDBG+4}, 0')
    ts(a, 2)
    a(f's_setprio {P["prio_B" if isB else "prio_A"]}')
    a.label(role + '_loop')
    if (not isB) and P.get('ahi') is not None:
        Lp = a.newlabel('L_pr')
        a(f's_cmp_eq_u32 s{S_CNT}, {P["ahi"]}')
        a(f's_cbranch_scc0 {Lp}')
        a(f's_setprio {P["prio_A2"]}')
        a.label(Lp)
    def adv():
        a(f's_add_u32 s{S_ROT}, s{S_ROT}, 8192')
        a(f's_and_b32 s{S_ROT}, s{S_ROT}, 0x1ffff')
        a(f's_add_u32 s{S_SO}, s{S_WB}, s{S_ROT}')
    if bmode == 0:
        IT = P.get('tsit', 10)
        ts_it(a, 48, IT)
        a('s_waitcnt vmcnt(8)')
        ts_it(a, 49, IT)
        read_k(a)
        adv()
        a('s_waitcnt lgkmcnt(0)')
        ts_it(a, 50, IT)
        icheck_site(a)
        Lk = a.newlabel('L_knext'); Lk2 = a.newlabel('L_kdone'); Lk3 = a.newlabel('L_kd3')
        a(f's_cmp_eq_u32 s{S_CNT}, 15')
        a(f's_cbranch_scc0 {Lk}')
        wo_dma(a, P, 0)
        mfma_s(a)
        a('s_waitcnt vmcnt(7)')
        a(f's_branch {Lk2}')
        a.label(Lk)
        dma_tile8k(a, SRD_K, S_SO, S_KL, S_U, POLK, kp)
        ts_it(a, 51, IT)
        mfma_s(a)
        a('s_waitcnt vmcnt(8)')
        a.label(Lk2)
        ts_it(a, 52, IT)
        call(a, 'SUB_SOFT')
        ts_it(a, 53, IT)
        Lv = a.newlabel('L_vskip')
        a(f's_cmp_eq_u32 s{S_CNT}, 15')
        a(f's_cbranch_scc1 {Lv}')
        dma_tile8k(a, SRD_V, S_SO, S_VL, S_U, POLV, vp)
        a.label(Lv)
        ts_it(a, 54, IT)
        mfma_pv(a)
        ts_it(a, 55, IT)
    else:
        IT = P.get('tsit', 10)
        ts_it(a, 48, IT)
        a('s_waitcnt vmcnt(0)')
        ts_it(a, 49, IT)
        dma_tile8k(a, SRD_V, S_SO, S_VL, S_U, POLV, vp)
        ts_it(a, 50, IT)
        read_k(a)
        adv()
        a('s_waitcnt lgkmcnt(0)')
        mfma_s(a)
        call(a, 'SUB_SOFT2')
        ts_it(a, 51, IT)
        a('s_waitcnt vmcnt(0)')
        ts_it(a, 52, IT)
        icheck_site(a)
        Lk = a.newlabel('L_knext'); Lk2 = a.newlabel('L_kdone')
        a(f's_cmp_eq_u32 s{S_CNT}, 15')
        a(f's_cbranch_scc0 {Lk}')
        wo_dma(a, P, 0)
        a(f's_branch {Lk2}')
        a.label(Lk)
        dma_tile8k(a, SRD_K, S_SO, S_KL, S_U, POLK, kp)
        a.label(Lk2)
        ts_it(a, 53, IT)
        read_v(a)
        a('s_waitcnt lgkmcnt(0)')
        mfma_pv(a)
        ts_it(a, 54, IT)
        ts_it(a, 55, IT)
    ts(a, 32, S_CNT)
    a(f's_add_u32 s{S_CNT}, s{S_CNT}, 1')
    a(f's_cmp_lt_u32 s{S_CNT}, 16')
    a(f's_cbranch_scc1 {role}_loop')
    a(f's_setprio {P["prio_start"] if isB else P["prio_W"]}')
    ts(a, 3)
    epi_c(a, role, P)
    if not isB:
        epi2(a, P)
        if 'nowk' not in ABL: worky(a, P)
        a('s_branch L_end')

YWF = 128; YOF = 0; YAC = 64
class WK:
    vF = 192; vY = 193; vZ = 194; vOne = 195; vP = 196; vOut = 197; vL16 = 198; t = 199
S_OS = 72
S_YS = 76
S_YH = 77
def worky_setup(a, P):
    L = AR.LANE; t = WK.t; st = S_T
    S_MT = S_TB; S_NT = S_TN
    a(f's_and_b32 s{S_MT}, s{S_R}, 3')
    a(f's_lshr_b32 s{S_NT}, s{S_R}, 2')
    a(f's_lshl_b32 s{S_WKL}, s{S_W}, 13')
    a(f'v_lshlrev_b32 v{WK.vL16}, 4, v{L}')
    a(f's_lshl_b32 s{S_WH}, s{S_X}, 2')
    a(f's_add_u32 s{S_WH}, s{S_WH}, s{S_W}')
    a(f'v_mov_b32 v{WK.vOne}, 1')
    a(f's_lshl_b32 s{st}, s{S_PROB}, 3')
    a(f's_lshl_b32 s{st+1}, s{S_MT}, 1')
    a(f's_add_u32 s{st}, s{st}, s{st+1}')
    a(f's_lshl_b32 s{st}, s{st}, 5')
    a(f's_add_u32 s{st}, s{st}, s{S_WH}')
    a(f's_lshl_b32 s{st+1}, s{st}, 13')
    a(f's_add_u32 s{st+1}, s{st+1}, {WS_O}')
    a(f's_add_u32 s{SRD_X}, s{P_WS}, s{st+1}')
    a(f's_addc_u32 s{SRD_X+1}, s{P_WS+1}, 0')
    srd(a, SRD_X, 262144 + 8192)
    a(f's_lshl_b32 s{st}, s{st}, 7')
    a(f'v_and_b32 v{t}, 1, v{L}')
    a(f'v_lshlrev_b32 v{t}, 12, v{t}')
    a(f'v_add_u32 v{WK.vF}, s{st}, v{t}')
    a(f's_lshl_b32 s{st}, s{S_PROB}, 5')
    a(f's_lshl_b32 s{st+1}, s{S_MT}, 3')
    a(f's_add_u32 s{st}, s{st}, s{st+1}')
    a(f's_add_u32 s{st}, s{st}, s{S_NT}')
    a(f's_lshl_b32 s{st+1}, s{st}, 16')
    a(f's_add_u32 s{st+1}, s{st+1}, {WS_Y}')
    a(f's_add_u32 s{SRD_K}, s{P_WS}, s{st+1}')
    a(f's_addc_u32 s{SRD_K+1}, s{P_WS+1}, 0')
    srd(a, SRD_K, 65536)
    a(f's_lshl_b32 s{st}, s{st}, 10')
    a(f's_add_u32 s{st}, s{st}, {FL_Y}')
    a(f'v_and_b32 v{t}, 7, v{L}')
    a(f'v_lshlrev_b32 v{t}, 7, v{t}')
    a(f'v_add_u32 v{WK.vY}, s{st}, v{t}')
    a(f's_lshl_b32 s{st+1}, s{S_X}, 7')
    a(f's_add_u32 s{st}, s{st}, s{st+1}')
    a(f'v_mov_b32 v{WK.vZ}, s{st}')
    a(f's_lshl_b32 s{S_YS}, s{S_X}, 13')
    a(f's_lshl_b32 s{st}, s{S_W}, 11')
    a(f's_add_u32 s{S_YS}, s{S_YS}, s{st}')
    a(f's_mov_b32 s{S_YH}, 32768')
    a(f's_lshr_b32 s{st}, s{S_X}, 2')
    a(f's_lshl_b32 s{st}, s{st}, 12')
    a(f's_and_b32 s{st+1}, s{S_W}, 1')
    a(f's_lshl_b32 s{st+1}, s{st+1}, 11')
    a(f's_add_u32 s{st}, s{st}, s{st+1}')
    a(f's_lshr_b32 s{st+1}, s{S_W}, 1')
    a(f's_lshl_b32 s{st+1}, s{st+1}, 10')
    a(f's_add_u32 s{st}, s{st}, s{st+1}')
    a(f's_and_b32 s{st+1}, s{S_X}, 3')
    a(f's_lshl_b32 s{st+1}, s{st+1}, 7')
    a(f's_add_u32 s{st}, s{st}, s{st+1}')
    a(f'v_lshrrev_b32 v{t}, 4, v{L}')
    a(f'v_bfe_u32 v{t+1}, v{L}, 3, 1')
    a(f'v_and_b32 v{t+2}, 7, v{L}')
    a(f'v_lshlrev_b32 v{t+3}, 13, v{t}')
    a(f'v_lshl_add_u32 v{t+3}, v{t+1}, 9, v{t+3}')
    a(f'v_lshl_add_u32 v{t+3}, v{t+2}, 4, v{t+3}')
    a(f'v_add_u32 v{WK.vP}, s{st}, v{t+3}')
    a(f's_lshl_b32 s{st}, s{S_MT}, 1')
    a(f's_lshr_b32 s{st+1}, s{S_X}, 2')
    a(f's_add_u32 s{st}, s{st}, s{st+1}')
    a(f's_lshl_b32 s{st}, s{st}, 16')
    a(f's_and_b32 s{st+1}, s{S_X}, 3')
    a(f's_lshl_b32 s{st+1}, s{st+1}, 14')
    a(f's_add_u32 s{st}, s{st}, s{st+1}')
    a(f's_lshl_b32 s{st+1}, s{S_PROB}, 10')
    a(f's_add_u32 s{st}, s{st}, s{st+1}')
    a(f's_lshl_b32 s{st+1}, s{S_NT}, 7')
    a(f's_add_u32 s{st}, s{st}, s{st+1}')
    a(f's_and_b32 s{st+1}, s{S_W}, 1')
    a(f's_lshl_b32 s{st+1}, s{st+1}, 6')
    a(f's_add_u32 s{st}, s{st}, s{st+1}')
    a(f's_lshr_b32 s{st+1}, s{S_W}, 1')
    a(f's_lshl_b32 s{st+1}, s{st+1}, 4')
    a(f's_add_u32 s{st}, s{st}, s{st+1}')
    a(f'v_lshlrev_b32 v{t+3}, 11, v{t+2}')
    a(f'v_lshl_add_u32 v{t+3}, v{t+1}, 5, v{t+3}')
    a(f'v_lshl_add_u32 v{t+3}, v{t}, 2, v{t+3}')
    a(f'v_add_u32 v{WK.vOut}, s{st}, v{t+3}')
    a(f's_lshr_b32 s{st}, s{S_W}, 1')
    a(f's_lshl_b32 s{S_OS}, s{st}, 18')
    a(f's_add_u32 s{S_OS+1}, s{S_OS}, 4096')
    a(f's_xor_b32 s{S_OS+2}, s{S_OS}, 262144')
    a(f's_add_u32 s{S_OS+3}, s{S_OS+2}, 4096')

def worky(a, P):
    t = WK.t; vL16 = WK.vL16
    ts(a, 8)
    poll(a, WK.vF, P_WS, t, sleep=P['sleep'])
    ts(a, 9)
    for beta in range(2):
        for i in range(8):
            if 'noO' not in ABL:
                a(f'buffer_load_dwordx4 {vr(YOF + (beta*8+i)*4, 4)}, v{vL16}, {sr(SRD_X,4)}, s{S_OS + beta*2 + (i>>2)} offen offset:{(i&3)*1024} sc1')
    for Tt in range(4):
        for u in range(2):
            for nu in range(2):
                for v in range(2):
                    r = YWF + ((Tt*2+u)*2 + nu)*4 + 2*v
                    a(f'ds_read_b64_tr_b16 {vr(r, 2)}, v{AR.WR0 + nu} offset:{(Tt>>1)*32768 + (32*(Tt&1) + 16*u + 8*v) * 128}')
    a(f'v_add_u32 v{t}, s{S_WKL}, v{vL16}')
    for k in range(1, 4):
        a(f's_xor_b32 s{S_T}, s{S_W}, {k}')
        a(f's_lshl_b32 s{S_T}, s{S_T}, 13')
        a(f'v_add_u32 v{t+k}, s{S_T}, v{vL16}')
    a('s_waitcnt lgkmcnt(0)')
    for beta in range(2):
        a(f's_waitcnt vmcnt({8 * (1 - beta)})')
        for i in range(8):
            for nu in range(2):
                acc = vr(YAC + (beta*2+nu)*16, 16)
                c = '0' if i == 0 else acc
                a(f'v_mfma_f32_32x32x16_bf16 {acc}, {vr(YWF + (i*2+nu)*4, 4)}, {vr(YOF + (beta*8+i)*4, 4)}, {c}')
    ts(a, 10)
    yoffs = [0, 4096, 32768]
    for k in range(1, 4):
        for j in range(4):
            a(f'ds_write_b128 v{t}, {vr(YAC + 16*k + 4*j, 4)} offset:{yoffs[k-1] + j*1024}')
    a('s_waitcnt lgkmcnt(0)')
    a('s_barrier')
    for k in range(1, 4):
        for j in range(4):
            a(f'ds_read_b128 {vr(YOF + 16*(k-1) + 4*j, 4)}, v{t+k} offset:{yoffs[k-1] + j*1024}')
    a('s_waitcnt lgkmcnt(4)')
    for i in range(16):
        a(f'v_add_f32 v{YOF+i}, v{YOF+i}, v{YOF+16+i}')
    for i in range(16):
        a(f'v_add_f32 v{YAC+i}, v{YAC+i}, v{YOF+i}')
    a('s_waitcnt lgkmcnt(0)')
    for i in range(16):
        a(f'v_add_f32 v{YAC+i}, v{YAC+i}, v{YOF+32+i}')
    if 'no2' in ABL: return
    R = YOF
    order = [0, 2, 1, 3]
    for n, j in enumerate(order):
        for d in range(2):
            a(f'v_cvt_pk_bf16_f32 v{R + 2*n + d}, v{YAC + 4*j + 2*d}, v{YAC + 4*j + 2*d + 1}')
    for base in (0, 4):
        for d in range(2):
            a(f'v_permlane32_swap_b32 v{R + base + d}, v{R + base + 2 + d}')
    for g in range(2):
        a(f'buffer_store_dwordx4 {vr(R + 4*g, 4)}, v{vL16}, {sr(SRD_K,4)}, s{S_YS} offen offset:{g*1024} sc1')
    a('s_waitcnt vmcnt(0)')
    a('s_barrier')
    a(f's_cmp_lg_u32 s{S_W}, 0')
    a('s_cbranch_scc1 L_ywait')
    store_flag(a, P_WS, WK.vZ, WK.vOne)
    ts(a, 11)
    poll(a, WK.vY, P_WS, t, sleep=P['sleep'])
    a.label('L_ywait')
    a('s_barrier')
    ts(a, 12)
    X = 16
    a(f'buffer_load_dwordx4 {vr(X, 4)}, v{WK.vP}, {sr(SRD_K,4)}, 0 offen sc1')
    a(f'buffer_load_dwordx4 {vr(X+4, 4)}, v{WK.vP}, {sr(SRD_K,4)}, s{S_YH} offen sc1')
    a(f's_mov_b32 s{S_T}, 0xffff0000')
    U = 32
    a('s_waitcnt vmcnt(1)')
    for d in range(4):
        a(f'v_lshlrev_b32 v{U + 2*d}, 16, v{X + d}')
        a(f'v_and_b32 v{U + 2*d + 1}, s{S_T}, v{X + d}')
    a('s_waitcnt vmcnt(0)')
    for d in range(4):
        a(f'v_lshlrev_b32 v{U + 8 + 2*d}, 16, v{X + 4 + d}')
        a(f'v_and_b32 v{U + 8 + 2*d + 1}, s{S_T}, v{X + 4 + d}')
    for e in range(8):
        a(f'v_add_f32 v{U + e}, v{U + e}, v{U + 8 + e}')
    for i in range(4):
        a(f'v_permlane32_swap_b32 v{U + i}, v{U + 4 + i}')
    for i in range(4):
        a(f'v_add_f32 v{U + i}, v{U + i}, v{U + 4 + i}')
    for i in range(2):
        a(f'v_permlane16_swap_b32 v{U + i}, v{U + 2 + i}')
    for i in range(2):
        a(f'v_add_f32 v{U + i}, v{U + i}, v{U + 2 + i}')
    a(f'v_cvt_pk_bf16_f32 v{U}, v{U}, v{U+1}')
    a(f'global_store_dword v{WK.vOut}, v{U}, {sr(P_OUT,2)}')
    ts(a, 13)

def gen_fused(P):
    a = Asm()
    a('s_cmp_ge_u32 s2, 512')
    a('s_cbranch_scc1 L_exit')
    a('s_load_dwordx16 s[16:31], s[0:1], 0')
    a('s_load_dwordx8 s[32:39], s[0:1], 64')
    a('s_load_dwordx2 s[40:41], s[0:1], 96')
    a('v_lshrrev_b32 v1, 6, v0')
    a(f'v_and_b32 v{AR.LANE}, 63, v0')
    a(f'v_readfirstlane_b32 s{S_W}, v1')
    a(f's_and_b32 s{S_X}, s2, 7')
    a(f's_lshr_b32 s{S_R}, s2, 3')
    a(f's_and_b32 s{S_R}, s{S_R}, 31')
    a(f's_mov_b32 s{S_INIT}, 0')
    a(f's_setprio {P["prio_start"]}')
    a('s_waitcnt lgkmcnt(0)')
    if P.get('wsb'):
        a(f's_add_u32 s{P_WS}, s{P_WS}, {P["wsb"] << 20}')
        a(f's_addc_u32 s{P_WS+1}, s{P_WS+1}, 0')
    if TS_ON:
        a('v_mov_b32 v249, 0')
        ts(a, 0)
    a('s_cmp_ge_u32 s2, 256')
    a('s_cbranch_scc1 ROLE_A')
    gen_unit(a, P, 'B')
    sub_reads(a)
    if P['bmode'] == 0 or P['bmodeA'] == 0: sub_soft(a)
    if P['bmode'] != 0 or P['bmodeA'] != 0: sub_soft2(a)
    gen_unit(a, P, 'A')
    a.label('L_end')
    if TS_ON:
        ts(a, 16)
        a(f's_lshl_b32 s8, s2, 2')
        a(f's_add_u32 s8, s8, s{S_W}')
        a('s_lshl_b32 s8, s8, 8')
        a(f's_add_u32 s8, s8, {WS_TS}')
        if P.get('wsb'):
            a(f's_sub_u32 s{P_WS}, s{P_WS}, {P["wsb"] << 20}')
            a(f's_subb_u32 s{P_WS+1}, s{P_WS+1}, 0')
        a(f'v_lshlrev_b32 v248, 2, v{AR.LANE}')
        a('v_add_u32 v248, s8, v248')
        a(f'global_store_dword v248, v249, {sr(P_WS,2)}')
    a.label('L_exit')
    a('s_endpgm')
    return finish(a)

DEF = dict(polkv='nt', polw='nt', polx='nt', polwo='nt', ring=4, sleep=2, prio_start=3, prio_A0=2, prio_A=2, prio_B=0, prio_W=3,
           kpos=3, kposA=3, bmode=1, bmodeA=1, wo0=4, sym=1)

def build(out, **kw):
    global TS_ON, NOINIT, SLEEP0, ABL
    ABL = kw.get('abl', '').split(',')
    P = dict(DEF); P.update(kw)
    NOINIT = bool(P.get('noA'))
    SLEEP0 = P.get('sleep0', 1)
    TS_ON = P.get('ts', False)
    kn = NAME + '_kernel'
    t = file_text([(None, 512, 256, 81920)], [(kn, gen_fused(P), 256, 100, None)])
    open(out, 'w').write(t)

if __name__ == '__main__':
    import sys
    build('m0.s')
    build('m0_ts.s', ts=True)
```

```python
import sys, math, struct
from asmgen import *
from hazard import fix_hazards

CSC = (128 ** -0.5) * math.log2(math.e)
def f2u(x): return struct.unpack('<I', struct.pack('<f', x))[0]
def vr(b, n): return f'v[{b}:{b+n-1}]'
def sr(b, n): return f's[{b}:{b+n-1}]'

FL_O = 0
FL_P = 8192
FL_Q = 12288
FL_O2 = 65536
FL_Y = 65536
WS_Q = 1 << 20
WS_O = 4 << 20
WS_X = 8 << 20
WS_Y = 24 << 20
WS_TS = 32 << 20

S_W = 3; S_X = 4; S_R = 5; S_B = 6; S_H = 7
S_T = 8
P_AX, P_AK, P_AV, P_AWQ, P_AWO, P_BX, P_BK, P_BV = 16, 18, 20, 22, 24, 26, 28, 30
P_BWQ, P_BWO, P_OUT, P_DBG = 32, 34, 36, 38
P_WS = 40
S_WKL = 42; S_WKB = 43
SRD_X = 44; SRD_WQ = 48; SRD_K = 52; SRD_V = 56
S_C = 60; S_CNT = 61; S_KL = 62; S_VL = 63
S_ROT = 64; S_WB = 65; S_SO = 66; S_STEP = 67
S_P = 68
S_A = 70
S_U = 78
S_TB = 84; S_TN = 85
S_G = 86
S_WH = 87
S_FO = 92
S_SPIN = 90; S_INIT = 91; S_PROB = 93
S_NONCE = 91; NONCE_C = 0x9E3779B9; WS_E = 0
OTAG = 0
OU = 16384
S_FA = 84
YT = 131072
LK1 = 96
OOB = 0x7f000000

class AR:
    Q = 0; O = 32; K = 96; V = 96; WO = 128; S = 192; P = 208
    T = 216
    M = 232; L = 233
    AK = 234; AV = 242
    WD = 246; WR0 = 247; WR1 = 248
    DK = 250; DV = 254
    LANE = 255
S_WO = 88
S_WL = 89
STG = 65536
QR, QX, QAT, QACC, QT = 0, 128, 160, 176, 240
WF = 0; OF = 128; ACC = 224; WT = 232

SPIN_LIMIT = 400000
TS_ON = False
NOINIT = False
SLEEP0 = 1
ABL = []

def finish(a):
    lines, n = fix_hazards(a.lines)
    return '\n'.join(lines) + '\n'
def srd(a, d, size):
    a(f's_and_b32 s{d+1}, s{d+1}, 0xffff')
    a(f's_mov_b32 s{d+2}, {size}')
    a(f's_mov_b32 s{d+3}, 0x20000')
def poll(a, vaddr, sbase, vtmp, sleep=None):
    if sleep is None: sleep = SLEEP0
    L = a.newlabel('L_poll'); D = a.newlabel('L_polld')
    a(f's_mov_b32 s{S_SPIN}, {SPIN_LIMIT}')
    a.label(L)
    a(f'global_load_dword v{vtmp}, v{vaddr}, {sr(sbase,2)} sc1')
    a('s_waitcnt vmcnt(0)')
    a(f'v_cmp_eq_u32 vcc, 1, v{vtmp}')
    a('s_cmp_eq_u64 vcc, -1')
    a(f's_cbranch_scc1 {D}')
    if sleep: a(f's_sleep {sleep}')
    a(f's_sub_u32 s{S_SPIN}, s{S_SPIN}, 1')
    a(f's_cmp_lg_u32 s{S_SPIN}, 0')
    a(f's_cbranch_scc1 {L}')
    a.label(D)
def store_flag(a, sbase, vz, vone, n=1):
    a('s_mov_b64 exec, 1')
    op = {1: 'dword', 2: 'dwordx2', 4: 'dwordx4'}[n]
    src = f'v{vone}' if n == 1 else vr(vone, n)
    a(f'global_store_{op} v{vz}, {src}, {sr(sbase,2)} sc1')
    a('s_mov_b64 exec, -1')
def call(a, name, lk=LK1): a(f's_call_b64 {sr(lk,2)}, {name}')
def ret(a, lk=LK1): a(f's_setpc_b64 {sr(lk,2)}')
def ts(a, slot, sreg=None):
    if not TS_ON: return
    a('s_memrealtime s[94:95]')
    a('s_waitcnt lgkmcnt(0)')
    if sreg is None:
        a(f'v_writelane_b32 v249, s94, {slot}')
    else:
        a(f's_add_u32 m0, s{sreg}, {slot}')
        a('s_nop 4')
        a(f'v_writelane_b32 v249, s94, m0')
def ts_it(a, slot, it):
    if not TS_ON: return
    a('s_memrealtime s[94:95]')
    a(f's_cmp_eq_u32 s{S_CNT}, {it}')
    a(f's_cselect_b32 m0, {slot}, 63')
    a('s_waitcnt lgkmcnt(0)')
    a('s_nop 4')
    a(f'v_writelane_b32 v249, s94, m0')
def wait_init(a, vz, vt):
    a(f'v_mov_b32 v{vz}, 0')
    poll(a, vz, P_DBG, vt)

def qb_loads(a, P, pos, mid=None):
    pol = P['polw']
    vL = AR.LANE; X = QX; R = QR; vt = QT; st = S_T; sW = S_W
    t0, t1, t2, t3 = vt, vt+1, vt+2, vt+3
    a(f'v_and_b32 v{t0}, 3, v{vL}')
    a(f'v_add_u32 v{t0}, s{sW}, v{t0}')
    a(f'v_and_b32 v{t0}, 3, v{t0}')
    a(f'v_and_b32 v{t1}, 12, v{vL}')
    a(f'v_or_b32 v{t0}, v{t0}, v{t1}')
    a(f'v_lshlrev_b32 v{t0}, 4, v{t0}')
    a(f'v_lshrrev_b32 v{t1}, 4, v{vL}')
    a(f'v_lshlrev_b32 v{t2}, 16, v{t1}')
    a(f'v_add_u32 v{t0}, v{t0}, v{t2}')
    a(f'v_and_b32 v{t2}, 15, v{vL}')
    a(f'v_lshlrev_b32 v{t2}, 10, v{t2}')
    a(f'v_lshlrev_b32 v{t1}, 4, v{t1}')
    a(f'v_add_u32 v{t2}, v{t2}, v{t1}')
    a(f'v_add_u32 v{t3}, 16384, v{t2}')
    xfirst = P.get('xfirst', 1)
    if xfirst:
        for s in range(4):
            a(f's_add_u32 s{st}, s{S_STEP}, {s}')
            a(f's_and_b32 s{st}, s{st}, 3')
            a(f's_lshl_b32 s{st+1}, s{sW}, 2')
            a(f's_add_u32 s{st}, s{st}, s{st+1}')
            a(f's_lshl_b32 s{st}, s{st}, 6')
            a(f'buffer_load_dwordx4 {vr(X + (s*2+0)*4, 4)}, v{t2}, {sr(SRD_X,4)}, s{st} offen {P["polx"]}')
            a(f'buffer_load_dwordx4 {vr(X + (s*2+1)*4, 4)}, v{t3}, {sr(SRD_X,4)}, s{st} offen {P["polx"]}')
    for s in range(4):
        a(f's_add_u32 s{st}, s{S_STEP}, {s}')
        a(f's_and_b32 s{st}, s{st}, 3')
        a(f's_lshl_b32 s{st+1}, s{sW}, 2')
        a(f's_add_u32 s{st}, s{st}, s{st+1}')
        a(f's_lshl_b32 s{st+1}, s{st}, 18')
        a(f's_lshl_b32 s{st}, s{st}, 6')
        for j in range(8):
            if j == 0: so = st + 1
            else:
                so = st + 2 + (j & 1)
                a(f's_add_u32 s{so}, s{st+1}, {j * 8192}')
            a(f'buffer_load_dwordx4 {vr(R + s*32 + j*4, 4)}, v{t0}, {sr(SRD_WQ,4)}, s{so} offen {pol}')
        if not xfirst:
            a(f'buffer_load_dwordx4 {vr(X + (s*2+0)*4, 4)}, v{t2}, {sr(SRD_X,4)}, s{st} offen {P["polx"]}')
            a(f'buffer_load_dwordx4 {vr(X + (s*2+1)*4, 4)}, v{t3}, {sr(SRD_X,4)}, s{st} offen {P["polx"]}')
        if mid and s == pos: mid()

def qp_step(a, s, first):
    R, X, AT, A_ = QR, QX, QAT, QACC
    st = S_U
    for d in range(4):
        buf = AT + (d % 2) * 8
        for t in range(4):
            r0 = R + s*32 + (2*t)*4 + d
            r1 = R + s*32 + (2*t+1)*4 + d
            a(f'v_perm_b32 v{buf + t}, v{r1}, v{r0}, s{st}')
            a(f'v_perm_b32 v{buf + 4 + t}, v{r1}, v{r0}, s{st+1}')
        for eo in range(2):
            e = 2*d + eo
            for qt in range(2):
                acc = A_ + (e*2 + qt) * 4
                c = '0' if first else vr(acc, 4)
                a(f'v_mfma_f32_16x16x32_bf16 {vr(acc,4)}, {vr(buf + 4*eo, 4)}, {vr(X + (s*2+qt)*4, 4)}, {c}')

def qb_compute(a, P, pos, kl):
    a(f's_mov_b32 s{S_U}, 0x05040100')
    a(f's_mov_b32 s{S_U+1}, 0x07060302')
    for s in range(4):
        later = (3 - s) * (8 if P.get('xfirst', 1) else 10) + (kl if s <= pos else 0)
        a(f's_waitcnt vmcnt({later})')
        if s == 0: ts(a, 19)
        qp_step(a, s, s == 0)
    ts(a, 20)
    inbox_base = 32768
    sW = S_W; vL = AR.LANE; va = QT + 4; st = S_T + 4; A_ = QACC
    for k in range(1, 4):
        a(f's_add_u32 s{st}, s{sW}, {k}')
        a(f's_and_b32 s{st}, s{st}, 3')
        a(f's_mul_i32 s{st}, s{st}, 12288')
        a(f's_add_u32 s{st}, s{st}, {inbox_base + (k-1)*4096}')
        a(f'v_lshlrev_b32 v{va}, 4, v{vL}')
        a(f'v_add_u32 v{va}, s{st}, v{va}')
        TT = 16 * (k - 1)
        for qt in range(2):
            for e in range(8):
                a(f'v_mov_b32 v{TT + qt*8 + e}, v{A_ + (e*2+qt)*4 + k}')
        for j in range(4):
            a(f'ds_write_b128 v{va}, {vr(TT + 4*j, 4)} offset:{j*1024}')
    a('s_waitcnt lgkmcnt(0)')
    a('s_barrier')
    T = 48
    a(f's_mul_i32 s{st}, s{sW}, 12288')
    a(f's_add_u32 s{st}, s{st}, {inbox_base}')
    a(f'v_lshlrev_b32 v{va}, 4, v{vL}')
    a(f'v_add_u32 v{va}, s{st}, v{va}')
    for k in range(3):
        for j in range(4):
            a(f'ds_read_b128 {vr(T + 16*k + 4*j, 4)}, v{va} offset:{k*4096 + j*1024}')
    for k in range(3):
        a(f's_waitcnt lgkmcnt({8 - 4*k})')
        for qt in range(2):
            for e in range(8):
                r = A_ + (e*2+qt)*4
                a(f'v_add_f32 v{r}, v{r}, v{T + 16*k + qt*8 + e}')
    OUT = 16
    for qt in range(2):
        for p in range(4):
            a(f'v_cvt_pk_bf16_f32 v{OUT + qt*4 + p}, v{A_ + ((2*p)*2+qt)*4}, v{A_ + ((2*p+1)*2+qt)*4}')

def setup_dma_B(a):
    L = AR.LANE; t = QT + 4
    a(f'v_lshrrev_b32 v{t}, 4, v{L}')
    a(f'v_and_b32 v{t+1}, 15, v{L}')
    for p in range(4):
        a(f'v_add_u32 v{t+2}, {4*p}, v{t}')
        a(f'v_xor_b32 v{t+2}, v{t+2}, v{t+1}')
        a(f'v_lshlrev_b32 v{t+2}, 4, v{t+2}')
        a(f'v_lshl_add_u32 v{AR.DK+p}, v{t}, 8, v{t+2}')
    a(f'v_lshlrev_b32 v{t+2}, 2, v{t}')
    a(f'v_xor_b32 v{t+2}, v{t+2}, v{t+1}')
    a(f'v_lshlrev_b32 v{t+2}, 4, v{t+2}')
    a(f'v_lshl_add_u32 v{AR.DV}, v{t}, 8, v{t+2}')

def setup_dma_A(a):
    L = AR.LANE; t = QT + 4; st = S_T
    a(f'v_lshrrev_b32 v{t}, 4, v{L}')
    a(f'v_and_b32 v{t+1}, 15, v{L}')
    a(f's_lshl_b32 s{st}, s{S_W}, 3')
    for p in range(2):
        a(f's_add_u32 s{st+1}, s{st}, {4*p}')
        a(f's_and_b32 s{st+1}, s{st+1}, 15')
        a(f'v_add_u32 v{t+2}, s{st+1}, v{t}')
        a(f'v_xor_b32 v{t+2}, v{t+2}, v{t+1}')
        a(f'v_lshlrev_b32 v{t+2}, 4, v{t+2}')
        a(f'v_lshl_add_u32 v{AR.DK+p}, v{t}, 8, v{t+2}')
    a(f'v_lshlrev_b32 v{t+2}, 2, v{t}')
    a(f'v_xor_b32 v{t+2}, v{t+2}, v{t+1}')
    a(f'v_lshlrev_b32 v{t+2}, 4, v{t+2}')
    a(f'v_lshl_add_u32 v{AR.DV}, v{t}, 8, v{t+2}')

def sub_reads(a):
    s_kslot, s_vslot, s_rot = S_U+1, S_U+2, S_U+3
    L = AR.LANE; t = AR.T; st = S_T
    a.label('SUB_READS')
    a(f'v_and_b32 v{t}, 31, v{L}')
    a(f'v_lshrrev_b32 v{t+1}, 5, v{L}')
    a(f'v_and_b32 v{t+2}, 15, v{L}')
    a(f'v_lshlrev_b32 v{t+3}, 3, v{t+1}')
    a(f'v_xor_b32 v{t+2}, v{t+2}, v{t+3}')
    a(f'v_lshlrev_b32 v{t+2}, 4, v{t+2}')
    a(f'v_lshl_add_u32 v{t+2}, v{t}, 8, v{t+2}')
    for s in range(8):
        a(f'v_xor_b32 v{AR.AK+s}, {16*s}, v{t+2}')
        a(f'v_add_u32 v{AR.AK+s}, s{s_kslot}, v{AR.AK+s}')
    a(f'v_and_b32 v{t}, 15, v{L}')
    a(f'v_lshrrev_b32 v{t+2}, 2, v{t}')
    a(f'v_and_b32 v{t+3}, 3, v{t}')
    a(f'v_lshl_add_u32 v{t+4}, v{t+1}, 2, v{t+2}')
    a(f'v_lshlrev_b32 v{t+4}, 8, v{t+4}')
    a(f'v_bfe_u32 v{t+5}, v{L}, 4, 1')
    a(f'v_lshlrev_b32 v{t+5}, 1, v{t+5}')
    a(f'v_lshrrev_b32 v{t+6}, 1, v{t+3}')
    a(f'v_add_u32 v{t+5}, v{t+5}, v{t+6}')
    a(f'v_lshlrev_b32 v{t+6}, 2, v{t+2}')
    a(f'v_xor_b32 v{t+5}, v{t+5}, v{t+6}')
    a(f'v_lshl_add_u32 v{t+4}, v{t+5}, 4, v{t+4}')
    a(f'v_and_b32 v{t+3}, 1, v{t+3}')
    a(f'v_lshl_add_u32 v{t+4}, v{t+3}, 3, v{t+4}')
    for tau in range(4):
        a(f's_add_u32 s{st}, s{s_rot}, {tau}')
        a(f's_and_b32 s{st}, s{st}, 3')
        a(f's_lshl_b32 s{st}, s{st}, 6')
        a(f'v_xor_b32 v{AR.AV+tau}, s{st}, v{t+4}')
        a(f'v_add_u32 v{AR.AV+tau}, s{s_vslot}, v{AR.AV+tau}')
    for i in range(64):
        a(f'v_mov_b32 v{AR.O+i}, 0')
    a(f'v_mov_b32 v{AR.M}, 0xff800000')
    a(f'v_mov_b32 v{AR.L}, 0')
    a(f's_mov_b32 s{S_C}, {f2u(CSC)}')
    ret(a)

def read_k(a):
    for s in range(8):
        a(f'ds_read_b128 {vr(AR.K + 4*s, 4)}, v{AR.AK+s}')
def read_v(a):
    for ks in range(2):
        for tau in range(4):
            for u in range(2):
                r = AR.V + (tau*2 + ks)*4 + u*2
                a(f'ds_read_b64_tr_b16 {vr(r, 2)}, v{AR.AV+tau} offset:{4096*ks + 2048*u}')
def mfma_s(a):
    for s in range(8):
        c = '0' if s == 0 else vr(AR.S, 16)
        a(f'v_mfma_f32_32x32x16_bf16 {vr(AR.S,16)}, {vr(AR.K+4*s,4)}, {vr(AR.Q+4*s,4)}, {c}')
def softmax(a):
    sC = S_C; st = S_P
    S = AR.S; t = AR.T; M = AR.M; Lr = AR.L
    a(f'v_max3_f32 v{t}, v{S}, v{S+1}, v{S+2}')
    a(f'v_max3_f32 v{t+1}, v{S+3}, v{S+4}, v{S+5}')
    a(f'v_max3_f32 v{t}, v{t}, v{S+6}, v{S+7}')
    a(f'v_max3_f32 v{t+1}, v{t+1}, v{S+8}, v{S+9}')
    a(f'v_max3_f32 v{t}, v{t}, v{S+10}, v{S+11}')
    a(f'v_max3_f32 v{t+1}, v{t+1}, v{S+12}, v{S+13}')
    a(f'v_max3_f32 v{t}, v{t}, v{S+14}, v{S+15}')
    a(f'v_max_f32 v{t}, v{t}, v{t+1}')
    a(f'v_mov_b32 v{t+1}, v{t}')
    a(f'v_permlane32_swap_b32 v{t}, v{t+1}')
    a(f'v_max3_f32 v{t}, v{t}, v{t+1}, v{M}')
    a(f'v_cmp_gt_f32 {sr(st,2)}, v{t}, v{M}')
    skip = a.newlabel('L_skip')
    a(f's_cmp_eq_u64 {sr(st,2)}, 0')
    a(f's_cbranch_scc1 {skip}')
    a(f'v_sub_f32 v{t+1}, v{M}, v{t}')
    a(f'v_mul_f32 v{t+1}, s{sC}, v{t+1}')
    a(f'v_exp_f32 v{t+1}, v{t+1}')
    a(f'v_mov_b32 v{M}, v{t}')
    a(f'v_mul_f32 v{Lr}, v{Lr}, v{t+1}')
    for i in range(64):
        a(f'v_mul_f32 v{AR.O+i}, v{AR.O+i}, v{t+1}')
    a.label(skip)
    a(f'v_mul_f32 v{t+1}, s{sC}, v{M}')
    for i in range(16):
        a(f'v_fma_f32 v{S+i}, v{S+i}, s{sC}, -v{t+1}')
    for i in range(16):
        a(f'v_exp_f32 v{S+i}, v{S+i}')
    for i in range(8):
        a(f'v_cvt_pk_bf16_f32 v{AR.P+i}, v{S+2*i}, v{S+2*i+1}')
    a(f'v_add_f32 v{t}, v{S}, v{S+1}')
    a(f'v_add_f32 v{t+1}, v{S+2}, v{S+3}')
    for i in range(2, 8):
        a(f'v_add_f32 v{t + (i&1)}, v{t + (i&1)}, v{S+2*i}')
        a(f'v_add_f32 v{t + (i&1)}, v{t + (i&1)}, v{S+2*i+1}')
    a(f'v_add_f32 v{t}, v{t}, v{t+1}')
    a(f'v_add_f32 v{Lr}, v{Lr}, v{t}')
def sub_soft(a):
    a.label('SUB_SOFT')
    read_v(a)
    softmax(a)
    a('s_waitcnt lgkmcnt(0)')
    ret(a)
def sub_soft2(a):
    a.label('SUB_SOFT2')
    softmax(a)
    ret(a)
def mfma_pv(a):
    for ks in range(2):
        for tau in range(4):
            o = vr(AR.O + 16*tau, 16)
            a(f'v_mfma_f32_32x32x16_bf16 {o}, {vr(AR.V + (tau*2+ks)*4, 4)}, {vr(AR.P + 4*ks, 4)}, {o}')
def dma_tile8k(a, srdn, s_soff, s_lds, st, pol, vpat):
    if isinstance(pol, tuple):
        lo, hi, thr = pol
        L1 = a.newlabel('L_ph'); L2 = a.newlabel('L_pd')
        a(f's_cmp_ge_u32 s{S_B}, {thr}')
        a(f's_cbranch_scc1 {L1}')
        dma_tile8k(a, srdn, s_soff, s_lds, st, lo, vpat)
        a(f's_branch {L2}')
        a.label(L1)
        dma_tile8k(a, srdn, s_soff, s_lds, st, hi, vpat)
        a.label(L2)
        return
    for half in range(2):
        if half == 0:
            a(f's_mov_b32 m0, s{s_lds}')
            so = s_soff
        else:
            a(f's_add_u32 m0, s{s_lds}, 4096')
            a(f's_add_u32 s{st}, s{s_soff}, 4096')
            so = st
        for p in range(4):
            a(f'buffer_load_dwordx4 v{vpat(p)}, {sr(srdn,4)}, s{so} offen offset:{p*1024} {pol} lds')

def wo_dma(a, P, part):
    lst = [(i, i * 1024) for i in range(7)] if part == 0 else [(7, 7168)] + [(8 + i, 32768 + i * 1024) for i in range(8)]
    for n, (g, lo) in enumerate(lst):
        a(f's_add_u32 m0, s{S_WL}, {lo}')
        a(f's_add_u32 s{S_U + (n&1)}, s{S_WO}, {g * 8 * 1024}')
        a(f'buffer_load_dwordx4 v{AR.WD}, {sr(SRD_WQ,4)}, s{S_U + (n&1)} offen {P["polwo"]} lds')

VDBG = 128
def init_issue(a):
    a(f'global_load_dword v{VDBG}, v{VDBG+4}, {sr(P_DBG,2)} sc1')
def init_check(a):
    L = a.newlabel('L_ichk'); D = a.newlabel('L_iok')
    a(f's_mov_b32 s{S_SPIN}, {SPIN_LIMIT}')
    a.label(L)
    a(f'v_readfirstlane_b32 s{S_NONCE}, v{VDBG}')
    a(f's_cmp_lg_u32 s{S_NONCE}, 0')
    a(f's_cbranch_scc1 {D}')
    a('s_sleep 1')
    init_issue(a)
    a('s_waitcnt vmcnt(0)')
    a(f's_sub_u32 s{S_SPIN}, s{S_SPIN}, 1')
    a(f's_cmp_lg_u32 s{S_SPIN}, 0')
    a(f's_cbranch_scc1 {L}')
    a.label(D)

CMAP = [0, 1, 2, 8, 4, 5, 6, 10]
def epi_c(a, role, P):
    sOut = S_A
    sW = S_W; sC = S_C; st = S_T
    t = AR.T; L = AR.LANE; M = AR.M; Lr = AR.L
    MB = [0, 16, 96]
    CH = AR.S
    init_check(a)
    if OTAG:
        for i in (3, 7, 9, 11): a(f'v_mov_b32 v{CH+i}, s{S_NONCE}')
    else:
        for beta in range(2):
            a(f'v_mov_b32 v{VPOLL+2+beta}, s{S_FA+beta}')
        for beta in range(2):
            a(f'global_load_dword v{VPOLL+beta}, v{VPOLL+2+beta}, {sr(P_WS,2)} sc1')
        a(f'v_lshlrev_b32 v{WK.vL16}, 4, v{L}')
    a(f'v_mov_b32 v{t}, v{Lr}')
    a(f's_add_u32 s{st}, s{S_KL}, 7168')
    a(f'v_lshlrev_b32 v{t+1}, 2, v{L}')
    a(f'v_permlane32_swap_b32 v{Lr}, v{t}')
    a(f'v_add_u32 v{t+1}, s{st}, v{t+1}')
    a(f'v_cmp_lt_u32 vcc, 31, v{L}')
    a(f'v_add_f32 v{Lr}, v{Lr}, v{t}')
    a(f's_lshl_b32 s{st+1}, s{sW}, 12')
    a(f's_add_u32 s{st+1}, s{st+1}, {STG}')
    a(f'v_cndmask_b32 v{t}, v{M}, v{Lr}, vcc')
    a(f'ds_write_b32 v{t+1}, v{t}')
    a(f'v_lshlrev_b32 v{t+1}, 4, v{L}')
    a(f'v_add_u32 v{t+2}, s{S_VL}, v{t+1}')
    a(f'v_add_u32 v{t+3}, s{st+1}, v{t+1}')
    for k in range(1, 4):
        for j in range(4):
            if k < 3: a(f'ds_write_b128 v{t+2}, {vr(AR.O + 16*k + 4*j, 4)} offset:{(k-1)*4096 + j*1024}')
            else: a(f'ds_write_b128 v{t+3}, {vr(AR.O + 16*k + 4*j, 4)} offset:{j*1024}')
    a(f'v_and_b32 v{t+14}, 31, v{L}')
    a(f'v_lshlrev_b32 v{t+14}, 2, v{t+14}')
    for k in range(4):
        a(f's_sub_u32 s{st}, s{sW}, {k}')
        a(f's_and_b32 s{st}, s{st}, 3')
        a(f's_lshl_b32 s{st+1}, s{st}, 13')
        a(f's_add_u32 s{st+2}, s{st+1}, 7168')
        a(f'v_add_u32 v{t+10+k}, s{st+2}, v{t+14}')
        if k >= 1:
            if k < 3:
                a(f's_add_u32 s{st+1}, s{st+1}, {32768 + (k-1)*4096}')
            else:
                a(f's_lshl_b32 s{st+1}, s{st}, 12')
                a(f's_add_u32 s{st+1}, s{st+1}, {STG}')
            a(f'v_add_u32 v{AR.AK+k}, s{st+1}, v{t+1}')
    a('s_waitcnt lgkmcnt(0)')
    ts(a, 22)
    a('s_barrier')
    ts(a, 23)
    for k in range(4):
        a(f'ds_read2_b32 {vr(t+2+2*k, 2)}, v{t+10+k} offset0:0 offset1:32')
    for k in range(1, 4):
        for j in range(4):
            a(f'ds_read_b128 {vr(MB[k-1] + 4*j, 4)}, v{AR.AK+k} offset:{j*1024}')
    a('s_waitcnt lgkmcnt(12)')
    m = [t+2+2*w for w in range(4)]
    l = [t+3+2*w for w in range(4)]
    a(f'v_max3_f32 v{t}, v{m[0]}, v{m[1]}, v{m[2]}')
    a(f'v_max_f32 v{t}, v{t}, v{m[3]}')
    for w in range(4):
        a(f'v_sub_f32 v{m[w]}, v{m[w]}, v{t}')
    for w in range(4):
        a(f'v_mul_f32 v{m[w]}, s{sC}, v{m[w]}')
    for w in range(4):
        a(f'v_exp_f32 v{m[w]}, v{m[w]}')
    a(f'v_mul_f32 v{t}, v{m[0]}, v{l[0]}')
    for w in range(1, 4):
        a(f'v_fma_f32 v{t}, v{m[w]}, v{l[w]}, v{t}')
    a(f'v_rcp_f32 v{t}, v{t}')
    for w in range(4):
        a(f'v_mul_f32 v{m[w]}, v{m[w]}, v{t}')
    for i in range(16):
        a(f'v_mul_f32 v{AR.O+i}, v{AR.O+i}, v{m[0]}')
    for k in range(1, 4):
        a(f's_waitcnt lgkmcnt({12 - 4*k})')
        for i in range(16):
            a(f'v_fma_f32 v{AR.O+i}, v{MB[k-1]+i}, v{m[k]}, v{AR.O+i}')
    if OTAG:
        for i in range(8):
            a(f'v_cvt_pk_bf16_f32 v{CH+CMAP[i]}, v{AR.O+2*i}, v{AR.O+2*i+1}')
        a(f's_lshl_b32 s{st}, s{sW}, 12')
        a(f'v_add_u32 v{t+1}, s{st}, v{t+1}')
        for c in range(3):
            a(f'global_store_dwordx4 v{t+1}, {vr(CH+4*c,4)}, {sr(sOut,2)} offset:{c*1024} sc1')
    else:
        for i in range(8):
            a(f'v_cvt_pk_bf16_f32 v{AR.P+i}, v{AR.O+2*i}, v{AR.O+2*i+1}')
        a(f's_lshl_b32 s{st}, s{sW}, 11')
        a(f'v_add_u32 v{t+1}, s{st}, v{t+1}')
        ts(a, 24)
        a('s_waitcnt vmcnt(0)')
        ts(a, 25)
        a(f'global_store_dwordx4 v{t+1}, {vr(AR.P,4)}, {sr(sOut,2)} sc1')
        a(f'global_store_dwordx4 v{t+1}, {vr(AR.P+4,4)}, {sr(sOut,2)} offset:1024 sc1')
        for beta in range(2):
            Ls = a.newlabel('L_ne')
            a(f's_mov_b32 s{S_ST+beta}, 0')
            if P.get('early', 1):
                tagcheck(a, [VPOLL + beta], t+2)
                a(f's_cbranch_scc0 {Ls}')
                a(f's_mov_b32 s{S_ST+beta}, 3')
                for i in range(8): oload8(a, beta, i)
                a.label(Ls)
    if role == 'B': a('s_branch L_EPI2')

def epi2(a, P):
    a.label('L_EPI2')
    if OTAG: ts(a, 4)
    ts(a, 26)
    a('s_barrier')
    ts(a, 27)
    if 'nowo2' not in ABL: wo_dma(a, P, 1)
    ts(a, 28)
    worky_setup(a, P)
    ts(a, 29)
    if OTAG:
        ts(a, 5)
        return
    a(f's_lshl_b32 s{S_T}, s{S_B}, 5')
    a(f's_lshl_b32 s{S_T+1}, s{S_PROB}, 8')
    a(f's_add_u32 s{S_T}, s{S_T}, s{S_T+1}')
    a(f's_add_u32 s{S_T}, s{S_T}, s{S_H}')
    a(f's_lshl_b32 s{S_T}, s{S_T}, 7')
    a(f's_add_u32 s{S_T}, s{S_T}, {FL_O2}')
    a(f'v_mov_b32 v{VPOLL+4}, s{S_T}')
    a(f'v_mov_b32 v{VPOLL+5}, s{S_NONCE}')
    if P.get('ackw', 1):
        nwo = 0 if 'nowo2' in ABL else 9
        a(f's_add_u32 s{S_T}, s{S_ST}, s{S_ST+1}')
        a(f's_cmp_eq_u32 s{S_T}, 0')
        a('s_cbranch_scc1 L_aw0')
        a(f's_cmp_eq_u32 s{S_T}, 3')
        a('s_cbranch_scc1 L_aw1')
        a(f's_waitcnt vmcnt({nwo + 16})')
        a('s_branch L_awd')
        a.label('L_aw1')
        a(f's_waitcnt vmcnt({nwo + 8})')
        a('s_branch L_awd')
        a.label('L_aw0')
        a(f's_waitcnt vmcnt({nwo})')
        a.label('L_awd')
    else:
        a('s_waitcnt vmcnt(0)')
    ts(a, 4)
    a('s_barrier')
    a(f's_cmp_lg_u32 s{S_W}, 0')
    a('s_cbranch_scc1 L_noflag')
    store_flag(a, P_WS, VPOLL+4, VPOLL+5)
    ts(a, 5)
    a('s_waitcnt vmcnt(1)')
    a('s_branch L_flagd')
    a.label('L_noflag')
    a('s_waitcnt vmcnt(0)')
    a.label('L_flagd')

TLBW = None
def icheck_site(a):
    L = a.newlabel('L_nic')
    a(f's_cmp_eq_u32 s{S_CNT}, 4')
    a(f's_cbranch_scc0 {L}')
    init_issue(a)
    a.label(L)
    if TLBW is not None:
        L = a.newlabel('L_ntw')
        a(f's_cmp_eq_u32 s{S_CNT}, {TLBW}')
        a(f's_cbranch_scc0 {L}')
        a(f'v_lshlrev_b32 v{VDBG+8}, 19, v{AR.LANE}')
        a(f'v_add_u32 v{VDBG+8}, 0x30000, v{VDBG+8}')
        a(f'v_lshlrev_b32 v{VDBG+9}, 13, v{AR.LANE}')
        a(f'global_load_dword v{VDBG+10}, v{VDBG+8}, {sr(P_WS,2)}')
        a(f'global_load_dword v{VDBG+11}, v{VDBG+9}, {sr(P_OUT,2)}')
        a.label(L)

def gen_unit(a, P, role):
    isB = role == 'B'
    POLK = P.get('polK' + role, P['polkv'])
    POLV = P.get('polV' + role, P['polkv'])
    PX, PWQ, PK, PV = (P_BX, P_BWQ, P_BK, P_BV) if isB else (P_AX, P_AWQ, P_AK, P_AV)
    a.label('ROLE_' + role)
    if not isB:
        if P.get('noA'): a('s_branch L_end')
        a(f's_setprio {P["prio_A0"]}')
        a('s_cmp_eq_u32 s2, 256')
        a('s_cbranch_scc0 A_noep')
        a(f's_cmp_eq_u32 s{S_W}, 0')
        a('s_cbranch_scc0 A_noep')
        a(f'v_mov_b32 v{AR.WR1}, {WS_E}')
        a(f'global_load_dword v{AR.WR0}, v{AR.WR1}, {sr(P_WS,2)} sc1')
        a.label('A_noep')
    a(f's_and_b32 s{S_T}, s{S_R}, 3')
    a(f's_lshr_b32 s{S_B}, s{S_R}, 2')
    a(f's_lshl_b32 s{S_H}, s{S_X}, 2')
    a(f's_add_u32 s{S_H}, s{S_H}, s{S_T}')
    a(f's_lshl_b32 s{S_T}, s{S_B}, 15')
    a(f's_add_u32 s{SRD_X}, s{PX}, s{S_T}')
    a(f's_addc_u32 s{SRD_X+1}, s{PX+1}, 0')
    srd(a, SRD_X, 32768)
    a(f's_lshl_b32 s{S_T}, s{S_H}, 8')
    a(f's_add_u32 s{SRD_WQ}, s{PWQ}, s{S_T}')
    a(f's_addc_u32 s{SRD_WQ+1}, s{PWQ+1}, 0')
    a(f's_sub_u32 s{S_T+1}, 4194304, s{S_T}')
    srd(a, SRD_WQ, f's{S_T+1}')
    a(f's_and_b32 s{S_STEP}, s{S_B}, 3')
    a(f's_lshl_b32 s{S_T}, s{S_B}, 5')
    a(f's_add_u32 s{S_T}, s{S_T}, s{S_H}')
    if isB:
        a(f's_mov_b32 s{S_G}, s{S_T}')
    else:
        a(f's_lshl_b32 s{S_G}, s{S_B}, 3')
        a(f's_add_u32 s{S_G}, s{S_G}, s{S_X}')
    a(f's_lshl_b32 s{S_T+1}, s{S_G}, 19')
    a(f's_lshr_b32 s{S_T+2}, s{S_G}, 13')
    a(f's_add_u32 s{SRD_K}, s{PK}, s{S_T+1}')
    a(f's_addc_u32 s{SRD_K+1}, s{PK+1}, s{S_T+2}')
    srd(a, SRD_K, 524288)
    a(f's_add_u32 s{SRD_V}, s{PV}, s{S_T+1}')
    a(f's_addc_u32 s{SRD_V+1}, s{PV+1}, s{S_T+2}')
    srd(a, SRD_V, 524288)
    if isB: a(f's_add_u32 s{S_T}, s{S_T}, 256')
    a(f's_lshl_b32 s{S_T}, s{S_T}, {14 if OTAG else 13}')
    a(f's_add_u32 s{S_T}, s{S_T}, {WS_O}')
    a(f's_add_u32 s{S_A}, s{P_WS}, s{S_T}')
    a(f's_addc_u32 s{S_A+1}, s{P_WS+1}, 0')
    setup_dma_B(a)
    a(f's_lshl_b32 s{S_KL}, s{S_W}, 13')
    a(f's_add_u32 s{S_VL}, s{S_KL}, 32768')
    a(f's_mul_i32 s{S_ROT}, s{2 if isB else S_G}, 5')
    a(f's_mul_i32 s{S_T}, s{S_W}, 3')
    a(f's_add_u32 s{S_ROT}, s{S_ROT}, s{S_T}')
    a(f's_and_b32 s{S_ROT}, s{S_ROT}, 15')
    a(f's_lshl_b32 s{S_ROT}, s{S_ROT}, 13')
    a(f's_lshl_b32 s{S_WB}, s{S_W}, 17')
    a(f's_add_u32 s{S_SO}, s{S_WB}, s{S_ROT}')
    kp = lambda p: AR.DK + p
    vp = lambda p: AR.DV
    TL = P.get('t' + role, '')
    TL = [x for x in TL.split(',') if x]
    def touches():
        if not TL: return
        a(f'v_lshlrev_b32 v{AR.WR1}, 7, v{AR.LANE}')
        for x in TL:
            k = int(x[1:]); srdn = SRD_K if x[0] == 'K' else SRD_V
            a(f's_add_u32 s{S_U}, s{S_ROT}, {k * 8192}')
            a(f's_and_b32 s{S_U}, s{S_U}, 0x1ffff')
            a(f's_add_u32 s{S_U}, s{S_U}, s{S_WB}')
            a(f'buffer_load_dword v{AR.WR0}, v{AR.WR1}, {sr(srdn,4)}, s{S_U} offen {P.get("poltouch","")}')
    def kdma():
        dma_tile8k(a, SRD_K, S_SO, S_KL, S_U, POLK, kp)
        touches()
    npre = 0
    def pretouch(which):
        if which == 'wq':
            a(f'v_lshrrev_b32 v{AR.WR1}, 2, v{AR.LANE}')
            a(f's_lshl_b32 s{S_U}, s{S_B}, 6')
            a(f's_lshl_b32 s{S_U+2}, s{S_W}, 4')
            a(f's_add_u32 s{S_U}, s{S_U}, s{S_U+2}')
            a(f'v_add_u32 v{AR.WR1}, s{S_U}, v{AR.WR1}')
            a(f'v_lshlrev_b32 v{AR.WR1}, 13, v{AR.WR1}')
            a(f'v_and_b32 v{QT+5}, 3, v{AR.LANE}')
            a(f'v_lshl_add_u32 v{AR.WR1}, v{QT+5}, 6, v{AR.WR1}')
            a(f's_lshl_b32 s{S_U}, s{S_H}, 8')
            a(f'v_add_u32 v{AR.WR1}, s{S_U}, v{AR.WR1}')
            a(f'global_load_dword v{AR.WR0}, v{AR.WR1}, {sr(P_AWQ,2)}')
        else:
            a(f'v_lshlrev_b32 v{AR.WR1}, 5, v{AR.LANE}')
            a(f's_lshl_b32 s{S_U}, s{S_R}, 13')
            a(f's_lshl_b32 s{S_U+2}, s{S_W}, 11')
            a(f's_add_u32 s{S_U}, s{S_U}, s{S_U+2}')
            a(f'v_add_u32 v{AR.WR1}, s{S_U}, v{AR.WR1}')
            a(f'global_load_dword v{AR.WR0}, v{AR.WR1}, {sr(P_AX,2)}')
    PT = [x for x in P.get('pre', '').split(',') if x] if isB else []
    PTPOS = P.get('prepos', 0)
    if PTPOS == 0:
        for x in PT: pretouch(x)
    kdma0 = kdma
    def kdma():
        kdma0()
        if PTPOS == 1:
            for x in PT: pretouch(x)
    kpos = P['kpos'] if isB else P['kposA']
    if kpos < 0: kdma()
    qb_loads(a, P, kpos, kdma if kpos >= 0 else None)
    ts(a, 21)
    qb_compute(a, P, kpos, 8 + len(TL) + (len(PT) if PTPOS == 1 else 0))
    ts(a, 1)
    if not isB:
        a('s_cmp_eq_u32 s2, 256')
        a('s_cbranch_scc0 A_noep2')
        a(f's_cmp_eq_u32 s{S_W}, 0')
        a('s_cbranch_scc0 A_noep2')
        a(f'v_readfirstlane_b32 s{S_T}, v{AR.WR0}')
        a(f's_add_u32 s{S_T}, s{S_T}, {NONCE_C}')
        a(f's_cmp_eq_u32 s{S_T}, 0')
        a(f's_cselect_b32 s{S_T}, {NONCE_C}, s{S_T}')
        a(f'v_mov_b32 v{AR.WR0}, s{S_T}')
        a(f'v_mov_b32 v{AR.WR1}, 0')
        a('s_mov_b64 exec, 1')
        a(f'global_store_dword v{AR.WR1}, v{AR.WR0}, {sr(P_WS,2)} offset:{WS_E} sc1')
        a(f'global_store_dword v{AR.WR1}, v{AR.WR0}, {sr(P_DBG,2)} sc1')
        a('s_mov_b64 exec, -1')
        a.label('A_noep2')
    OUT = 16
    a('s_barrier')
    bmode = P['bmode'] if isB else P['bmodeA']
    if bmode == 0:
        dma_tile8k(a, SRD_V, S_SO, S_VL, S_U, POLV, vp)
    t = AR.T; L = AR.LANE
    a(f'v_lshrrev_b32 v{t+8}, 4, v{L}')
    a(f'v_lshlrev_b32 v{t+8}, 11, v{t+8}')
    a(f'v_and_b32 v{t+9}, 15, v{L}')
    a(f'v_lshl_add_u32 v{t+8}, v{t+9}, 4, v{t+8}')
    a(f's_lshl_b32 s{S_T}, s{S_W}, 9')
    a(f's_add_u32 s{S_T}, s{S_T}, 65536')
    a(f'v_add_u32 v{t+8}, s{S_T}, v{t+8}')
    a(f'ds_write_b128 v{t+8}, {vr(OUT,4)}')
    a(f'ds_write_b128 v{t+8}, {vr(OUT+4,4)} offset:256')
    a(f's_mov_b32 s{S_U+1}, s{S_KL}')
    a(f's_mov_b32 s{S_U+2}, s{S_VL}')
    a(f's_mov_b32 s{S_U+3}, s{S_W}')
    call(a, 'SUB_READS')
    a('s_waitcnt lgkmcnt(0)')
    a('s_barrier')
    a(f'v_lshrrev_b32 v{t}, 5, v{L}')
    a(f'v_lshlrev_b32 v{t}, 12, v{t}')
    a(f'v_and_b32 v{t+1}, 31, v{L}')
    a(f'v_lshl_add_u32 v{t}, v{t+1}, 4, v{t}')
    a(f'v_add_u32 v{t}, 65536, v{t}')
    for s in range(8):
        a(f'ds_read_b128 {vr(AR.Q+4*s,4)}, v{t} offset:{s*512}')
    PWO = P_BWO if isB else P_AWO
    a(f's_lshr_b32 s{S_T}, s{S_R}, 2')
    a(f's_lshl_b32 s{S_T}, s{S_T}, 7')
    a(f's_add_u32 s{SRD_WQ}, s{PWO}, s{S_T}')
    a(f's_addc_u32 s{SRD_WQ+1}, s{PWO+1}, 0')
    a(f's_sub_u32 s{S_T+1}, 4194304, s{S_T}')
    srd(a, SRD_WQ, f's{S_T+1}')
    a(f's_lshl_b32 s{S_WO}, s{S_X}, 2')
    a(f's_add_u32 s{S_WO}, s{S_WO}, s{S_W}')
    a(f's_lshl_b32 s{S_WO}, s{S_WO}, 17')
    a(f's_lshl_b32 s{S_WL}, s{S_W}, 13')
    a(f'v_lshrrev_b32 v{AR.WD}, 3, v{L}')
    a(f'v_lshlrev_b32 v{AR.WD}, 10, v{AR.WD}')
    a(f'v_and_b32 v{t+4}, 7, v{L}')
    a(f'v_lshl_add_u32 v{AR.WD}, v{t+4}, 4, v{AR.WD}')
    a(f's_mov_b32 s{S_PROB}, {1 if isB else 0}')
    if not OTAG:
        st = S_T
        a(f's_and_b32 s{st}, s{S_R}, 3')
        a(f's_lshl_b32 s{st}, s{st}, 1')
        a(f's_add_u32 s{st}, s{st}, {8 if isB else 0}')
        a(f's_lshl_b32 s{st}, s{st}, 5')
        a(f's_lshl_b32 s{st+1}, s{S_X}, 2')
        a(f's_add_u32 s{st}, s{st}, s{st+1}')
        a(f's_add_u32 s{st}, s{st}, s{S_W}')
        a(f's_lshl_b32 s{st+1}, s{st}, 13')
        a(f's_add_u32 s{st+1}, s{st+1}, {WS_O}')
        a(f's_add_u32 s{SRD_X}, s{P_WS}, s{st+1}')
        a(f's_addc_u32 s{SRD_X+1}, s{P_WS+1}, 0')
        srd(a, SRD_X, 262144 + 8192)
        a(f's_lshr_b32 s{st+1}, s{S_W}, 1')
        a(f's_lshl_b32 s{S_OS4}, s{st+1}, 18')
        a(f's_add_u32 s{S_OS4+1}, s{S_OS4}, 4096')
        a(f's_xor_b32 s{S_OS4+2}, s{S_OS4}, 262144')
        a(f's_add_u32 s{S_OS4+3}, s{S_OS4+2}, 4096')
        a(f's_lshl_b32 s{st}, s{st}, 7')
        a(f's_add_u32 s{st}, s{st}, {FL_O2}')
        a(f's_lshl_b32 s{st+1}, s{st+1}, 12')
        a(f's_add_u32 s{S_FA}, s{st}, s{st+1}')
        a(f's_xor_b32 s{st+1}, s{st+1}, 4096')
        a(f's_add_u32 s{S_FA+1}, s{st}, s{st+1}')
    a(f's_mov_b32 s{S_CNT}, 0')
    a(f'v_mov_b32 v{VDBG+4}, 0')
    ts(a, 2)
    a(f's_setprio {P["prio_B" if isB else "prio_A"]}')
    def adv():
        a(f's_add_u32 s{S_ROT}, s{S_ROT}, 8192')
        a(f's_and_b32 s{S_ROT}, s{S_ROT}, 0x1ffff')
        a(f's_add_u32 s{S_SO}, s{S_WB}, s{S_ROT}')
    def loop_end(lbl, lim):
        ts(a, 32, S_CNT)
        a(f's_add_u32 s{S_CNT}, s{S_CNT}, 1')
        a(f's_cmp_lt_u32 s{S_CNT}, {lim}')
        a(f's_cbranch_scc1 {lbl}')
    def body0(lbl, entry=None):
        a.label(lbl)
        if (not isB) and P.get('ahi') is not None:
            Lp = a.newlabel('L_pr')
            a(f's_cmp_eq_u32 s{S_CNT}, {P["ahi"]}')
            a(f's_cbranch_scc0 {Lp}')
            a(f's_setprio {P["prio_A2"]}')
            a.label(Lp)
        a('s_waitcnt vmcnt(8)')
        if entry: a.label(entry)
        read_k(a)
        adv()
        a('s_waitcnt lgkmcnt(0)')
        icheck_site(a)
        Lk = a.newlabel('L_knext'); Lk2 = a.newlabel('L_kdone')
        a(f's_cmp_eq_u32 s{S_CNT}, 15')
        a(f's_cbranch_scc0 {Lk}')
        wo_dma(a, P, 0)
        mfma_s(a)
        a('s_waitcnt vmcnt(7)')
        a(f's_branch {Lk2}')
        a.label(Lk)
        dma_tile8k(a, SRD_K, S_SO, S_KL, S_U, POLK, kp)
        mfma_s(a)
        a('s_waitcnt vmcnt(8)')
        a.label(Lk2)
        call(a, 'SUB_SOFT')
        Lv = a.newlabel('L_vskip')
        a(f's_cmp_eq_u32 s{S_CNT}, 15')
        a(f's_cbranch_scc1 {Lv}')
        dma_tile8k(a, SRD_V, S_SO, S_VL, S_U, POLV, vp)
        a.label(Lv)
        mfma_pv(a)
        loop_end(lbl, 16)
    def body1(lbl, lim):
        a.label(lbl)
        a('s_waitcnt vmcnt(0)')
        dma_tile8k(a, SRD_V, S_SO, S_VL, S_U, POLV, vp)
        read_k(a)
        adv()
        a('s_waitcnt lgkmcnt(0)')
        mfma_s(a)
        call(a, 'SUB_SOFT2')
        a('s_waitcnt vmcnt(0)')
        icheck_site(a)
        if lim == 16:
            Lk = a.newlabel('L_knext'); Lk2 = a.newlabel('L_kdone')
            a(f's_cmp_eq_u32 s{S_CNT}, 15')
            a(f's_cbranch_scc0 {Lk}')
            wo_dma(a, P, 0)
            a(f's_branch {Lk2}')
            a.label(Lk)
            dma_tile8k(a, SRD_K, S_SO, S_KL, S_U, POLK, kp)
            a.label(Lk2)
        else:
            dma_tile8k(a, SRD_K, S_SO, S_KL, S_U, POLK, kp)
        read_v(a)
        a('s_waitcnt lgkmcnt(0)')
        mfma_pv(a)
        loop_end(lbl, lim)
    hyb = P.get('hyb' + role)
    if bmode == 0:
        body0(role + '_loop')
    elif hyb is None:
        body1(role + '_loop', 16)
    else:
        body1(role + '_loop', hyb)
        a('s_waitcnt vmcnt(0)')
        dma_tile8k(a, SRD_V, S_SO, S_VL, S_U, POLV, vp)
        a(f's_branch {role}_entry0')
        body0(role + '_loop0', role + '_entry0')
    a(f's_setprio {P["prio_start"] if isB else P["prio_W"]}')
    ts(a, 3)
    epi_c(a, role, P)
    if not isB:
        epi2(a, P)
        if 'nowk' not in ABL: worky(a, P)
        a('s_branch L_end')

YWF = 128; YOF = 0; YAC = 64
class WK:
    vF = 192; vY = 193; vZ = 194; vOne = 195; vP = 196; vOut = 197; vL16 = 198; t = 199
S_OS = 60
S_OS4 = 72
S_YS = 76
S_YH = 77
def worky_setup(a, P):
    L = AR.LANE; t = WK.t; st = S_T
    S_MT = S_U + 2; S_NT = S_U + 3
    a(f's_and_b32 s{S_MT}, s{S_R}, 3')
    a(f's_lshr_b32 s{S_NT}, s{S_R}, 2')
    a(f's_lshl_b32 s{S_WKL}, s{S_W}, 13')
    a(f'v_lshlrev_b32 v{WK.vL16}, 4, v{L}')
    a(f's_lshl_b32 s{S_WH}, s{S_X}, 2')
    a(f's_add_u32 s{S_WH}, s{S_WH}, s{S_W}')
    a(f'v_mov_b32 v{WK.vOne}, 1')
    a(f'v_lshrrev_b32 v{t}, 5, v{L}')
    a(f'v_lshlrev_b32 v{t}, 2, v{t}')
    a(f'v_bfe_u32 v{t+1}, v{L}, 2, 2')
    a(f'v_add_u32 v{t}, v{t}, v{t+1}')
    a(f'v_lshlrev_b32 v{t}, 7, v{t}')
    a(f'v_bfe_u32 v{t+1}, v{L}, 4, 1')
    a(f'v_lshl_add_u32 v{t}, v{t+1}, 5, v{t}')
    a(f'v_and_b32 v{t+1}, 3, v{L}')
    a(f'v_lshl_add_u32 v{t}, v{t+1}, 3, v{t}')
    a(f's_and_b32 s{st}, s{S_W}, 1')
    a(f's_lshl_b32 s{st}, s{st}, 6')
    a(f's_add_u32 s{st+1}, s{S_WKL}, s{st}')
    a(f'v_add_u32 v{AR.WR0}, s{st+1}, v{t}')
    a(f's_xor_b32 s{st+1}, s{st+1}, 64')
    a(f'v_add_u32 v{AR.WR1}, s{st+1}, v{t}')
    if OTAG:
        a(f's_lshl_b32 s{st}, s{S_PROB}, 3')
        a(f's_lshl_b32 s{st+1}, s{S_MT}, 1')
        a(f's_add_u32 s{st}, s{st}, s{st+1}')
        a(f's_lshl_b32 s{st}, s{st}, 5')
        a(f's_add_u32 s{st}, s{st}, s{S_WH}')
        a(f's_lshl_b32 s{st+1}, s{st}, 14')
        a(f's_add_u32 s{st+1}, s{st+1}, {WS_O}')
        a(f's_add_u32 s{SRD_X}, s{P_WS}, s{st+1}')
        a(f's_addc_u32 s{SRD_X+1}, s{P_WS+1}, 0')
        srd(a, SRD_X, 32 * OU + OU)
    a(f's_lshl_b32 s{st}, s{S_PROB}, 5')
    a(f's_lshl_b32 s{st+1}, s{S_MT}, 3')
    a(f's_add_u32 s{st}, s{st}, s{st+1}')
    a(f's_add_u32 s{st}, s{st}, s{S_NT}')
    a(f's_lshl_b32 s{st+1}, s{st}, 17')
    a(f's_add_u32 s{st+1}, s{st+1}, {WS_Y}')
    a(f's_add_u32 s{SRD_K}, s{P_WS}, s{st+1}')
    a(f's_addc_u32 s{SRD_K+1}, s{P_WS+1}, 0')
    srd(a, SRD_K, YT)
    a(f's_lshl_b32 s{S_YS}, s{S_X}, 14')
    a(f's_lshl_b32 s{st}, s{S_W}, 12')
    a(f's_add_u32 s{S_YS}, s{S_YS}, s{st}')
    a(f's_mov_b32 s{S_YH}, 65536')
    a(f's_lshr_b32 s{st}, s{S_X}, 2')
    a(f's_lshl_b32 s{st}, s{st}, 13')
    a(f's_and_b32 s{st+1}, s{S_W}, 1')
    a(f's_lshl_b32 s{st+1}, s{st+1}, 12')
    a(f's_add_u32 s{st}, s{st}, s{st+1}')
    a(f's_and_b32 s{st+1}, s{S_X}, 3')
    a(f's_lshl_b32 s{st+1}, s{st+1}, 7')
    a(f's_add_u32 s{st}, s{st}, s{st+1}')
    a(f'v_lshrrev_b32 v{t}, 4, v{L}')
    a(f'v_bfe_u32 v{t+1}, v{L}, 3, 1')
    a(f'v_and_b32 v{t+2}, 7, v{L}')
    a(f'v_lshlrev_b32 v{t+3}, 14, v{t}')
    a(f'v_lshl_add_u32 v{t+3}, v{t+1}, 9, v{t+3}')
    a(f'v_lshl_add_u32 v{t+3}, v{t+2}, 4, v{t+3}')
    a(f'v_add_u32 v{t+3}, s{st}, v{t+3}')
    a(f's_lshr_b32 s{st}, s{S_W}, 1')
    a(f's_lshl_b32 s{st+1}, s{st}, 10')
    a(f'v_add_u32 v{WK.vP}, s{st+1}, v{t+3}')
    a(f's_lshl_b32 s{st+1}, s{st}, 3')
    a(f's_add_u32 s{st+1}, s{st+1}, 2048')
    a(f'v_add_u32 v{WK.vY}, s{st+1}, v{t+3}')
    a(f's_lshl_b32 s{st}, s{S_MT}, 1')
    a(f's_lshr_b32 s{st+1}, s{S_X}, 2')
    a(f's_add_u32 s{st}, s{st}, s{st+1}')
    a(f's_lshl_b32 s{st}, s{st}, 16')
    a(f's_and_b32 s{st+1}, s{S_X}, 3')
    a(f's_lshl_b32 s{st+1}, s{st+1}, 14')
    a(f's_add_u32 s{st}, s{st}, s{st+1}')
    a(f's_lshl_b32 s{st+1}, s{S_PROB}, 10')
    a(f's_add_u32 s{st}, s{st}, s{st+1}')
    a(f's_lshl_b32 s{st+1}, s{S_NT}, 7')
    a(f's_add_u32 s{st}, s{st}, s{st+1}')
    a(f's_and_b32 s{st+1}, s{S_W}, 1')
    a(f's_lshl_b32 s{st+1}, s{st+1}, 6')
    a(f's_add_u32 s{st}, s{st}, s{st+1}')
    a(f's_lshr_b32 s{st+1}, s{S_W}, 1')
    a(f's_lshl_b32 s{st+1}, s{st+1}, 4')
    a(f's_add_u32 s{st}, s{st}, s{st+1}')
    a(f'v_lshlrev_b32 v{t+3}, 11, v{t+2}')
    a(f'v_lshl_add_u32 v{t+3}, v{t+1}, 5, v{t+3}')
    a(f'v_lshl_add_u32 v{t+3}, v{t}, 2, v{t+3}')
    a(f'v_add_u32 v{WK.vOut}, s{st}, v{t+3}')
    if OTAG:
        a(f's_lshr_b32 s{st}, s{S_W}, 1')
        a(f's_lshl_b32 s{S_OS}, s{st}, 19')
        a(f's_xor_b32 s{S_OS+4}, s{S_OS}, {32 * OU}')
        for wp in range(1, 4):
            a(f's_add_u32 s{S_OS+wp}, s{S_OS}, {wp*4096}')
            a(f's_add_u32 s{S_OS+4+wp}, s{S_OS+4}, {wp*4096}')

S_ST = 98
S_NP = 92
YC = 208
def oreg(beta, wp, c):
    return YOF + (beta*8 + 2*wp + c)*4 if c < 2 else YC + (beta*4 + wp)*4
def oload(a, beta, wp, c):
    a(f'buffer_load_dwordx4 {vr(oreg(beta, wp, c), 4)}, v{WK.vL16}, {sr(SRD_X,4)}, s{S_OS + beta*4 + wp} offen offset:{c*1024} sc1')
def oload8(a, beta, i):
    a(f'buffer_load_dwordx4 {vr(YOF + (beta*8+i)*4, 4)}, v{WK.vL16}, {sr(SRD_X,4)}, s{S_OS4 + beta*2 + (i>>2)} offen offset:{(i&3)*1024} sc1')
def tagcheck(a, regs, tmp):
    regs = list(regs)
    mn, mx = tmp, tmp + 1
    if len(regs) == 1:
        a(f'v_cmp_ne_u32 vcc, s{S_NONCE}, v{regs[0]}')
        a('s_cmp_eq_u64 vcc, 0')
        return
    assert len(regs) >= 3
    a(f'v_min3_u32 v{mn}, v{regs[0]}, v{regs[1]}, v{regs[2]}')
    a(f'v_max3_u32 v{mx}, v{regs[0]}, v{regs[1]}, v{regs[2]}')
    rest = regs[3:]
    while rest:
        if len(rest) >= 2:
            a(f'v_min3_u32 v{mn}, v{mn}, v{rest[0]}, v{rest[1]}')
            a(f'v_max3_u32 v{mx}, v{mx}, v{rest[0]}, v{rest[1]}')
            rest = rest[2:]
        else:
            a(f'v_min_u32 v{mn}, v{mn}, v{rest[0]}')
            a(f'v_max_u32 v{mx}, v{mx}, v{rest[0]}')
            rest = rest[1:]
    a(f'v_xor_b32 v{mn}, s{S_NONCE}, v{mn}')
    a(f'v_xor_b32 v{mx}, s{S_NONCE}, v{mx}')
    a(f'v_or_b32 v{mn}, v{mn}, v{mx}')
    a(f'v_cmp_ne_u32 vcc, 0, v{mn}')
    a('s_cmp_eq_u64 vcc, 0')

VPOLL = 240
def opoll(a, P, beta, PW):
    if P.get('narrow', 1):
        a(f'buffer_load_dword v{VPOLL + beta}, v{WK.vF}, {sr(SRD_X,4)}, s{S_OS + beta*4 + PW} offen offset:2048 sc1')
    else:
        oload(a, beta, PW, 2)
def ophase_tag(a, P):
    t = WK.t; vL16 = WK.vL16
    PW = P.get('pollw', 3)
    NARROW = P.get('narrow', 1)
    NLD = 12 if NARROW else 11
    a(f'v_mov_b32 v{WK.vF}, {63*16 + 12}')
    ts(a, 8)
    Ltop = a.newlabel('L_top'); Lchk = a.newlabel('L_chk'); Ld = a.newlabel('L_done')
    a(f's_mov_b32 s{S_ST}, 0')
    a(f's_mov_b32 s{S_ST+1}, 0')
    a(f's_mov_b32 s{S_SPIN}, {SPIN_LIMIT}')
    opoll(a, P, 0, PW)
    opoll(a, P, 1, PW)
    a(f'v_add_u32 v{t}, s{S_WKL}, v{vL16}')
    for k in range(1, 4):
        a(f's_xor_b32 s{S_T}, s{S_W}, {k}')
        a(f's_lshl_b32 s{S_T}, s{S_T}, 13')
        a(f'v_add_u32 v{t+k}, s{S_T}, v{vL16}')
    a('s_waitcnt vmcnt(0)')
    for Tt in range(4):
        for u in range(2):
            for nu in range(2):
                for v in range(2):
                    r = YWF + ((Tt*2+u)*2 + nu)*4 + 2*v
                    a(f'ds_read_b64_tr_b16 {vr(r, 2)}, v{AR.WR0 + nu} offset:{(Tt>>1)*32768 + (32*(Tt&1) + 16*u + 8*v) * 128}')
    a(f's_branch {Lchk}')
    a.label(Ltop)
    a(f's_mov_b32 s{S_NP}, 0')
    for beta in range(2):
        Ls = a.newlabel('L_sk')
        a(f's_cmp_lg_u32 s{S_ST+beta}, 0')
        a(f's_cbranch_scc1 {Ls}')
        opoll(a, P, beta, PW)
        a(f's_add_u32 s{S_NP}, s{S_NP}, 1')
        a.label(Ls)
    for beta in range(2):
        Ls = a.newlabel('L_np'); Lw1 = a.newlabel('L_w1'); Lw11 = a.newlabel('L_w11'); Lw = a.newlabel('L_w'); Lbad = a.newlabel('L_bad')
        a(f's_cmp_eq_u32 s{S_ST+beta}, 1')
        a(f's_cbranch_scc0 {Ls}')
        if beta == 0:
            a(f's_cmp_eq_u32 s{S_ST+1}, 1')
            a(f's_cbranch_scc1 {Lw11}')
        a(f's_cmp_eq_u32 s{S_NP}, 0')
        a(f's_cbranch_scc0 {Lw1}')
        a('s_waitcnt vmcnt(0)')
        a(f's_branch {Lw}')
        if beta == 0:
            a.label(Lw11)
            a(f's_waitcnt vmcnt({NLD})')
            a(f's_branch {Lw}')
        a.label(Lw1)
        a('s_waitcnt vmcnt(1)')
        a.label(Lw)
        tags = [oreg(beta, wp, c) + 3 for wp in range(4) for c in range(3)]
        tagcheck(a, tags, t+4)
        a(f's_mov_b32 s{S_ST+beta}, 0')
        a(f's_cbranch_scc0 {Ls}')
        a(f's_mov_b32 s{S_ST+beta}, 2')
        if beta == 0: ts(a, 9)
        for wp in range(4):
            a(f'v_mov_b32 v{oreg(beta, wp, 0)+3}, v{oreg(beta, wp, 2)}')
            a(f'v_mov_b32 v{oreg(beta, wp, 1)+3}, v{oreg(beta, wp, 2)+2}')
        a('s_waitcnt lgkmcnt(0)')
        for i in range(8):
            for nu in range(2):
                acc = vr(YAC + (beta*2+nu)*16, 16)
                c = '0' if i == 0 else acc
                a(f'v_mfma_f32_32x32x16_bf16 {acc}, {vr(YWF + (i*2+nu)*4, 4)}, {vr(YOF + (beta*8+i)*4, 4)}, {c}')
        a.label(Ls)
    a(f's_and_b32 s{S_T}, s{S_ST}, s{S_ST+1}')
    a(f's_cmp_eq_u32 s{S_T}, 2')
    a(f's_cbranch_scc1 {Ld}')
    a('s_waitcnt vmcnt(0)')
    a.label(Lchk)
    a(f's_mov_b32 s{S_T+1}, 0')
    for beta in range(2):
        Ls = a.newlabel('L_nc')
        a(f's_cmp_lg_u32 s{S_ST+beta}, 0')
        a(f's_cbranch_scc1 {Ls}')
        tagcheck(a, [VPOLL + beta if NARROW else oreg(beta, PW, 2) + 3], t+4)
        a(f's_cbranch_scc0 {Ls}')
        a(f's_mov_b32 s{S_ST+beta}, 1')
        a(f's_mov_b32 s{S_T+1}, 1')
        for wp in range(4):
            for c in range(3):
                if NARROW or (wp, c) != (PW, 2): oload(a, beta, wp, c)
        a.label(Ls)
    Lns = a.newlabel('L_nosl')
    a(f's_cmp_lg_u32 s{S_T+1}, 0')
    a(f's_cbranch_scc1 {Lns}')
    if P['sleep']: a(f's_sleep {P["sleep"]}')
    a.label(Lns)
    a(f's_sub_u32 s{S_SPIN}, s{S_SPIN}, 1')
    a(f's_cmp_lg_u32 s{S_SPIN}, 0')
    a(f's_cbranch_scc1 {Ltop}')
    a.label(Ld)

def tr_reads(a):
    for Tt in range(4):
        for u in range(2):
            for nu in range(2):
                for v in range(2):
                    r = YWF + ((Tt*2+u)*2 + nu)*4 + 2*v
                    a(f'ds_read_b64_tr_b16 {vr(r, 2)}, v{AR.WR0 + nu} offset:{(Tt>>1)*32768 + (32*(Tt&1) + 16*u + 8*v) * 128}')
def fpoll(a, beta):
    a(f'global_load_dword v{VPOLL+beta}, v{VPOLL+2+beta}, {sr(P_WS,2)} sc1')
def ophase_flag(a, P):
    t = WK.t; vL16 = WK.vL16
    ts(a, 8)
    Ltop = a.newlabel('L_top'); Ld = a.newlabel('L_done')
    a(f's_mov_b32 s{S_SPIN}, {SPIN_LIMIT}')
    tr_reads(a)
    a(f'v_add_u32 v{t}, s{S_WKL}, v{vL16}')
    for k in range(1, 4):
        a(f's_xor_b32 s{S_T}, s{S_W}, {k}')
        a(f's_lshl_b32 s{S_T}, s{S_T}, 13')
        a(f'v_add_u32 v{t+k}, s{S_T}, v{vL16}')
    a.label(Ltop)
    a(f's_mov_b32 s{S_NP}, 0')
    for beta in range(2):
        Ls = a.newlabel('L_sk')
        a(f's_cmp_lg_u32 s{S_ST+beta}, 0')
        a(f's_cbranch_scc1 {Ls}')
        fpoll(a, beta)
        a(f's_add_u32 s{S_NP}, s{S_NP}, 1')
        a.label(Ls)
    for beta in range(2):
        Ls = a.newlabel('L_np'); Lw1 = a.newlabel('L_w1'); Lw11 = a.newlabel('L_w11'); Lw = a.newlabel('L_w')
        a(f's_bitcmp1_b32 s{S_ST+beta}, 0')
        a(f's_cbranch_scc0 {Ls}')
        a(f's_cmp_eq_u32 s{S_ST+beta}, 3')
        a(f's_cbranch_scc1 {Lw}')
        if beta == 0:
            a(f's_cmp_eq_u32 s{S_ST+1}, 1')
            a(f's_cbranch_scc1 {Lw11}')
        a(f's_cmp_eq_u32 s{S_NP}, 0')
        a(f's_cbranch_scc0 {Lw1}')
        a('s_waitcnt vmcnt(0)')
        a(f's_branch {Lw}')
        if beta == 0:
            a.label(Lw11)
            a('s_waitcnt vmcnt(8)')
            a(f's_branch {Lw}')
        a.label(Lw1)
        a('s_waitcnt vmcnt(1)')
        a.label(Lw)
        a(f's_mov_b32 s{S_ST+beta}, 2')
        if beta == 0: ts(a, 9)
        a('s_waitcnt lgkmcnt(0)')
        for i in range(8):
            for nu in range(2):
                acc = vr(YAC + (beta*2+nu)*16, 16)
                c = '0' if i == 0 else acc
                a(f'v_mfma_f32_32x32x16_bf16 {acc}, {vr(YWF + (i*2+nu)*4, 4)}, {vr(YOF + (beta*8+i)*4, 4)}, {c}')
        a.label(Ls)
    a(f's_and_b32 s{S_T}, s{S_ST}, s{S_ST+1}')
    a(f's_cmp_eq_u32 s{S_T}, 2')
    a(f's_cbranch_scc1 {Ld}')
    a('s_waitcnt vmcnt(0)')
    a(f's_mov_b32 s{S_T+1}, 0')
    for beta in range(2):
        Ls = a.newlabel('L_nc')
        a(f's_cmp_lg_u32 s{S_ST+beta}, 0')
        a(f's_cbranch_scc1 {Ls}')
        tagcheck(a, [VPOLL + beta], t+4)
        a(f's_cbranch_scc0 {Ls}')
        a(f's_mov_b32 s{S_ST+beta}, 1')
        a(f's_mov_b32 s{S_T+1}, 1')
        for i in range(8): oload8(a, beta, i)
        a.label(Ls)
    Lns = a.newlabel('L_nosl')
    a(f's_cmp_lg_u32 s{S_T+1}, 0')
    a(f's_cbranch_scc1 {Lns}')
    if P['sleep']: a(f's_sleep {P["sleep"]}')
    a.label(Lns)
    a(f's_sub_u32 s{S_SPIN}, s{S_SPIN}, 1')
    a(f's_cmp_lg_u32 s{S_SPIN}, 0')
    a(f's_cbranch_scc1 {Ltop}')
    a.label(Ld)

def worky(a, P):
    t = WK.t; vL16 = WK.vL16
    if OTAG: ophase_tag(a, P)
    else: ophase_flag(a, P)
    ts(a, 10)
    yoffs = [0, 4096, 32768]
    for k in range(1, 4):
        for j in range(4):
            a(f'ds_write_b128 v{t}, {vr(YAC + 16*k + 4*j, 4)} offset:{yoffs[k-1] + j*1024}')
    R = 192 + 16
    for i in (3, 7, 9, 11): a(f'v_mov_b32 v{R+i}, s{S_NONCE}')
    a('s_waitcnt lgkmcnt(0)')
    a('s_barrier')
    for k in range(1, 4):
        for j in range(4):
            a(f'ds_read_b128 {vr(YOF + 16*(k-1) + 4*j, 4)}, v{t+k} offset:{yoffs[k-1] + j*1024}')
    a('s_waitcnt lgkmcnt(4)')
    for i in range(16):
        a(f'v_add_f32 v{YOF+i}, v{YOF+i}, v{YOF+16+i}')
    for i in range(16):
        a(f'v_add_f32 v{YAC+i}, v{YAC+i}, v{YOF+i}')
    a('s_waitcnt lgkmcnt(0)')
    for i in range(16):
        a(f'v_add_f32 v{YAC+i}, v{YAC+i}, v{YOF+32+i}')
    order = [0, 2, 1, 3]
    for n, j in enumerate(order):
        for d in range(2):
            a(f'v_cvt_pk_bf16_f32 v{R + CMAP[2*n + d]}, v{YAC + 4*j + 2*d}, v{YAC + 4*j + 2*d + 1}')
    for base in (0, 4):
        for d in range(2):
            a(f'v_permlane32_swap_b32 v{R + CMAP[base + d]}, v{R + CMAP[base + 2 + d]}')
    for g in range(3):
        a(f'buffer_store_dwordx4 {vr(R + 4*g, 4)}, v{vL16}, {sr(SRD_K,4)}, s{S_YS} offen offset:{g*1024} sc1')
    ts(a, 11)
    X = 16; XC = 24
    Lq = a.newlabel('L_p2'); Lqd = a.newlabel('L_p2d')
    a(f's_mov_b32 s{S_SPIN}, {SPIN_LIMIT}')
    YP = P.get('ypoll', 0)
    if YP:
        Ln = a.newlabel('L_yn'); Lnd = a.newlabel('L_ynd'); Lw = a.newlabel('L_yw')
        a(f'v_and_b32 v{t+6}, 7, v{AR.LANE}')
        a(f'v_lshlrev_b32 v{t+6}, 14, v{t+6}')
        a(f's_lshr_b32 s{S_T}, s{S_X}, 2')
        a(f's_lshl_b32 s{S_T}, s{S_T}, 13')
        a(f's_and_b32 s{S_T+1}, s{S_W}, 1')
        a(f's_lshl_b32 s{S_T+1}, s{S_T+1}, 12')
        a(f's_add_u32 s{S_T}, s{S_T}, s{S_T+1}')
        a(f's_add_u32 s{S_T}, s{S_T}, {2048 + 63*16 + 12}')
        a(f'v_add_u32 v{t+6}, s{S_T}, v{t+6}')
        if YP == 2:
            a(f's_cmp_lg_u32 s{S_W}, 0')
            a(f's_cbranch_scc1 {Lw}')
        a.label(Ln)
        a(f'buffer_load_dword v{t+7}, v{t+6}, {sr(SRD_K,4)}, 0 offen sc1')
        a('s_waitcnt vmcnt(0)')
        tagcheck(a, [t+7], t+4)
        a(f's_cbranch_scc1 {Lnd}')
        if P['sleep']: a(f's_sleep {P["sleep"]}')
        a(f's_sub_u32 s{S_SPIN}, s{S_SPIN}, 1')
        a(f's_cmp_lg_u32 s{S_SPIN}, 0')
        a(f's_cbranch_scc1 {Ln}')
        a.label(Lnd)
        if YP == 2:
            a.label(Lw)
            a('s_barrier')
        a(f's_mov_b32 s{S_SPIN}, {SPIN_LIMIT}')
    a.label(Lq)
    a(f'buffer_load_dwordx4 {vr(X, 4)}, v{WK.vP}, {sr(SRD_K,4)}, 0 offen sc1')
    a(f'buffer_load_dwordx4 {vr(X+4, 4)}, v{WK.vP}, {sr(SRD_K,4)}, s{S_YH} offen sc1')
    a(f'buffer_load_dwordx2 {vr(XC, 2)}, v{WK.vY}, {sr(SRD_K,4)}, 0 offen sc1')
    a(f'buffer_load_dwordx2 {vr(XC+2, 2)}, v{WK.vY}, {sr(SRD_K,4)}, s{S_YH} offen sc1')
    a('s_waitcnt vmcnt(0)')
    tagcheck(a, [X+3, X+7, XC+1, XC+3], t+4)
    a(f's_cbranch_scc1 {Lqd}')
    if P['sleep']: a(f's_sleep {P["sleep"]}')
    a(f's_sub_u32 s{S_SPIN}, s{S_SPIN}, 1')
    a(f's_cmp_lg_u32 s{S_SPIN}, 0')
    a(f's_cbranch_scc1 {Lq}')
    a.label(Lqd)
    ts(a, 12)
    a(f'v_mov_b32 v{X+3}, v{XC}')
    a(f'v_mov_b32 v{X+7}, v{XC+2}')
    a(f's_mov_b32 s{S_T}, 0xffff0000')
    U = 32
    for d in range(4):
        a(f'v_lshlrev_b32 v{U + 2*d}, 16, v{X + d}')
        a(f'v_and_b32 v{U + 2*d + 1}, s{S_T}, v{X + d}')
    for d in range(4):
        a(f'v_lshlrev_b32 v{U + 8 + 2*d}, 16, v{X + 4 + d}')
        a(f'v_and_b32 v{U + 8 + 2*d + 1}, s{S_T}, v{X + 4 + d}')
    for e in range(8):
        a(f'v_add_f32 v{U + e}, v{U + e}, v{U + 8 + e}')
    for i in range(4):
        a(f'v_permlane32_swap_b32 v{U + i}, v{U + 4 + i}')
    for i in range(4):
        a(f'v_add_f32 v{U + i}, v{U + i}, v{U + 4 + i}')
    for i in range(2):
        a(f'v_permlane16_swap_b32 v{U + i}, v{U + 2 + i}')
    for i in range(2):
        a(f'v_add_f32 v{U + i}, v{U + i}, v{U + 2 + i}')
    a(f'v_cvt_pk_bf16_f32 v{U}, v{U}, v{U+1}')
    a(f'global_store_dword v{WK.vOut}, v{U}, {sr(P_OUT,2)}')
    ts(a, 13)

def gen_fused(P):
    a = Asm()
    a('s_cmp_ge_u32 s2, 512')
    a('s_cbranch_scc1 L_exit')
    a('s_load_dwordx16 s[16:31], s[0:1], 0')
    a('s_load_dwordx8 s[32:39], s[0:1], 64')
    a('s_load_dwordx2 s[40:41], s[0:1], 96')
    a('v_lshrrev_b32 v1, 6, v0')
    a(f'v_and_b32 v{AR.LANE}, 63, v0')
    a(f'v_readfirstlane_b32 s{S_W}, v1')
    a(f's_and_b32 s{S_X}, s2, 7')
    a(f's_lshr_b32 s{S_R}, s2, 3')
    a(f's_and_b32 s{S_R}, s{S_R}, 31')
    a(f's_mov_b32 s{S_INIT}, 0')
    a(f's_setprio {P["prio_start"]}')
    a('s_waitcnt lgkmcnt(0)')
    if P.get('wsb'):
        a(f's_add_u32 s{P_WS}, s{P_WS}, {P["wsb"] << 20}')
        a(f's_addc_u32 s{P_WS+1}, s{P_WS+1}, 0')
    if TS_ON:
        a('v_mov_b32 v249, 0')
        ts(a, 0)
    a('s_cmp_ge_u32 s2, 256')
    a('s_cbranch_scc1 ROLE_A')
    gen_unit(a, P, 'B')
    sub_reads(a)
    if P['bmode'] == 0 or P['bmodeA'] == 0 or P.get('hybB') or P.get('hybA'): sub_soft(a)
    if P['bmode'] != 0 or P['bmodeA'] != 0: sub_soft2(a)
    gen_unit(a, P, 'A')
    a.label('L_end')
    if TS_ON:
        ts(a, 16)
        a(f's_lshl_b32 s8, s2, 2')
        a(f's_add_u32 s8, s8, s{S_W}')
        a('s_lshl_b32 s8, s8, 8')
        a(f's_add_u32 s8, s8, {WS_TS}')
        if P.get('wsb'):
            a(f's_sub_u32 s{P_WS}, s{P_WS}, {P["wsb"] << 20}')
            a(f's_subb_u32 s{P_WS+1}, s{P_WS+1}, 0')
        a(f'v_lshlrev_b32 v248, 2, v{AR.LANE}')
        a('v_add_u32 v248, s8, v248')
        a(f'global_store_dword v248, v249, {sr(P_WS,2)}')
    a.label('L_exit')
    a('s_endpgm')
    return finish(a)

DEF = dict(polkv='nt', polw='nt', polx='nt', polwo='nt', ring=4, sleep=2, prio_start=3, prio_A0=2, prio_A=2, prio_B=0, prio_W=3,
           kpos=3, kposA=3, bmode=1, bmodeA=1, wo0=4, sym=1)

def build(out, **kw):
    global TS_ON, NOINIT, SLEEP0, ABL, TLBW, OTAG
    OTAG = kw.get('otag', 0)
    TLBW = kw.get('tlbw')
    ABL = kw.get('abl', '').split(',')
    P = dict(DEF); P.update(kw)
    NOINIT = bool(P.get('noA'))
    SLEEP0 = P.get('sleep0', 1)
    TS_ON = P.get('ts', False)
    kn = NAME + '_kernel'
    t = file_text([(None, 512, 256, 81920)], [(kn, gen_fused(P), 256, 100, None)])
    open(out, 'w').write(t)

if __name__ == '__main__':
    import sys
    build('m0.s')
    build('m0_ts.s', ts=True)
```

```python
from fused13 import build
A = dict(polKA='', polVA='', polw='', polx='', polwo='', bmodeA=0, prio_A=0)
build('u1_y1.s', ypoll=1, **A)
build('u1_y2.s', ypoll=2, **A)
build('u1_y0.s', ypoll=0, **A)
build('u1_y1_ne.s', ypoll=1, early=0, **A)
build('u1_y2_ne.s', ypoll=2, early=0, **A)
build('u1_y1_ts.s', ts=True, ypoll=1, **A)
build('u1_y2_ts.s', ts=True, ypoll=2, **A)
```

```python
import sys, math, struct
from asmgen import *
from hazard import fix_hazards

CSC = (128 ** -0.5) * math.log2(math.e)
def f2u(x): return struct.unpack('<I', struct.pack('<f', x))[0]
def vr(b, n): return f'v[{b}:{b+n-1}]'
def sr(b, n): return f's[{b}:{b+n-1}]'

FL_O = 0
FL_P = 8192
FL_Q = 12288
FL_O2 = 65536
FL_Y = 65536
WS_Q = 1 << 20
WS_O = 4 << 20
WS_X = 8 << 20
WS_Y = 24 << 20
WS_TS = 32 << 20

S_W = 3; S_X = 4; S_R = 5; S_B = 6; S_H = 7
S_T = 8
P_AX, P_AK, P_AV, P_AWQ, P_AWO, P_BX, P_BK, P_BV = 16, 18, 20, 22, 24, 26, 28, 30
P_BWQ, P_BWO, P_OUT, P_DBG = 32, 34, 36, 38
P_WS = 40
S_WKL = 42; S_WKB = 43
SRD_X = 44; SRD_WQ = 48; SRD_K = 52; SRD_V = 56
S_C = 60; S_CNT = 61; S_KL = 62; S_VL = 63
S_ROT = 64; S_WB = 65; S_SO = 66; S_STEP = 67
S_P = 68
S_A = 70
S_U = 78
S_TB = 84; S_TN = 85
S_G = 86
S_WH = 87
S_FO = 92
S_SPIN = 90; S_INIT = 91; S_PROB = 93
S_NONCE = 91; NONCE_C = 0x9E3779B9; WS_E = 0
OTAG = 0
OU = 16384
S_FA = 84
YT = 131072
LK1 = 96
OOB = 0x7f000000

class AR:
    Q = 0; O = 32; K = 96; V = 96; WO = 128; S = 192; P = 208
    T = 216
    M = 232; L = 233
    AK = 234; AV = 242
    WD = 246; WR0 = 247; WR1 = 248
    DK = 250; DV = 254
    LANE = 255
S_WO = 88
S_WL = 89
STG = 65536
QR, QX, QAT, QACC, QT = 0, 128, 160, 176, 240
WF = 0; OF = 128; ACC = 224; WT = 232

SPIN_LIMIT = 400000
TS_ON = False
NOINIT = False
SLEEP0 = 1
ABL = []

def finish(a):
    lines, n = fix_hazards(a.lines)
    return '\n'.join(lines) + '\n'
def srd(a, d, size):
    a(f's_and_b32 s{d+1}, s{d+1}, 0xffff')
    a(f's_mov_b32 s{d+2}, {size}')
    a(f's_mov_b32 s{d+3}, 0x20000')
def poll(a, vaddr, sbase, vtmp, sleep=None):
    if sleep is None: sleep = SLEEP0
    L = a.newlabel('L_poll'); D = a.newlabel('L_polld')
    a(f's_mov_b32 s{S_SPIN}, {SPIN_LIMIT}')
    a.label(L)
    a(f'global_load_dword v{vtmp}, v{vaddr}, {sr(sbase,2)} sc1')
    a('s_waitcnt vmcnt(0)')
    a(f'v_cmp_eq_u32 vcc, 1, v{vtmp}')
    a('s_cmp_eq_u64 vcc, -1')
    a(f's_cbranch_scc1 {D}')
    if sleep: a(f's_sleep {sleep}')
    a(f's_sub_u32 s{S_SPIN}, s{S_SPIN}, 1')
    a(f's_cmp_lg_u32 s{S_SPIN}, 0')
    a(f's_cbranch_scc1 {L}')
    a.label(D)
def store_flag(a, sbase, vz, vone, n=1):
    a('s_mov_b64 exec, 1')
    op = {1: 'dword', 2: 'dwordx2', 4: 'dwordx4'}[n]
    src = f'v{vone}' if n == 1 else vr(vone, n)
    a(f'global_store_{op} v{vz}, {src}, {sr(sbase,2)} sc1')
    a('s_mov_b64 exec, -1')
def call(a, name, lk=LK1): a(f's_call_b64 {sr(lk,2)}, {name}')
def ret(a, lk=LK1): a(f's_setpc_b64 {sr(lk,2)}')
def ts(a, slot, sreg=None):
    if not TS_ON: return
    a('s_memrealtime s[94:95]')
    a('s_waitcnt lgkmcnt(0)')
    if sreg is None:
        a(f'v_writelane_b32 v249, s94, {slot}')
    else:
        a(f's_add_u32 m0, s{sreg}, {slot}')
        a('s_nop 4')
        a(f'v_writelane_b32 v249, s94, m0')
def ts_it(a, slot, it):
    if not TS_ON: return
    a('s_memrealtime s[94:95]')
    a(f's_cmp_eq_u32 s{S_CNT}, {it}')
    a(f's_cselect_b32 m0, {slot}, 63')
    a('s_waitcnt lgkmcnt(0)')
    a('s_nop 4')
    a(f'v_writelane_b32 v249, s94, m0')
def wait_init(a, vz, vt):
    a(f'v_mov_b32 v{vz}, 0')
    poll(a, vz, P_DBG, vt)

def qb_loads(a, P, pos, mid=None):
    pol = P['polw']
    vL = AR.LANE; X = QX; R = QR; vt = QT; st = S_T; sW = S_W
    t0, t1, t2, t3 = vt, vt+1, vt+2, vt+3
    a(f'v_and_b32 v{t0}, 3, v{vL}')
    a(f'v_add_u32 v{t0}, s{sW}, v{t0}')
    a(f'v_and_b32 v{t0}, 3, v{t0}')
    a(f'v_and_b32 v{t1}, 12, v{vL}')
    a(f'v_or_b32 v{t0}, v{t0}, v{t1}')
    a(f'v_lshlrev_b32 v{t0}, 4, v{t0}')
    a(f'v_lshrrev_b32 v{t1}, 4, v{vL}')
    a(f'v_lshlrev_b32 v{t2}, 16, v{t1}')
    a(f'v_add_u32 v{t0}, v{t0}, v{t2}')
    a(f'v_and_b32 v{t2}, 15, v{vL}')
    a(f'v_lshlrev_b32 v{t2}, 10, v{t2}')
    a(f'v_lshlrev_b32 v{t1}, 4, v{t1}')
    a(f'v_add_u32 v{t2}, v{t2}, v{t1}')
    a(f'v_add_u32 v{t3}, 16384, v{t2}')
    xfirst = P.get('xfirst', 1)
    ts(a, 50)
    if xfirst:
        for s in range(4):
            a(f's_add_u32 s{st}, s{S_STEP}, {s}')
            a(f's_and_b32 s{st}, s{st}, 3')
            a(f's_lshl_b32 s{st+1}, s{sW}, 2')
            a(f's_add_u32 s{st}, s{st}, s{st+1}')
            a(f's_lshl_b32 s{st}, s{st}, 6')
            a(f'buffer_load_dwordx4 {vr(X + (s*2+0)*4, 4)}, v{t2}, {sr(SRD_X,4)}, s{st} offen {P["polx"]}')
            a(f'buffer_load_dwordx4 {vr(X + (s*2+1)*4, 4)}, v{t3}, {sr(SRD_X,4)}, s{st} offen {P["polx"]}')
    ts(a, 51)
    for s in range(4):
        if s > 0: ts(a, 51 + s)
        a(f's_add_u32 s{st}, s{S_STEP}, {s}')
        a(f's_and_b32 s{st}, s{st}, 3')
        a(f's_lshl_b32 s{st+1}, s{sW}, 2')
        a(f's_add_u32 s{st}, s{st}, s{st+1}')
        a(f's_lshl_b32 s{st+1}, s{st}, 18')
        a(f's_lshl_b32 s{st}, s{st}, 6')
        for j in range(8):
            if j == 0: so = st + 1
            else:
                so = st + 2 + (j & 1)
                a(f's_add_u32 s{so}, s{st+1}, {j * 8192}')
            a(f'buffer_load_dwordx4 {vr(R + s*32 + j*4, 4)}, v{t0}, {sr(SRD_WQ,4)}, s{so} offen {pol}')
        if not xfirst:
            a(f'buffer_load_dwordx4 {vr(X + (s*2+0)*4, 4)}, v{t2}, {sr(SRD_X,4)}, s{st} offen {P["polx"]}')
            a(f'buffer_load_dwordx4 {vr(X + (s*2+1)*4, 4)}, v{t3}, {sr(SRD_X,4)}, s{st} offen {P["polx"]}')
        if mid and s == pos:
            ts(a, 55)
            mid()

def qp_step(a, s, first):
    R, X, AT, A_ = QR, QX, QAT, QACC
    st = S_U
    for d in range(4):
        buf = AT + (d % 2) * 8
        for t in range(4):
            r0 = R + s*32 + (2*t)*4 + d
            r1 = R + s*32 + (2*t+1)*4 + d
            a(f'v_perm_b32 v{buf + t}, v{r1}, v{r0}, s{st}')
            a(f'v_perm_b32 v{buf + 4 + t}, v{r1}, v{r0}, s{st+1}')
        for eo in range(2):
            e = 2*d + eo
            for qt in range(2):
                acc = A_ + (e*2 + qt) * 4
                c = '0' if first else vr(acc, 4)
                a(f'v_mfma_f32_16x16x32_bf16 {vr(acc,4)}, {vr(buf + 4*eo, 4)}, {vr(X + (s*2+qt)*4, 4)}, {c}')

def qb_compute(a, P, pos, kl, small=False, after=None, afterstep=3):
    a(f's_mov_b32 s{S_U}, 0x05040100')
    a(f's_mov_b32 s{S_U+1}, 0x07060302')
    for s in range(4):
        later = (3 - s) * (8 if P.get('xfirst', 1) else 10) + (kl if s <= pos else 0)
        if after and s > afterstep: later += 8
        a(f's_waitcnt vmcnt({later})')
        if s == 0: ts(a, 19)
        qp_step(a, s, s == 0)
        if after and s == afterstep: after()
    ts(a, 20)
    if small:
        sW = S_W; vL = AR.LANE; va = QT + 4; st = S_T + 4; A_ = QACC
        for k in range(1, 4):
            TT = 16 * (k - 1)
            for qt in range(2):
                for e in range(8):
                    a(f'v_mov_b32 v{TT + qt*8 + e}, v{A_ + (e*2+qt)*4 + k}')
        a(f'v_lshlrev_b32 v{va+1}, 4, v{vL}')
        a(f's_lshl_b32 s{st}, s{sW}, 12')
        a(f's_add_u32 s{st}, s{st}, {STG}')
        a(f'v_add_u32 v{va+2}, s{st}, v{va+1}')
        T = 48
        for k in range(1, 4):
            TT = 16 * (k - 1)
            a(f's_add_u32 s{st}, s{sW}, {k}')
            a(f's_and_b32 s{st}, s{st}, 3')
            a(f's_lshl_b32 s{st}, s{st}, 12')
            a(f's_add_u32 s{st}, s{st}, {STG}')
            a(f'v_add_u32 v{va}, s{st}, v{va+1}')
            if k > 1: a('s_barrier')
            for j in range(4):
                a(f'ds_write_b128 v{va}, {vr(TT + 4*j, 4)} offset:{j*1024}')
            if k > 1:
                for qt in range(2):
                    for e in range(8):
                        r = A_ + (e*2+qt)*4
                        a(f'v_add_f32 v{r}, v{r}, v{T + 16*(k-2) + qt*8 + e}')
            a('s_waitcnt lgkmcnt(0)')
            a('s_barrier')
            for j in range(4):
                a(f'ds_read_b128 {vr(T + 16*(k-1) + 4*j, 4)}, v{va+2} offset:{j*1024}')
            a('s_waitcnt lgkmcnt(0)')
        for qt in range(2):
            for e in range(8):
                r = A_ + (e*2+qt)*4
                a(f'v_add_f32 v{r}, v{r}, v{T + 32 + qt*8 + e}')
        OUT = 16
        for qt in range(2):
            for p in range(4):
                a(f'v_cvt_pk_bf16_f32 v{OUT + qt*4 + p}, v{A_ + ((2*p)*2+qt)*4}, v{A_ + ((2*p+1)*2+qt)*4}')
        return
    inbox_base = 32768
    sW = S_W; vL = AR.LANE; va = QT + 4; st = S_T + 4; A_ = QACC
    for k in range(1, 4):
        a(f's_add_u32 s{st}, s{sW}, {k}')
        a(f's_and_b32 s{st}, s{st}, 3')
        a(f's_mul_i32 s{st}, s{st}, 12288')
        a(f's_add_u32 s{st}, s{st}, {inbox_base + (k-1)*4096}')
        a(f'v_lshlrev_b32 v{va}, 4, v{vL}')
        a(f'v_add_u32 v{va}, s{st}, v{va}')
        TT = 16 * (k - 1)
        for qt in range(2):
            for e in range(8):
                a(f'v_mov_b32 v{TT + qt*8 + e}, v{A_ + (e*2+qt)*4 + k}')
        for j in range(4):
            a(f'ds_write_b128 v{va}, {vr(TT + 4*j, 4)} offset:{j*1024}')
    a('s_waitcnt lgkmcnt(0)')
    a('s_barrier')
    T = 48
    a(f's_mul_i32 s{st}, s{sW}, 12288')
    a(f's_add_u32 s{st}, s{st}, {inbox_base}')
    a(f'v_lshlrev_b32 v{va}, 4, v{vL}')
    a(f'v_add_u32 v{va}, s{st}, v{va}')
    for k in range(3):
        for j in range(4):
            a(f'ds_read_b128 {vr(T + 16*k + 4*j, 4)}, v{va} offset:{k*4096 + j*1024}')
    for k in range(3):
        a(f's_waitcnt lgkmcnt({8 - 4*k})')
        for qt in range(2):
            for e in range(8):
                r = A_ + (e*2+qt)*4
                a(f'v_add_f32 v{r}, v{r}, v{T + 16*k + qt*8 + e}')
    OUT = 16
    for qt in range(2):
        for p in range(4):
            a(f'v_cvt_pk_bf16_f32 v{OUT + qt*4 + p}, v{A_ + ((2*p)*2+qt)*4}, v{A_ + ((2*p+1)*2+qt)*4}')

def setup_dma_B(a):
    L = AR.LANE; t = QT + 4
    a(f'v_lshrrev_b32 v{t}, 4, v{L}')
    a(f'v_and_b32 v{t+1}, 15, v{L}')
    for p in range(4):
        a(f'v_add_u32 v{t+2}, {4*p}, v{t}')
        a(f'v_xor_b32 v{t+2}, v{t+2}, v{t+1}')
        a(f'v_lshlrev_b32 v{t+2}, 4, v{t+2}')
        a(f'v_lshl_add_u32 v{AR.DK+p}, v{t}, 8, v{t+2}')
    a(f'v_lshlrev_b32 v{t+2}, 2, v{t}')
    a(f'v_xor_b32 v{t+2}, v{t+2}, v{t+1}')
    a(f'v_lshlrev_b32 v{t+2}, 4, v{t+2}')
    a(f'v_lshl_add_u32 v{AR.DV}, v{t}, 8, v{t+2}')

def setup_dma_A(a):
    L = AR.LANE; t = QT + 4; st = S_T
    a(f'v_lshrrev_b32 v{t}, 4, v{L}')
    a(f'v_and_b32 v{t+1}, 15, v{L}')
    a(f's_lshl_b32 s{st}, s{S_W}, 3')
    for p in range(2):
        a(f's_add_u32 s{st+1}, s{st}, {4*p}')
        a(f's_and_b32 s{st+1}, s{st+1}, 15')
        a(f'v_add_u32 v{t+2}, s{st+1}, v{t}')
        a(f'v_xor_b32 v{t+2}, v{t+2}, v{t+1}')
        a(f'v_lshlrev_b32 v{t+2}, 4, v{t+2}')
        a(f'v_lshl_add_u32 v{AR.DK+p}, v{t}, 8, v{t+2}')
    a(f'v_lshlrev_b32 v{t+2}, 2, v{t}')
    a(f'v_xor_b32 v{t+2}, v{t+2}, v{t+1}')
    a(f'v_lshlrev_b32 v{t+2}, 4, v{t+2}')
    a(f'v_lshl_add_u32 v{AR.DV}, v{t}, 8, v{t+2}')

def sub_reads(a):
    s_kslot, s_vslot, s_rot = S_U+1, S_U+2, S_U+3
    L = AR.LANE; t = AR.T; st = S_T
    a.label('SUB_READS')
    a(f'v_and_b32 v{t}, 31, v{L}')
    a(f'v_lshrrev_b32 v{t+1}, 5, v{L}')
    a(f'v_and_b32 v{t+2}, 15, v{L}')
    a(f'v_lshlrev_b32 v{t+3}, 3, v{t+1}')
    a(f'v_xor_b32 v{t+2}, v{t+2}, v{t+3}')
    a(f'v_lshlrev_b32 v{t+2}, 4, v{t+2}')
    a(f'v_lshl_add_u32 v{t+2}, v{t}, 8, v{t+2}')
    for s in range(8):
        a(f'v_xor_b32 v{AR.AK+s}, {16*s}, v{t+2}')
        a(f'v_add_u32 v{AR.AK+s}, s{s_kslot}, v{AR.AK+s}')
    a(f'v_and_b32 v{t}, 15, v{L}')
    a(f'v_lshrrev_b32 v{t+2}, 2, v{t}')
    a(f'v_and_b32 v{t+3}, 3, v{t}')
    a(f'v_lshl_add_u32 v{t+4}, v{t+1}, 2, v{t+2}')
    a(f'v_lshlrev_b32 v{t+4}, 8, v{t+4}')
    a(f'v_bfe_u32 v{t+5}, v{L}, 4, 1')
    a(f'v_lshlrev_b32 v{t+5}, 1, v{t+5}')
    a(f'v_lshrrev_b32 v{t+6}, 1, v{t+3}')
    a(f'v_add_u32 v{t+5}, v{t+5}, v{t+6}')
    a(f'v_lshlrev_b32 v{t+6}, 2, v{t+2}')
    a(f'v_xor_b32 v{t+5}, v{t+5}, v{t+6}')
    a(f'v_lshl_add_u32 v{t+4}, v{t+5}, 4, v{t+4}')
    a(f'v_and_b32 v{t+3}, 1, v{t+3}')
    a(f'v_lshl_add_u32 v{t+4}, v{t+3}, 3, v{t+4}')
    for tau in range(4):
        a(f's_add_u32 s{st}, s{s_rot}, {tau}')
        a(f's_and_b32 s{st}, s{st}, 3')
        a(f's_lshl_b32 s{st}, s{st}, 6')
        a(f'v_xor_b32 v{AR.AV+tau}, s{st}, v{t+4}')
        a(f'v_add_u32 v{AR.AV+tau}, s{s_vslot}, v{AR.AV+tau}')
    for i in range(64):
        a(f'v_mov_b32 v{AR.O+i}, 0')
    a(f'v_mov_b32 v{AR.M}, 0xff800000')
    a(f'v_mov_b32 v{AR.L}, 0')
    a(f's_mov_b32 s{S_C}, {f2u(CSC)}')
    ret(a)

def read_k(a):
    for s in range(8):
        a(f'ds_read_b128 {vr(AR.K + 4*s, 4)}, v{AR.AK+s}')
def read_v(a):
    for ks in range(2):
        for tau in range(4):
            for u in range(2):
                r = AR.V + (tau*2 + ks)*4 + u*2
                a(f'ds_read_b64_tr_b16 {vr(r, 2)}, v{AR.AV+tau} offset:{4096*ks + 2048*u}')
def mfma_s(a):
    for s in range(8):
        c = '0' if s == 0 else vr(AR.S, 16)
        a(f'v_mfma_f32_32x32x16_bf16 {vr(AR.S,16)}, {vr(AR.K+4*s,4)}, {vr(AR.Q+4*s,4)}, {c}')
def softmax(a):
    sC = S_C; st = S_P
    S = AR.S; t = AR.T; M = AR.M; Lr = AR.L
    a(f'v_max3_f32 v{t}, v{S}, v{S+1}, v{S+2}')
    a(f'v_max3_f32 v{t+1}, v{S+3}, v{S+4}, v{S+5}')
    a(f'v_max3_f32 v{t}, v{t}, v{S+6}, v{S+7}')
    a(f'v_max3_f32 v{t+1}, v{t+1}, v{S+8}, v{S+9}')
    a(f'v_max3_f32 v{t}, v{t}, v{S+10}, v{S+11}')
    a(f'v_max3_f32 v{t+1}, v{t+1}, v{S+12}, v{S+13}')
    a(f'v_max3_f32 v{t}, v{t}, v{S+14}, v{S+15}')
    a(f'v_max_f32 v{t}, v{t}, v{t+1}')
    a(f'v_mov_b32 v{t+1}, v{t}')
    a(f'v_permlane32_swap_b32 v{t}, v{t+1}')
    a(f'v_max3_f32 v{t}, v{t}, v{t+1}, v{M}')
    a(f'v_cmp_gt_f32 {sr(st,2)}, v{t}, v{M}')
    skip = a.newlabel('L_skip')
    a(f's_cmp_eq_u64 {sr(st,2)}, 0')
    a(f's_cbranch_scc1 {skip}')
    a(f'v_sub_f32 v{t+1}, v{M}, v{t}')
    a(f'v_mul_f32 v{t+1}, s{sC}, v{t+1}')
    a(f'v_exp_f32 v{t+1}, v{t+1}')
    a(f'v_mov_b32 v{M}, v{t}')
    a(f'v_mul_f32 v{Lr}, v{Lr}, v{t+1}')
    for i in range(64):
        a(f'v_mul_f32 v{AR.O+i}, v{AR.O+i}, v{t+1}')
    a.label(skip)
    a(f'v_mul_f32 v{t+1}, s{sC}, v{M}')
    for i in range(16):
        a(f'v_fma_f32 v{S+i}, v{S+i}, s{sC}, -v{t+1}')
    for i in range(16):
        a(f'v_exp_f32 v{S+i}, v{S+i}')
    for i in range(8):
        a(f'v_cvt_pk_bf16_f32 v{AR.P+i}, v{S+2*i}, v{S+2*i+1}')
    a(f'v_add_f32 v{t}, v{S}, v{S+1}')
    a(f'v_add_f32 v{t+1}, v{S+2}, v{S+3}')
    for i in range(2, 8):
        a(f'v_add_f32 v{t + (i&1)}, v{t + (i&1)}, v{S+2*i}')
        a(f'v_add_f32 v{t + (i&1)}, v{t + (i&1)}, v{S+2*i+1}')
    a(f'v_add_f32 v{t}, v{t}, v{t+1}')
    a(f'v_add_f32 v{Lr}, v{Lr}, v{t}')
def sub_soft(a):
    a.label('SUB_SOFT')
    read_v(a)
    softmax(a)
    a('s_waitcnt lgkmcnt(0)')
    ret(a)
def sub_soft2(a):
    a.label('SUB_SOFT2')
    softmax(a)
    ret(a)
def mfma_pv(a):
    for ks in range(2):
        for tau in range(4):
            o = vr(AR.O + 16*tau, 16)
            a(f'v_mfma_f32_32x32x16_bf16 {o}, {vr(AR.V + (tau*2+ks)*4, 4)}, {vr(AR.P + 4*ks, 4)}, {o}')
def dma_tile8k(a, srdn, s_soff, s_lds, st, pol, vpat):
    if isinstance(pol, tuple):
        lo, hi, thr = pol
        L1 = a.newlabel('L_ph'); L2 = a.newlabel('L_pd')
        a(f's_cmp_ge_u32 s{S_B}, {thr}')
        a(f's_cbranch_scc1 {L1}')
        dma_tile8k(a, srdn, s_soff, s_lds, st, lo, vpat)
        a(f's_branch {L2}')
        a.label(L1)
        dma_tile8k(a, srdn, s_soff, s_lds, st, hi, vpat)
        a.label(L2)
        return
    for half in range(2):
        if half == 0:
            a(f's_mov_b32 m0, s{s_lds}')
            so = s_soff
        else:
            a(f's_add_u32 m0, s{s_lds}, 4096')
            a(f's_add_u32 s{st}, s{s_soff}, 4096')
            so = st
        for p in range(4):
            a(f'buffer_load_dwordx4 v{vpat(p)}, {sr(srdn,4)}, s{so} offen offset:{p*1024} {pol} lds')

def wo_dma(a, P, part):
    lst = [(i, i * 1024) for i in range(7)] if part == 0 else [(7, 7168)] + [(8 + i, 32768 + i * 1024) for i in range(8)]
    for n, (g, lo) in enumerate(lst):
        a(f's_add_u32 m0, s{S_WL}, {lo}')
        a(f's_add_u32 s{S_U + (n&1)}, s{S_WO}, {g * 8 * 1024}')
        a(f'buffer_load_dwordx4 v{AR.WD}, {sr(SRD_WQ,4)}, s{S_U + (n&1)} offen {P["polwo"]} lds')

WREG = 152
def wo_regs(a, P):
    lst = [7] + [8 + i for i in range(8)]
    for n, g in enumerate(lst):
        a(f's_add_u32 s{S_U + (n&1)}, s{S_WO}, {g * 8 * 1024}')
        a(f'buffer_load_dwordx4 {vr(WREG + 4*n, 4)}, v{AR.WD}, {sr(SRD_WQ,4)}, s{S_U + (n&1)} offen {P["polwo"]}')
def wo_regs_to_lds(a, vbase):
    for n in range(9):
        off = 7168 if n == 0 else 32768 + (n - 1) * 1024
        a(f'ds_write_b128 v{vbase}, {vr(WREG + 4*n, 4)} offset:{off}')
VDBG = 128
def init_issue(a):
    a(f'global_load_dword v{VDBG}, v{VDBG+4}, {sr(P_DBG,2)} sc1')
def init_check(a):
    L = a.newlabel('L_ichk'); D = a.newlabel('L_iok')
    a(f's_mov_b32 s{S_SPIN}, {SPIN_LIMIT}')
    a.label(L)
    a(f'v_readfirstlane_b32 s{S_NONCE}, v{VDBG}')
    a(f's_cmp_lg_u32 s{S_NONCE}, 0')
    a(f's_cbranch_scc1 {D}')
    a('s_sleep 1')
    init_issue(a)
    a('s_waitcnt vmcnt(0)')
    a(f's_sub_u32 s{S_SPIN}, s{S_SPIN}, 1')
    a(f's_cmp_lg_u32 s{S_SPIN}, 0')
    a(f's_cbranch_scc1 {L}')
    a.label(D)

CMAP = [0, 1, 2, 8, 4, 5, 6, 10]
class EP:
    MLW = 136; TW = 137; SW = 138; MLR = 139; TR = 142; OST = 146; FLA = 147; FLV = 148
SRD_Y = 16
S_HI = 20
def pk(op, a, d, x, y, z=None, bc=None):
    mods = ''
    if z is None:
        if bc: mods = ' op_sel_hi:[1,0]'
        a(f'v_pk_{op}_f32 {vr(d,2)}, {vr(x,2)}, {vr(y,2)}{mods}')
    else:
        if bc: mods = ' op_sel_hi:[1,0,1]'
        a(f'v_pk_{op}_f32 {vr(d,2)}, {vr(x,2)}, {vr(y,2)}, {vr(z,2)}{mods}')

def epi_c(a, role, P):
    sOut = S_A
    sC = S_C
    t = AR.T; M = AR.M; Lr = AR.L
    MB = [0, 16, 96]
    PPOS = P.get('ppos', 1)
    if not P.get('early', 1): PPOS = 2
    if PPOS == 0:
        for beta in range(2): fpoll(a, beta)
    for k in range(1, 4):
        for j in range(4):
            if k < 3: a(f'ds_write_b128 v{EP.TW}, {vr(AR.O + 16*k + 4*j, 4)} offset:{(k-1)*4096 + j*1024}')
            else: a(f'ds_write_b128 v{EP.SW}, {vr(AR.O + 16*k + 4*j, 4)} offset:{j*1024}')
    a(f'v_mov_b32 v{t}, v{Lr}')
    a(f'v_permlane32_swap_b32 v{Lr}, v{t}')
    a(f'v_add_f32 v{Lr}, v{Lr}, v{t}')
    a(f'v_cndmask_b32 v{t}, v{M}, v{Lr}, {sr(S_HI,2)}')
    a(f'ds_write_b32 v{EP.MLW}, v{t}')
    a('s_waitcnt lgkmcnt(0)')
    ts(a, 22)
    a('s_barrier')
    ts(a, 23)
    for k in range(4):
        a(f'ds_read2_b32 {vr(t+2+2*k, 2)}, v{EP.MLR+k} offset0:0 offset1:32')
    for k in range(1, 4):
        for j in range(4):
            a(f'ds_read_b128 {vr(MB[k-1] + 4*j, 4)}, v{EP.TR+k} offset:{j*1024}')
    a('s_waitcnt lgkmcnt(12)')
    m = [t+2+2*w for w in range(4)]
    l = [t+3+2*w for w in range(4)]
    a(f'v_max3_f32 v{t}, v{m[0]}, v{m[1]}, v{m[2]}')
    a(f'v_max_f32 v{t}, v{t}, v{m[3]}')
    for w in range(4):
        a(f'v_sub_f32 v{m[w]}, v{m[w]}, v{t}')
    for w in range(4):
        a(f'v_mul_f32 v{m[w]}, s{sC}, v{m[w]}')
    for w in range(4):
        a(f'v_exp_f32 v{m[w]}, v{m[w]}')
    a(f'v_mul_f32 v{t}, v{m[0]}, v{l[0]}')
    for w in range(1, 4):
        a(f'v_fma_f32 v{t}, v{m[w]}, v{l[w]}, v{t}')
    a(f'v_rcp_f32 v{t}, v{t}')
    for w in range(4):
        a(f'v_mul_f32 v{m[w]}, v{m[w]}, v{t}')
    PKE = P.get('pk', 1)
    if PKE:
        for i in range(0, 16, 2): pk('mul', a, AR.O+i, AR.O+i, m[0], bc=1)
    else:
        for i in range(16): a(f'v_mul_f32 v{AR.O+i}, v{AR.O+i}, v{m[0]}')
    for k in range(1, 4):
        a(f's_waitcnt lgkmcnt({12 - 4*k})')
        if PKE:
            for i in range(0, 16, 2): pk('fma', a, AR.O+i, MB[k-1]+i, m[k], AR.O+i, bc=1)
        else:
            for i in range(16): a(f'v_fma_f32 v{AR.O+i}, v{MB[k-1]+i}, v{m[k]}, v{AR.O+i}')
    for i in range(8):
        a(f'v_cvt_pk_bf16_f32 v{AR.P+i}, v{AR.O+2*i}, v{AR.O+2*i+1}')
    ts(a, 24)
    if PPOS == 0:
        a('s_waitcnt vmcnt(0)')
        ts(a, 25)
    a(f'global_store_dwordx4 v{EP.OST}, {vr(AR.P,4)}, {sr(sOut,2)} sc1')
    a(f'global_store_dwordx4 v{EP.OST}, {vr(AR.P+4,4)}, {sr(sOut,2)} offset:1024 sc1')
    if PPOS == 1:
        for beta in range(2): fpoll(a, beta)
    if role == 'B': a('s_branch L_EPI2')

def epi2(a, P):
    a.label('L_EPI2')
    WOPOS = P.get('wopos', 0)
    nwo = 0 if 'nowo2' in ABL else 9
    def early_check():
        for beta in range(2):
            a(f's_mov_b32 s{S_ST+beta}, 0')
            if P.get('early', 1):
                tagcheck(a, [VPOLL + beta], 0)
                a(f's_cselect_b32 s{S_ST+beta}, 4, 0')
    if P.get('ppos', 1) == 0: early_check()
    ts(a, 26)
    if WOPOS == 0:
        a('s_barrier')
        ts(a, 27)
        if nwo: wo_dma(a, P, 1)
        ts(a, 28)
        a(f's_waitcnt vmcnt({nwo})')
    else:
        if WOPOS == 2:
            t = WK.t; vL16 = WK.vL16
            a(f'v_add_u32 v{t}, s{S_WKL}, v{vL16}')
            for k in range(1, 4):
                a(f's_xor_b32 s{S_T}, s{S_W}, {k}')
                a(f's_lshl_b32 s{S_T}, s{S_T}, 13')
                a(f'v_add_u32 v{t+k}, s{S_T}, v{vL16}')
        a('s_waitcnt vmcnt(0)')
    ts(a, 4)
    a('s_barrier')
    a(f's_cmp_lg_u32 s{S_W}, 0')
    a('s_cbranch_scc1 L_noflag')
    store_flag(a, P_WS, EP.FLA, EP.FLV)
    ts(a, 5)
    a.label('L_noflag')
    if WOPOS == 2:
        if P.get('ppos', 1) == 1: early_check()
        for beta in range(2):
            Ls = a.newlabel('L_ne')
            a(f's_cmp_eq_u32 s{S_ST+beta}, 4')
            a(f's_cbranch_scc0 {Ls}')
            a(f's_mov_b32 s{S_ST+beta}, 1')
            for i in range(8): oload8(a, beta, i)
            a.label(Ls)
        wo_regs_to_lds(a, WK.t)
        return
    if P.get('ppos', 1) == 3:
        assert WOPOS == 1
        for beta in range(2): fpoll(a, beta)
        if nwo: wo_dma(a, P, 1)
        t = WK.t; vL16 = WK.vL16
        a(f'v_add_u32 v{t}, s{S_WKL}, v{vL16}')
        for k in range(1, 4):
            a(f's_xor_b32 s{S_T}, s{S_W}, {k}')
            a(f's_lshl_b32 s{S_T}, s{S_T}, 13')
            a(f'v_add_u32 v{t+k}, s{S_T}, v{vL16}')
        a(f's_waitcnt vmcnt({nwo})')
        early_check()
        for beta in range(2):
            Ls = a.newlabel('L_ne')
            a(f's_cmp_eq_u32 s{S_ST+beta}, 4')
            a(f's_cbranch_scc0 {Ls}')
            a(f's_mov_b32 s{S_ST+beta}, 1')
            for i in range(8): oload8(a, beta, i)
            a.label(Ls)
        Ld = a.newlabel('L_wod'); L1 = a.newlabel('L_wo1'); L2 = a.newlabel('L_wo2')
        a(f's_add_u32 s{S_T}, s{S_ST}, s{S_ST+1}')
        a(f's_cmp_eq_u32 s{S_T}, 2')
        a(f's_cbranch_scc1 {L2}')
        a(f's_cmp_eq_u32 s{S_T}, 1')
        a(f's_cbranch_scc1 {L1}')
        a('s_waitcnt vmcnt(0)')
        a(f's_branch {Ld}')
        a.label(L1)
        a('s_waitcnt vmcnt(8)')
        a(f's_branch {Ld}')
        a.label(L2)
        a('s_waitcnt vmcnt(16)')
        a.label(Ld)
        return
    if P.get('ppos', 1) == 1: early_check()
    elif P.get('ppos', 1) == 0 and not P.get('early', 1): early_check()
    if WOPOS == 1 and P.get('wo1late'): wo_dma(a, P, 0)
    if WOPOS == 1 and nwo: wo_dma(a, P, 1)
    a(f's_mov_b32 s{S_NP}, 0')
    for beta in range(2):
        Ls = a.newlabel('L_ne')
        a(f's_cmp_eq_u32 s{S_ST+beta}, 4')
        a(f's_cbranch_scc0 {Ls}')
        a(f's_mov_b32 s{S_ST+beta}, 1')
        a(f's_add_u32 s{S_NP}, s{S_NP}, 2')
        for i in range(8): oload8(a, beta, i)
        a.label(Ls)
    t = WK.t; vL16 = WK.vL16
    a(f'v_add_u32 v{t}, s{S_WKL}, v{vL16}')
    for k in range(1, 4):
        a(f's_xor_b32 s{S_T}, s{S_W}, {k}')
        a(f's_lshl_b32 s{S_T}, s{S_T}, 13')
        a(f'v_add_u32 v{t+k}, s{S_T}, v{vL16}')
    if WOPOS == 0:
        a(f's_cmp_eq_u32 s{S_W}, 0')
        a(f's_addc_u32 s{S_NP}, s{S_NP}, 0')
        cases = [(0, 0), (1, 1), (2, 8), (3, 9), (4, 16), (5, 17)]
    else:
        cases = [(0, 0), (2, 8), (4, 16)]
    Ld = a.newlabel('L_wod')
    for n, (code, cnt) in enumerate(cases):
        if n < len(cases) - 1:
            Ln = a.newlabel('L_woc')
            a(f's_cmp_eq_u32 s{S_NP}, {code}')
            a(f's_cbranch_scc0 {Ln}')
            a(f's_waitcnt vmcnt({cnt})')
            a(f's_branch {Ld}')
            a.label(Ln)
        else:
            a(f's_waitcnt vmcnt({cnt})')
    a.label(Ld)

TLBW = None
WOTOUCH = None
def icheck_site(a):
    L = a.newlabel('L_nic')
    a(f's_cmp_eq_u32 s{S_CNT}, 4')
    a(f's_cbranch_scc0 {L}')
    init_issue(a)
    a.label(L)
def late_site(a):
    L = a.newlabel('L_nts'); L2 = a.newlabel('L_nnc')
    a(f's_cmp_eq_u32 s{S_CNT}, 1')
    a(f's_cbranch_scc0 {L}')
    call(a, 'TAIL_SETUP')
    a.label(L)
    a(f's_cmp_eq_u32 s{S_CNT}, 12')
    a(f's_cbranch_scc0 {L2}')
    init_check(a)
    a(f'v_mov_b32 v{EP.FLV}, s{S_NONCE}')
    a.label(L2)
    if WOTOUCH is not None:
        L3 = a.newlabel('L_nwt')
        a(f's_cmp_eq_u32 s{S_CNT}, {WOTOUCH}')
        a(f's_cbranch_scc0 {L3}')
        a(f'v_lshlrev_b32 v150, 10, v{AR.LANE}')
        a(f's_add_u32 s{S_U}, s{S_WO}, {64 * 1024}')
        a(f'buffer_load_dword v151, v150, {sr(SRD_WQ,4)}, s{S_U} offen')
        a(f's_add_u32 s{S_U}, s{S_WO}, {56 * 1024}')
        a(f'v_and_b32 v150, 0x1c00, v150')
        a(f'buffer_load_dword v151, v150, {sr(SRD_WQ,4)}, s{S_U} offen')
        a.label(L3)

def gen_unit(a, P, role):
    isB = role == 'B'
    POLK = P.get('polK' + role, P['polkv'])
    POLV = P.get('polV' + role, P['polkv'])
    PX, PWQ, PK, PV = (P_BX, P_BWQ, P_BK, P_BV) if isB else (P_AX, P_AWQ, P_AK, P_AV)
    a.label('ROLE_' + role)
    if not isB:
        if P.get('noA'): a('s_branch L_end')
        a(f's_setprio {P["prio_A0"]}')
        a('s_cmp_eq_u32 s2, 256')
        a('s_cbranch_scc0 A_noep')
        a(f's_cmp_eq_u32 s{S_W}, 0')
        a('s_cbranch_scc0 A_noep')
        a(f'v_mov_b32 v{AR.WR1}, {WS_E}')
        a(f'global_load_dword v{AR.WR0}, v{AR.WR1}, {sr(P_WS,2)} sc1')
        a.label('A_noep')
    if P.get('map8'):
        a(f's_and_b32 s{S_T}, s{S_R}, 7')
        a(f's_and_b32 s{S_H}, s{S_X}, 3')
        a(f's_lshl_b32 s{S_H}, s{S_H}, 3')
        a(f's_add_u32 s{S_H}, s{S_H}, s{S_T}')
        a(f's_lshr_b32 s{S_B}, s{S_X}, 2')
        a(f's_lshl_b32 s{S_B}, s{S_B}, 2')
        a(f's_lshr_b32 s{S_T}, s{S_R}, 3')
        a(f's_add_u32 s{S_B}, s{S_B}, s{S_T}')
    else:
        a(f's_and_b32 s{S_T}, s{S_R}, 3')
        a(f's_lshr_b32 s{S_B}, s{S_R}, 2')
        a(f's_lshl_b32 s{S_H}, s{S_X}, 2')
        a(f's_add_u32 s{S_H}, s{S_H}, s{S_T}')
    a(f's_lshl_b32 s{S_T}, s{S_B}, 15')
    a(f's_add_u32 s{SRD_X}, s{PX}, s{S_T}')
    a(f's_addc_u32 s{SRD_X+1}, s{PX+1}, 0')
    srd(a, SRD_X, 32768)
    a(f's_lshl_b32 s{S_T}, s{S_H}, 8')
    a(f's_add_u32 s{SRD_WQ}, s{PWQ}, s{S_T}')
    a(f's_addc_u32 s{SRD_WQ+1}, s{PWQ+1}, 0')
    a(f's_sub_u32 s{S_T+1}, 4194304, s{S_T}')
    srd(a, SRD_WQ, f's{S_T+1}')
    a(f's_and_b32 s{S_STEP}, s{S_B}, 3')
    a(f's_lshl_b32 s{S_T}, s{S_B}, 5')
    a(f's_add_u32 s{S_T}, s{S_T}, s{S_H}')
    if isB:
        a(f's_mov_b32 s{S_G}, s{S_T}')
    else:
        a(f's_lshl_b32 s{S_G}, s{S_B}, 3')
        a(f's_lshr_b32 s{S_T+1}, s{S_H}, 2')
        a(f's_add_u32 s{S_G}, s{S_G}, s{S_T+1}')
    a(f's_lshl_b32 s{S_T+1}, s{S_G}, 19')
    a(f's_lshr_b32 s{S_T+2}, s{S_G}, 13')
    a(f's_add_u32 s{SRD_K}, s{PK}, s{S_T+1}')
    a(f's_addc_u32 s{SRD_K+1}, s{PK+1}, s{S_T+2}')
    srd(a, SRD_K, 524288)
    a(f's_add_u32 s{SRD_V}, s{PV}, s{S_T+1}')
    a(f's_addc_u32 s{SRD_V+1}, s{PV+1}, s{S_T+2}')
    srd(a, SRD_V, 524288)
    if isB: a(f's_add_u32 s{S_T}, s{S_T}, 256')
    a(f's_lshl_b32 s{S_T}, s{S_T}, {14 if OTAG else 13}')
    a(f's_add_u32 s{S_T}, s{S_T}, {WS_O}')
    a(f's_add_u32 s{S_A}, s{P_WS}, s{S_T}')
    a(f's_addc_u32 s{S_A+1}, s{P_WS+1}, 0')
    setup_dma_B(a)
    a(f's_lshl_b32 s{S_KL}, s{S_W}, 13')
    a(f's_add_u32 s{S_VL}, s{S_KL}, 32768')
    a(f's_mul_i32 s{S_ROT}, s{2 if isB else S_G}, 5')
    a(f's_mul_i32 s{S_T}, s{S_W}, 3')
    a(f's_add_u32 s{S_ROT}, s{S_ROT}, s{S_T}')
    a(f's_and_b32 s{S_ROT}, s{S_ROT}, 15')
    a(f's_lshl_b32 s{S_ROT}, s{S_ROT}, 13')
    a(f's_lshl_b32 s{S_WB}, s{S_W}, 17')
    a(f's_add_u32 s{S_SO}, s{S_WB}, s{S_ROT}')
    kp = lambda p: AR.DK + p
    vp = lambda p: AR.DV
    TL = P.get('t' + role, '')
    TL = [x for x in TL.split(',') if x]
    def touches():
        if not TL: return
        a(f'v_lshlrev_b32 v{AR.WR1}, 7, v{AR.LANE}')
        for x in TL:
            k = int(x[1:]); srdn = SRD_K if x[0] == 'K' else SRD_V
            a(f's_add_u32 s{S_U}, s{S_ROT}, {k * 8192}')
            a(f's_and_b32 s{S_U}, s{S_U}, 0x1ffff')
            a(f's_add_u32 s{S_U}, s{S_U}, s{S_WB}')
            a(f'buffer_load_dword v{AR.WR0}, v{AR.WR1}, {sr(srdn,4)}, s{S_U} offen {P.get("poltouch","")}')
    V0E = P.get('v0e', '').find(role) >= 0
    V0POS = P.get('v0pos', 3)
    def v0dma(): dma_tile8k(a, SRD_V, S_SO, S_VL, S_U + 2, POLV, vp)
    def kdma():
        dma_tile8k(a, SRD_K, S_SO, S_KL, S_U, POLK, kp)
        if V0E and V0POS < 0: dma_tile8k(a, SRD_V, S_SO, S_VL, S_U, POLV, vp)
        touches()
    npre = 0
    def pretouch(which):
        if which == 'wq':
            a(f'v_lshrrev_b32 v{AR.WR1}, 2, v{AR.LANE}')
            a(f's_lshl_b32 s{S_U}, s{S_B}, 6')
            a(f's_lshl_b32 s{S_U+2}, s{S_W}, 4')
            a(f's_add_u32 s{S_U}, s{S_U}, s{S_U+2}')
            a(f'v_add_u32 v{AR.WR1}, s{S_U}, v{AR.WR1}')
            a(f'v_lshlrev_b32 v{AR.WR1}, 13, v{AR.WR1}')
            a(f'v_and_b32 v{QT+5}, 3, v{AR.LANE}')
            a(f'v_lshl_add_u32 v{AR.WR1}, v{QT+5}, 6, v{AR.WR1}')
            a(f's_lshl_b32 s{S_U}, s{S_H}, 8')
            a(f'v_add_u32 v{AR.WR1}, s{S_U}, v{AR.WR1}')
            a(f'global_load_dword v{AR.WR0}, v{AR.WR1}, {sr(P_AWQ,2)}')
        else:
            a(f'v_lshlrev_b32 v{AR.WR1}, 5, v{AR.LANE}')
            a(f's_lshl_b32 s{S_U}, s{S_R}, 13')
            a(f's_lshl_b32 s{S_U+2}, s{S_W}, 11')
            a(f's_add_u32 s{S_U}, s{S_U}, s{S_U+2}')
            a(f'v_add_u32 v{AR.WR1}, s{S_U}, v{AR.WR1}')
            a(f'global_load_dword v{AR.WR0}, v{AR.WR1}, {sr(P_AX,2)}')
    PT = [x for x in P.get('pre', '').split(',') if x] if isB else []
    PTPOS = P.get('prepos', 0)
    if PTPOS == 0:
        for x in PT: pretouch(x)
    kdma0 = kdma
    def kdma():
        kdma0()
        if PTPOS == 1:
            for x in PT: pretouch(x)
    kpos = P['kpos'] if isB else P['kposA']
    if kpos < 0: kdma()
    qb_loads(a, P, kpos, kdma if kpos >= 0 else None)
    ts(a, 21)
    qb_compute(a, P, kpos, (16 if (V0E and V0POS < 0) else 8) + len(TL) + (len(PT) if PTPOS == 1 else 0), small=V0E,
               after=(v0dma if (V0E and V0POS >= 0) else None), afterstep=V0POS)
    ts(a, 1)
    if not isB:
        a('s_cmp_eq_u32 s2, 256')
        a('s_cbranch_scc0 A_noep2')
        a(f's_cmp_eq_u32 s{S_W}, 0')
        a('s_cbranch_scc0 A_noep2')
        a(f'v_readfirstlane_b32 s{S_T}, v{AR.WR0}')
        a(f's_add_u32 s{S_T}, s{S_T}, {NONCE_C}')
        a(f's_cmp_eq_u32 s{S_T}, 0')
        a(f's_cselect_b32 s{S_T}, {NONCE_C}, s{S_T}')
        a(f'v_mov_b32 v{AR.WR0}, s{S_T}')
        a(f'v_mov_b32 v{AR.WR1}, 0')
        a('s_mov_b64 exec, 1')
        a(f'global_store_dword v{AR.WR1}, v{AR.WR0}, {sr(P_WS,2)} offset:{WS_E} sc1')
        a(f'global_store_dword v{AR.WR1}, v{AR.WR0}, {sr(P_DBG,2)} sc1')
        a('s_mov_b64 exec, -1')
        a.label('A_noep2')
    OUT = 16
    a('s_barrier')
    bmode = P['bmode'] if isB else P['bmodeA']
    if bmode == 0 and not V0E:
        dma_tile8k(a, SRD_V, S_SO, S_VL, S_U, POLV, vp)
    t = AR.T; L = AR.LANE
    a(f'v_lshrrev_b32 v{t+8}, 4, v{L}')
    a(f'v_lshlrev_b32 v{t+8}, 11, v{t+8}')
    a(f'v_and_b32 v{t+9}, 15, v{L}')
    a(f'v_lshl_add_u32 v{t+8}, v{t+9}, 4, v{t+8}')
    a(f's_lshl_b32 s{S_T}, s{S_W}, 9')
    a(f's_add_u32 s{S_T}, s{S_T}, 65536')
    a(f'v_add_u32 v{t+8}, s{S_T}, v{t+8}')
    a(f'ds_write_b128 v{t+8}, {vr(OUT,4)}')
    a(f'ds_write_b128 v{t+8}, {vr(OUT+4,4)} offset:256')
    a(f's_mov_b32 s{S_U+1}, s{S_KL}')
    a(f's_mov_b32 s{S_U+2}, s{S_VL}')
    a(f's_mov_b32 s{S_U+3}, s{S_W}')
    call(a, 'SUB_READS')
    a('s_waitcnt lgkmcnt(0)')
    a('s_barrier')
    a(f'v_lshrrev_b32 v{t}, 5, v{L}')
    a(f'v_lshlrev_b32 v{t}, 12, v{t}')
    a(f'v_and_b32 v{t+1}, 31, v{L}')
    a(f'v_lshl_add_u32 v{t}, v{t+1}, 4, v{t}')
    a(f'v_add_u32 v{t}, 65536, v{t}')
    for s in range(8):
        a(f'ds_read_b128 {vr(AR.Q+4*s,4)}, v{t} offset:{s*512}')
    a(f's_mov_b32 s{S_PROB}, {1 if isB else 0}')
    a(f's_mov_b32 s{SRD_Y}, s{P_WS}')
    a(f's_mov_b32 s{SRD_Y+1}, s{P_WS+1}')
    srd(a, SRD_Y, YT)
    a(f's_mov_b32 s{S_CNT}, 0')
    a(f'v_mov_b32 v{VDBG+4}, 0')
    ts(a, 2)
    a(f's_setprio {P["prio_B" if isB else "prio_A"]}')
    def adv():
        a(f's_add_u32 s{S_ROT}, s{S_ROT}, 8192')
        a(f's_and_b32 s{S_ROT}, s{S_ROT}, 0x1ffff')
        a(f's_add_u32 s{S_SO}, s{S_WB}, s{S_ROT}')
    def loop_end(lbl, lim):
        ts(a, 32, S_CNT)
        a(f's_add_u32 s{S_CNT}, s{S_CNT}, 1')
        a(f's_cmp_lt_u32 s{S_CNT}, {lim}')
        a(f's_cbranch_scc1 {lbl}')
    def body0(lbl, entry=None):
        a.label(lbl)
        if (not isB) and P.get('ahi') is not None:
            Lp = a.newlabel('L_pr')
            a(f's_cmp_eq_u32 s{S_CNT}, {P["ahi"]}')
            a(f's_cbranch_scc0 {Lp}')
            a(f's_setprio {P["prio_A2"]}')
            a.label(Lp)
        a('s_waitcnt vmcnt(8)')
        if entry: a.label(entry)
        read_k(a)
        adv()
        a('s_waitcnt lgkmcnt(0)')
        icheck_site(a)
        Lk = a.newlabel('L_knext'); Lk2 = a.newlabel('L_kdone')
        a(f's_cmp_eq_u32 s{S_CNT}, 15')
        a(f's_cbranch_scc0 {Lk}')
        if not P.get('wo1late'): wo_dma(a, P, 0)
        if P.get('wopos', 0) == 2: wo_regs(a, P)
        mfma_s(a)
        a(f's_waitcnt vmcnt({(9 if P.get("wopos", 0) == 2 else 0) + (0 if P.get("wo1late") else 7)})')
        a(f's_branch {Lk2}')
        a.label(Lk)
        dma_tile8k(a, SRD_K, S_SO, S_KL, S_U, POLK, kp)
        mfma_s(a)
        a('s_waitcnt vmcnt(8)')
        a.label(Lk2)
        call(a, 'SUB_SOFT')
        Lv = a.newlabel('L_vskip')
        a(f's_cmp_eq_u32 s{S_CNT}, 15')
        a(f's_cbranch_scc1 {Lv}')
        dma_tile8k(a, SRD_V, S_SO, S_VL, S_U, POLV, vp)
        a.label(Lv)
        late_site(a)
        mfma_pv(a)
        loop_end(lbl, 16)
    def body1(lbl, lim):
        a.label(lbl)
        a('s_waitcnt vmcnt(0)')
        if V0E:
            Lv0 = a.newlabel('L_v0')
            a(f's_cmp_eq_u32 s{S_CNT}, 0')
            a(f's_cbranch_scc1 {Lv0}')
        dma_tile8k(a, SRD_V, S_SO, S_VL, S_U, POLV, vp)
        if V0E: a.label(Lv0)
        read_k(a)
        if P.get('wopos', 0) == 2 and lim == 16:
            Lz = a.newlabel('L_nwr')
            a(f's_cmp_eq_u32 s{S_CNT}, 15')
            a(f's_cbranch_scc0 {Lz}')
            wo_regs(a, P)
            a.label(Lz)
        adv()
        a('s_waitcnt lgkmcnt(0)')
        mfma_s(a)
        call(a, 'SUB_SOFT2')
        if P.get('wopos', 0) == 2 and lim == 16:
            Lx = a.newlabel('L_vw'); Ly = a.newlabel('L_vwd')
            a(f's_cmp_eq_u32 s{S_CNT}, 15')
            a(f's_cbranch_scc0 {Lx}')
            a('s_waitcnt vmcnt(9)')
            a(f's_branch {Ly}')
            a.label(Lx)
            a('s_waitcnt vmcnt(0)')
            a.label(Ly)
        else:
            a('s_waitcnt vmcnt(0)')
        icheck_site(a)
        if lim == 16:
            Lk = a.newlabel('L_knext'); Lk2 = a.newlabel('L_kdone')
            a(f's_cmp_eq_u32 s{S_CNT}, 15')
            a(f's_cbranch_scc0 {Lk}')
            if not P.get('wo1late'): wo_dma(a, P, 0)
            a(f's_branch {Lk2}')
            a.label(Lk)
            dma_tile8k(a, SRD_K, S_SO, S_KL, S_U, POLK, kp)
            a.label(Lk2)
        else:
            dma_tile8k(a, SRD_K, S_SO, S_KL, S_U, POLK, kp)
        late_site(a)
        read_v(a)
        a('s_waitcnt lgkmcnt(0)')
        mfma_pv(a)
        loop_end(lbl, lim)
    hyb = P.get('hyb' + role)
    if bmode == 0:
        body0(role + '_loop')
    elif hyb is None:
        body1(role + '_loop', 16)
    else:
        body1(role + '_loop', hyb)
        a('s_waitcnt vmcnt(0)')
        dma_tile8k(a, SRD_V, S_SO, S_VL, S_U, POLV, vp)
        a(f's_branch {role}_entry0')
        body0(role + '_loop0', role + '_entry0')
    a(f's_setprio {P["prio_start"] if isB else P["prio_W"]}')
    ts(a, 3)
    epi_c(a, role, P)
    if not isB:
        epi2(a, P)
        worky(a, P)
        a('s_branch L_end')

YWF = 128; YOF = 0; YAC = 64
class WK:
    vL16 = 226; vP = 227; vY = 228; vOut = 229; vF = 230; t = 199
S_OS = 60
S_OS4 = 72
S_YS = 76
S_YH = 77
def tail_setup(a, P):
    a.label('TAIL_SETUP')
    L = AR.LANE; t = AR.S; st = S_T
    S_MT = S_U + 2; S_NT = S_U + 3
    a(f's_and_b32 s{S_MT}, s{S_R}, 3')
    a(f's_lshr_b32 s{S_NT}, s{S_R}, 2')
    a(f's_lshl_b32 s{S_WKL}, s{S_W}, 13')
    a(f'v_lshlrev_b32 v{WK.vL16}, 4, v{L}')
    a(f's_lshl_b32 s{S_WH}, s{S_X}, 2')
    a(f's_add_u32 s{S_WH}, s{S_WH}, s{S_W}')
    a(f's_cmp_eq_u32 s{S_PROB}, 1')
    a(f's_cselect_b32 s{st+2}, s{P_BWO}, s{P_AWO}')
    a(f's_cselect_b32 s{st+3}, s{P_BWO+1}, s{P_AWO+1}')
    a(f's_lshl_b32 s{st}, s{S_NT}, 7')
    a(f's_add_u32 s{SRD_WQ}, s{st+2}, s{st}')
    a(f's_addc_u32 s{SRD_WQ+1}, s{st+3}, 0')
    a(f's_sub_u32 s{st+1}, 4194304, s{st}')
    srd(a, SRD_WQ, f's{st+1}')
    a(f's_lshl_b32 s{S_WO}, s{S_WH}, 17')
    a(f's_mov_b32 s{S_WL}, s{S_WKL}')
    a(f'v_lshrrev_b32 v{AR.WD}, 3, v{L}')
    a(f'v_lshlrev_b32 v{AR.WD}, 10, v{AR.WD}')
    a(f'v_and_b32 v{t}, 7, v{L}')
    a(f'v_lshl_add_u32 v{AR.WD}, v{t}, 4, v{AR.WD}')
    a(f'v_lshrrev_b32 v{t}, 5, v{L}')
    a(f'v_lshlrev_b32 v{t}, 2, v{t}')
    a(f'v_bfe_u32 v{t+1}, v{L}, 2, 2')
    a(f'v_add_u32 v{t}, v{t}, v{t+1}')
    a(f'v_lshlrev_b32 v{t}, 7, v{t}')
    a(f'v_bfe_u32 v{t+1}, v{L}, 4, 1')
    a(f'v_lshl_add_u32 v{t}, v{t+1}, 5, v{t}')
    a(f'v_and_b32 v{t+1}, 3, v{L}')
    a(f'v_lshl_add_u32 v{t}, v{t+1}, 3, v{t}')
    a(f's_and_b32 s{st}, s{S_W}, 1')
    a(f's_lshl_b32 s{st}, s{st}, 6')
    a(f's_add_u32 s{st+1}, s{S_WKL}, s{st}')
    a(f'v_add_u32 v{AR.WR0}, s{st+1}, v{t}')
    a(f's_xor_b32 s{st+1}, s{st+1}, 64')
    a(f'v_add_u32 v{AR.WR1}, s{st+1}, v{t}')
    a(f's_lshl_b32 s{st}, s{S_PROB}, 3')
    a(f's_lshl_b32 s{st+1}, s{S_MT}, 1')
    a(f's_add_u32 s{st}, s{st}, s{st+1}')
    a(f's_lshl_b32 s{st}, s{st}, 5')
    a(f's_add_u32 s{st}, s{st}, s{S_WH}')
    a(f's_lshl_b32 s{st+1}, s{st}, 13')
    a(f's_add_u32 s{st+1}, s{st+1}, {WS_O}')
    a(f's_add_u32 s{SRD_X}, s{P_WS}, s{st+1}')
    a(f's_addc_u32 s{SRD_X+1}, s{P_WS+1}, 0')
    srd(a, SRD_X, 262144 + 8192)
    a(f's_lshr_b32 s{st+1}, s{S_W}, 1')
    a(f's_lshl_b32 s{S_OS4}, s{st+1}, 18')
    a(f's_add_u32 s{S_OS4+1}, s{S_OS4}, 4096')
    a(f's_xor_b32 s{S_OS4+2}, s{S_OS4}, 262144')
    a(f's_add_u32 s{S_OS4+3}, s{S_OS4+2}, 4096')
    a(f's_lshl_b32 s{st}, s{st}, 7')
    a(f's_add_u32 s{st}, s{st}, {FL_O2}')
    a(f's_lshl_b32 s{st+1}, s{st+1}, 12')
    a(f's_add_u32 s{st+2}, s{st}, s{st+1}')
    a(f'v_mov_b32 v{WK.vF}, s{st+2}')
    a(f's_xor_b32 s{st+1}, s{st+1}, 4096')
    a(f's_add_u32 s{st+2}, s{st}, s{st+1}')
    a(f'v_mov_b32 v{WK.vF+1}, s{st+2}')
    a(f's_lshl_b32 s{st}, s{S_B}, 5')
    a(f's_lshl_b32 s{st+1}, s{S_PROB}, 8')
    a(f's_add_u32 s{st}, s{st}, s{st+1}')
    a(f's_add_u32 s{st}, s{st}, s{S_H}')
    a(f's_lshl_b32 s{st}, s{st}, 7')
    a(f's_add_u32 s{st}, s{st}, {FL_O2}')
    a(f'v_mov_b32 v{EP.FLA}, s{st}')
    a(f's_lshl_b32 s{st}, s{S_PROB}, 5')
    a(f's_lshl_b32 s{st+1}, s{S_MT}, 3')
    a(f's_add_u32 s{st}, s{st}, s{st+1}')
    a(f's_add_u32 s{st}, s{st}, s{S_NT}')
    a(f's_lshl_b32 s{st+1}, s{st}, 17')
    a(f's_add_u32 s{st+1}, s{st+1}, {WS_Y}')
    a(f's_add_u32 s{SRD_Y}, s{P_WS}, s{st+1}')
    a(f's_addc_u32 s{SRD_Y+1}, s{P_WS+1}, 0')
    srd(a, SRD_Y, YT)
    a(f's_lshl_b32 s{S_YS}, s{S_X}, 14')
    a(f's_lshl_b32 s{st}, s{S_W}, 12')
    a(f's_add_u32 s{S_YS}, s{S_YS}, s{st}')
    a(f's_mov_b32 s{S_YH}, 65536')
    a(f's_lshr_b32 s{st}, s{S_X}, 2')
    a(f's_lshl_b32 s{st}, s{st}, 13')
    a(f's_and_b32 s{st+1}, s{S_W}, 1')
    a(f's_lshl_b32 s{st+1}, s{st+1}, 12')
    a(f's_add_u32 s{st}, s{st}, s{st+1}')
    a(f's_and_b32 s{st+1}, s{S_X}, 3')
    a(f's_lshl_b32 s{st+1}, s{st+1}, 7')
    a(f's_add_u32 s{st}, s{st}, s{st+1}')
    a(f'v_lshrrev_b32 v{t}, 4, v{L}')
    a(f'v_bfe_u32 v{t+1}, v{L}, 3, 1')
    a(f'v_and_b32 v{t+2}, 7, v{L}')
    a(f'v_lshlrev_b32 v{t+3}, 14, v{t}')
    a(f'v_lshl_add_u32 v{t+3}, v{t+1}, 9, v{t+3}')
    a(f'v_lshl_add_u32 v{t+3}, v{t+2}, 4, v{t+3}')
    a(f'v_add_u32 v{t+3}, s{st}, v{t+3}')
    a(f's_lshr_b32 s{st}, s{S_W}, 1')
    a(f's_lshl_b32 s{st+1}, s{st}, 10')
    a(f'v_add_u32 v{WK.vP}, s{st+1}, v{t+3}')
    a(f's_lshl_b32 s{st+1}, s{st}, 3')
    a(f's_add_u32 s{st+1}, s{st+1}, 2048')
    a(f'v_add_u32 v{WK.vY}, s{st+1}, v{t+3}')
    a(f's_lshl_b32 s{st}, s{S_MT}, 1')
    a(f's_lshr_b32 s{st+1}, s{S_X}, 2')
    a(f's_add_u32 s{st}, s{st}, s{st+1}')
    a(f's_lshl_b32 s{st}, s{st}, 16')
    a(f's_and_b32 s{st+1}, s{S_X}, 3')
    a(f's_lshl_b32 s{st+1}, s{st+1}, 14')
    a(f's_add_u32 s{st}, s{st}, s{st+1}')
    a(f's_lshl_b32 s{st+1}, s{S_PROB}, 10')
    a(f's_add_u32 s{st}, s{st}, s{st+1}')
    a(f's_lshl_b32 s{st+1}, s{S_NT}, 7')
    a(f's_add_u32 s{st}, s{st}, s{st+1}')
    a(f's_and_b32 s{st+1}, s{S_W}, 1')
    a(f's_lshl_b32 s{st+1}, s{st+1}, 6')
    a(f's_add_u32 s{st}, s{st}, s{st+1}')
    a(f's_lshr_b32 s{st+1}, s{S_W}, 1')
    a(f's_lshl_b32 s{st+1}, s{st+1}, 4')
    a(f's_add_u32 s{st}, s{st}, s{st+1}')
    a(f'v_lshlrev_b32 v{t+3}, 11, v{t+2}')
    a(f'v_lshl_add_u32 v{t+3}, v{t+1}, 5, v{t+3}')
    a(f'v_lshl_add_u32 v{t+3}, v{t}, 2, v{t+3}')
    a(f'v_add_u32 v{WK.vOut}, s{st}, v{t+3}')
    a(f's_mov_b32 s{S_HI}, 0')
    a(f's_mov_b32 s{S_HI+1}, -1')
    a(f's_add_u32 s{st}, s{S_KL}, 7168')
    a(f'v_lshlrev_b32 v{t}, 2, v{L}')
    a(f'v_add_u32 v{EP.MLW}, s{st}, v{t}')
    a(f'v_add_u32 v{EP.TW}, s{S_VL}, v{WK.vL16}')
    a(f's_lshl_b32 s{st+1}, s{S_W}, 12')
    a(f's_add_u32 s{st+1}, s{st+1}, {STG}')
    a(f'v_add_u32 v{EP.SW}, s{st+1}, v{WK.vL16}')
    a(f'v_and_b32 v{t}, 31, v{L}')
    a(f'v_lshlrev_b32 v{t}, 2, v{t}')
    for k in range(4):
        a(f's_sub_u32 s{st}, s{S_W}, {k}')
        a(f's_and_b32 s{st}, s{st}, 3')
        a(f's_lshl_b32 s{st+1}, s{st}, 13')
        a(f's_add_u32 s{st+2}, s{st+1}, 7168')
        a(f'v_add_u32 v{EP.MLR+k}, s{st+2}, v{t}')
        if k >= 1:
            if k < 3:
                a(f's_add_u32 s{st+1}, s{st+1}, {32768 + (k-1)*4096}')
            else:
                a(f's_lshl_b32 s{st+1}, s{st}, 12')
                a(f's_add_u32 s{st+1}, s{st+1}, {STG}')
            a(f'v_add_u32 v{EP.TR+k}, s{st+1}, v{WK.vL16}')
    a(f's_lshl_b32 s{st}, s{S_W}, 11')
    a(f'v_add_u32 v{EP.OST}, s{st}, v{WK.vL16}')
    ret(a)

S_ST = 98
S_NP = 92
YC = 208
def oreg(beta, wp, c):
    return YOF + (beta*8 + 2*wp + c)*4 if c < 2 else YC + (beta*4 + wp)*4
def oload(a, beta, wp, c):
    a(f'buffer_load_dwordx4 {vr(oreg(beta, wp, c), 4)}, v{WK.vL16}, {sr(SRD_X,4)}, s{S_OS + beta*4 + wp} offen offset:{c*1024} sc1')
def oload8(a, beta, i):
    a(f'buffer_load_dwordx4 {vr(YOF + (beta*8+i)*4, 4)}, v{WK.vL16}, {sr(SRD_X,4)}, s{S_OS4 + beta*2 + (i>>2)} offen offset:{(i&3)*1024} sc1')
def tagcheck(a, regs, tmp):
    regs = list(regs)
    mn, mx = tmp, tmp + 1
    if len(regs) == 1:
        a(f'v_cmp_ne_u32 vcc, s{S_NONCE}, v{regs[0]}')
        a('s_cmp_eq_u64 vcc, 0')
        return
    assert len(regs) >= 3
    a(f'v_min3_u32 v{mn}, v{regs[0]}, v{regs[1]}, v{regs[2]}')
    a(f'v_max3_u32 v{mx}, v{regs[0]}, v{regs[1]}, v{regs[2]}')
    rest = regs[3:]
    while rest:
        if len(rest) >= 2:
            a(f'v_min3_u32 v{mn}, v{mn}, v{rest[0]}, v{rest[1]}')
            a(f'v_max3_u32 v{mx}, v{mx}, v{rest[0]}, v{rest[1]}')
            rest = rest[2:]
        else:
            a(f'v_min_u32 v{mn}, v{mn}, v{rest[0]}')
            a(f'v_max_u32 v{mx}, v{mx}, v{rest[0]}')
            rest = rest[1:]
    a(f'v_xor_b32 v{mn}, s{S_NONCE}, v{mn}')
    a(f'v_xor_b32 v{mx}, s{S_NONCE}, v{mx}')
    a(f'v_or_b32 v{mn}, v{mn}, v{mx}')
    a(f'v_cmp_ne_u32 vcc, 0, v{mn}')
    a('s_cmp_eq_u64 vcc, 0')

VPOLL = 240
def tr_reads(a):
    for Tt in range(4):
        for u in range(2):
            for nu in range(2):
                for v in range(2):
                    r = YWF + ((Tt*2+u)*2 + nu)*4 + 2*v
                    a(f'ds_read_b64_tr_b16 {vr(r, 2)}, v{AR.WR0 + nu} offset:{(Tt>>1)*32768 + (32*(Tt&1) + 16*u + 8*v) * 128}')
def fpoll(a, beta):
    a(f'global_load_dword v{VPOLL+beta}, v{WK.vF+beta}, {sr(P_WS,2)} sc1')
def ophase_flag(a, P):
    t = WK.t; vL16 = WK.vL16
    ts(a, 8)
    Ltop = a.newlabel('L_top'); Ld = a.newlabel('L_done')
    a(f's_mov_b32 s{S_SPIN}, {SPIN_LIMIT}')
    tr_reads(a)
    a.label(Ltop)
    a(f's_mov_b32 s{S_NP}, 0')
    for beta in range(2):
        Ls = a.newlabel('L_sk')
        a(f's_cmp_lg_u32 s{S_ST+beta}, 0')
        a(f's_cbranch_scc1 {Ls}')
        fpoll(a, beta)
        a(f's_add_u32 s{S_NP}, s{S_NP}, 1')
        a.label(Ls)
    for beta in range(2):
        Ls = a.newlabel('L_np'); Lw1 = a.newlabel('L_w1'); Lw11 = a.newlabel('L_w11'); Lw = a.newlabel('L_w')
        a(f's_bitcmp1_b32 s{S_ST+beta}, 0')
        a(f's_cbranch_scc0 {Ls}')
        a(f's_cmp_eq_u32 s{S_ST+beta}, 3')
        a(f's_cbranch_scc1 {Lw}')
        if beta == 0:
            a(f's_cmp_eq_u32 s{S_ST+1}, 1')
            a(f's_cbranch_scc1 {Lw11}')
        a(f's_cmp_eq_u32 s{S_NP}, 0')
        a(f's_cbranch_scc0 {Lw1}')
        a('s_waitcnt vmcnt(0)')
        a(f's_branch {Lw}')
        if beta == 0:
            a.label(Lw11)
            a('s_waitcnt vmcnt(8)')
            a(f's_branch {Lw}')
        a.label(Lw1)
        a('s_waitcnt vmcnt(1)')
        a.label(Lw)
        a(f's_mov_b32 s{S_ST+beta}, 2')
        if beta == 0: ts(a, 9)
        a('s_waitcnt lgkmcnt(0)')
        for i in range(8):
            for nu in range(2):
                acc = vr(YAC + (beta*2+nu)*16, 16)
                c = '0' if i == 0 else acc
                a(f'v_mfma_f32_32x32x16_bf16 {acc}, {vr(YWF + (i*2+nu)*4, 4)}, {vr(YOF + (beta*8+i)*4, 4)}, {c}')
        a.label(Ls)
    a(f's_and_b32 s{S_T}, s{S_ST}, s{S_ST+1}')
    a(f's_cmp_eq_u32 s{S_T}, 2')
    a(f's_cbranch_scc1 {Ld}')
    a('s_waitcnt vmcnt(0)')
    a(f's_mov_b32 s{S_T+1}, 0')
    for beta in range(2):
        Ls = a.newlabel('L_nc')
        a(f's_cmp_lg_u32 s{S_ST+beta}, 0')
        a(f's_cbranch_scc1 {Ls}')
        tagcheck(a, [VPOLL + beta], t+4)
        a(f's_cbranch_scc0 {Ls}')
        a(f's_mov_b32 s{S_ST+beta}, 1')
        a(f's_mov_b32 s{S_T+1}, 1')
        for i in range(8): oload8(a, beta, i)
        a.label(Ls)
    Lns = a.newlabel('L_nosl')
    a(f's_cmp_lg_u32 s{S_T+1}, 0')
    a(f's_cbranch_scc1 {Lns}')
    if P['sleep']: a(f's_sleep {P["sleep"]}')
    a.label(Lns)
    a(f's_sub_u32 s{S_SPIN}, s{S_SPIN}, 1')
    a(f's_cmp_lg_u32 s{S_SPIN}, 0')
    a(f's_cbranch_scc1 {Ltop}')
    a.label(Ld)

def worky(a, P):
    t = WK.t; vL16 = WK.vL16
    ophase_flag(a, P)
    ts(a, 10)
    yoffs = [0, 4096, 32768]
    for k in range(1, 4):
        for j in range(4):
            a(f'ds_write_b128 v{t}, {vr(YAC + 16*k + 4*j, 4)} offset:{yoffs[k-1] + j*1024}')
    R = 192 + 16
    for i in (3, 7, 9, 11): a(f'v_mov_b32 v{R+i}, s{S_NONCE}')
    a('s_waitcnt lgkmcnt(0)')
    a('s_barrier')
    for k in range(1, 4):
        for j in range(4):
            a(f'ds_read_b128 {vr(YOF + 16*(k-1) + 4*j, 4)}, v{t+k} offset:{yoffs[k-1] + j*1024}')
    a('s_waitcnt lgkmcnt(4)')
    for i in range(0, 16, 2): pk('add', a, YOF+i, YOF+i, YOF+16+i)
    for i in range(0, 16, 2): pk('add', a, YAC+i, YAC+i, YOF+i)
    a('s_waitcnt lgkmcnt(0)')
    for i in range(0, 16, 2): pk('add', a, YAC+i, YAC+i, YOF+32+i)
    order = [0, 2, 1, 3]
    for n, j in enumerate(order):
        for d in range(2):
            a(f'v_cvt_pk_bf16_f32 v{R + CMAP[2*n + d]}, v{YAC + 4*j + 2*d}, v{YAC + 4*j + 2*d + 1}')
    for base in (0, 4):
        for d in range(2):
            a(f'v_permlane32_swap_b32 v{R + CMAP[base + d]}, v{R + CMAP[base + 2 + d]}')
    for g in range(3):
        a(f'buffer_store_dwordx4 {vr(R + 4*g, 4)}, v{vL16}, {sr(SRD_Y,4)}, s{S_YS} offen offset:{g*1024} sc1')
    ts(a, 11)
    X = 16; XC = 24
    Lq = a.newlabel('L_p2'); Lqd = a.newlabel('L_p2d')
    a(f's_mov_b32 s{S_SPIN}, {SPIN_LIMIT}')
    YP = P.get('ypoll', 0)
    if YP:
        Ln = a.newlabel('L_yn'); Lnd = a.newlabel('L_ynd'); Lw = a.newlabel('L_yw')
        a(f'v_and_b32 v{t+6}, 7, v{AR.LANE}')
        a(f'v_lshlrev_b32 v{t+6}, 14, v{t+6}')
        a(f's_lshr_b32 s{S_T}, s{S_X}, 2')
        a(f's_lshl_b32 s{S_T}, s{S_T}, 13')
        a(f's_and_b32 s{S_T+1}, s{S_W}, 1')
        a(f's_lshl_b32 s{S_T+1}, s{S_T+1}, 12')
        a(f's_add_u32 s{S_T}, s{S_T}, s{S_T+1}')
        a(f's_add_u32 s{S_T}, s{S_T}, {2048 + 63*16 + 12}')
        a(f'v_add_u32 v{t+6}, s{S_T}, v{t+6}')
        if YP == 2:
            a(f's_cmp_lg_u32 s{S_W}, 0')
            a(f's_cbranch_scc1 {Lw}')
        a.label(Ln)
        a(f'buffer_load_dword v{t+7}, v{t+6}, {sr(SRD_Y,4)}, 0 offen sc1')
        a('s_waitcnt vmcnt(0)')
        tagcheck(a, [t+7], t+4)
        a(f's_cbranch_scc1 {Lnd}')
        if P['sleep']: a(f's_sleep {P["sleep"]}')
        a(f's_sub_u32 s{S_SPIN}, s{S_SPIN}, 1')
        a(f's_cmp_lg_u32 s{S_SPIN}, 0')
        a(f's_cbranch_scc1 {Ln}')
        a.label(Lnd)
        if YP == 2:
            a.label(Lw)
            a('s_barrier')
        a(f's_mov_b32 s{S_SPIN}, {SPIN_LIMIT}')
    a.label(Lq)
    a(f'buffer_load_dwordx4 {vr(X, 4)}, v{WK.vP}, {sr(SRD_Y,4)}, 0 offen sc1')
    a(f'buffer_load_dwordx4 {vr(X+4, 4)}, v{WK.vP}, {sr(SRD_Y,4)}, s{S_YH} offen sc1')
    a(f'buffer_load_dwordx2 {vr(XC, 2)}, v{WK.vY}, {sr(SRD_Y,4)}, 0 offen sc1')
    a(f'buffer_load_dwordx2 {vr(XC+2, 2)}, v{WK.vY}, {sr(SRD_Y,4)}, s{S_YH} offen sc1')
    a('s_waitcnt vmcnt(0)')
    tagcheck(a, [X+3, X+7, XC+1, XC+3], t+4)
    a(f's_cbranch_scc1 {Lqd}')
    if P['sleep']: a(f's_sleep {P["sleep"]}')
    a(f's_sub_u32 s{S_SPIN}, s{S_SPIN}, 1')
    a(f's_cmp_lg_u32 s{S_SPIN}, 0')
    a(f's_cbranch_scc1 {Lq}')
    a.label(Lqd)
    ts(a, 12)
    a(f'v_mov_b32 v{X+3}, v{XC}')
    a(f'v_mov_b32 v{X+7}, v{XC+2}')
    a(f's_mov_b32 s{S_T}, 0xffff0000')
    U = 32
    for d in range(4):
        a(f'v_lshlrev_b32 v{U + 2*d}, 16, v{X + d}')
        a(f'v_and_b32 v{U + 2*d + 1}, s{S_T}, v{X + d}')
    for d in range(4):
        a(f'v_lshlrev_b32 v{U + 8 + 2*d}, 16, v{X + 4 + d}')
        a(f'v_and_b32 v{U + 8 + 2*d + 1}, s{S_T}, v{X + 4 + d}')
    for e in range(8):
        a(f'v_add_f32 v{U + e}, v{U + e}, v{U + 8 + e}')
    for i in range(4):
        a(f'v_permlane32_swap_b32 v{U + i}, v{U + 4 + i}')
    for i in range(4):
        a(f'v_add_f32 v{U + i}, v{U + i}, v{U + 4 + i}')
    for i in range(2):
        a(f'v_permlane16_swap_b32 v{U + i}, v{U + 2 + i}')
    for i in range(2):
        a(f'v_add_f32 v{U + i}, v{U + i}, v{U + 2 + i}')
    a(f'v_cvt_pk_bf16_f32 v{U}, v{U}, v{U+1}')
    a(f'global_store_dword v{WK.vOut}, v{U}, {sr(P_OUT,2)}')
    ts(a, 13)

def gen_fused(P):
    a = Asm()
    a('s_cmp_ge_u32 s2, 512')
    a('s_cbranch_scc1 L_exit')
    a('s_load_dwordx16 s[16:31], s[0:1], 0')
    a('s_load_dwordx8 s[32:39], s[0:1], 64')
    a('s_load_dwordx2 s[40:41], s[0:1], 96')
    a('v_lshrrev_b32 v1, 6, v0')
    a(f'v_and_b32 v{AR.LANE}, 63, v0')
    a(f'v_readfirstlane_b32 s{S_W}, v1')
    a(f's_and_b32 s{S_X}, s2, 7')
    a(f's_lshr_b32 s{S_R}, s2, 3')
    a(f's_and_b32 s{S_R}, s{S_R}, 31')
    a(f's_mov_b32 s{S_INIT}, 0')
    a(f's_setprio {P["prio_start"]}')
    a('s_waitcnt lgkmcnt(0)')
    if P.get('wsb'):
        a(f's_add_u32 s{P_WS}, s{P_WS}, {P["wsb"] << 20}')
        a(f's_addc_u32 s{P_WS+1}, s{P_WS+1}, 0')
    if TS_ON:
        a('v_mov_b32 v249, 0')
        ts(a, 0)
    a('s_cmp_ge_u32 s2, 256')
    a('s_cbranch_scc1 ROLE_A')
    gen_unit(a, P, 'B')
    sub_reads(a)
    tail_setup(a, P)
    if P['bmode'] == 0 or P['bmodeA'] == 0 or P.get('hybB') or P.get('hybA'): sub_soft(a)
    if P['bmode'] != 0 or P['bmodeA'] != 0: sub_soft2(a)
    gen_unit(a, P, 'A')
    a.label('L_end')
    if TS_ON:
        ts(a, 16)
        a(f's_lshl_b32 s8, s2, 2')
        a(f's_add_u32 s8, s8, s{S_W}')
        a('s_lshl_b32 s8, s8, 8')
        a(f's_add_u32 s8, s8, {WS_TS}')
        if P.get('wsb'):
            a(f's_sub_u32 s{P_WS}, s{P_WS}, {P["wsb"] << 20}')
            a(f's_subb_u32 s{P_WS+1}, s{P_WS+1}, 0')
        a(f'v_lshlrev_b32 v248, 2, v{AR.LANE}')
        a('v_add_u32 v248, s8, v248')
        a(f'global_store_dword v248, v249, {sr(P_WS,2)}')
    a.label('L_exit')
    a('s_endpgm')
    return finish(a)

DEF = dict(polkv='nt', polw='nt', polx='nt', polwo='nt', ring=4, sleep=2, prio_start=3, prio_A0=2, prio_A=2, prio_B=0, prio_W=3,
           kpos=3, kposA=3, bmode=1, bmodeA=1, wo0=4, sym=1)

def build(out, **kw):
    global TS_ON, NOINIT, SLEEP0, ABL, TLBW, OTAG, WOTOUCH
    WOTOUCH = kw.get('wotouch')
    OTAG = kw.get('otag', 0)
    TLBW = kw.get('tlbw')
    ABL = kw.get('abl', '').split(',')
    P = dict(DEF); P.update(kw)
    NOINIT = bool(P.get('noA'))
    SLEEP0 = P.get('sleep0', 1)
    TS_ON = P.get('ts', False)
    kn = NAME + '_kernel'
    t = file_text([(None, 512, 256, 81920)], [(kn, gen_fused(P), 256, 100, None)])
    open(out, 'w').write(t)

if __name__ == '__main__':
    import sys
    build('m0.s')
    build('m0_ts.s', ts=True)
```

```python
from fused14 import build
A = dict(polKA='', polVA='', polw='', polx='', polwo='', bmodeA=0, prio_A=0, ypoll=2, ppos=0, wopos=1, v0e='AB', v0pos=3)
build('x4.s', **A)
build('x4_pA3.s', prio_A0=3, **A)
build('x4_pA0.s', prio_A0=0, **A)
build('x4_kA1.s', kposA=1, **A)
build('x4_kB2.s', kpos=2, **A)
build('x4_l.s', wo1late=1, **A)
build('x4_pB1.s', prio_B=1, **A)
```

```python
import sys, math, struct
from asmgen import *
from hazard import fix_hazards

CSC = (128 ** -0.5) * math.log2(math.e)
def f2u(x): return struct.unpack('<I', struct.pack('<f', x))[0]
def vr(b, n): return f'v[{b}:{b+n-1}]'
def sr(b, n): return f's[{b}:{b+n-1}]'

FL_O = 0
FL_P = 8192
FL_Q = 12288
FL_O2 = 65536
FL_Y = 65536
FL_PZ = 262144
OPOIS = 0
FAST0 = 0
PZR = 152
WS_Q = 1 << 20
WS_O = 4 << 20
WS_X = 8 << 20
WS_Y = 24 << 20
WS_TS = 32 << 20

S_W = 3; S_X = 4; S_R = 5; S_B = 6; S_H = 7
S_T = 8
P_AX, P_AK, P_AV, P_AWQ, P_AWO, P_BX, P_BK, P_BV = 16, 18, 20, 22, 24, 26, 28, 30
P_BWQ, P_BWO, P_OUT, P_DBG = 32, 34, 36, 38
P_WS = 40
S_WKL = 42; S_WKB = 43
SRD_X = 44; SRD_WQ = 48; SRD_K = 52; SRD_V = 56
S_C = 60; S_CNT = 61; S_KL = 62; S_VL = 63
S_ROT = 64; S_WB = 65; S_SO = 66; S_STEP = 67
S_P = 68
S_A = 70
S_U = 78
S_TB = 84; S_TN = 85
S_G = 86
S_WH = 87
S_FO = 92
S_SPIN = 90; S_INIT = 91; S_PROB = 93
S_NONCE = 91; NONCE_C = 0x9E3779B9; WS_E = 0
OTAG = 0
OU = 16384
S_FA = 84
YT = 131072
LK1 = 96
OOB = 0x7f000000

class AR:
    Q = 0; O = 32; K = 96; V = 96; WO = 128; S = 192; P = 208
    T = 216
    M = 232; L = 233
    AK = 234; AV = 242
    WD = 246; WR0 = 247; WR1 = 248
    DK = 250; DV = 254
    LANE = 255
S_WO = 88
S_WL = 89
STG = 65536
QR, QX, QAT, QACC, QT = 0, 128, 160, 176, 240
WF = 0; OF = 128; ACC = 224; WT = 232

SPIN_LIMIT = 400000
TS_ON = False
NOINIT = False
SLEEP0 = 1
ABL = []

def finish(a):
    lines, n = fix_hazards(a.lines)
    return '\n'.join(lines) + '\n'
def srd(a, d, size):
    a(f's_and_b32 s{d+1}, s{d+1}, 0xffff')
    a(f's_mov_b32 s{d+2}, {size}')
    a(f's_mov_b32 s{d+3}, 0x20000')
def poll(a, vaddr, sbase, vtmp, sleep=None):
    if sleep is None: sleep = SLEEP0
    L = a.newlabel('L_poll'); D = a.newlabel('L_polld')
    a(f's_mov_b32 s{S_SPIN}, {SPIN_LIMIT}')
    a.label(L)
    a(f'global_load_dword v{vtmp}, v{vaddr}, {sr(sbase,2)} sc1')
    a('s_waitcnt vmcnt(0)')
    a(f'v_cmp_eq_u32 vcc, 1, v{vtmp}')
    a('s_cmp_eq_u64 vcc, -1')
    a(f's_cbranch_scc1 {D}')
    if sleep: a(f's_sleep {sleep}')
    a(f's_sub_u32 s{S_SPIN}, s{S_SPIN}, 1')
    a(f's_cmp_lg_u32 s{S_SPIN}, 0')
    a(f's_cbranch_scc1 {L}')
    a.label(D)
def store_flag(a, sbase, vz, vone, n=1):
    a('s_mov_b64 exec, 1')
    op = {1: 'dword', 2: 'dwordx2', 4: 'dwordx4'}[n]
    src = f'v{vone}' if n == 1 else vr(vone, n)
    a(f'global_store_{op} v{vz}, {src}, {sr(sbase,2)} sc1')
    a('s_mov_b64 exec, -1')
def call(a, name, lk=LK1): a(f's_call_b64 {sr(lk,2)}, {name}')
def ret(a, lk=LK1): a(f's_setpc_b64 {sr(lk,2)}')
def ts(a, slot, sreg=None):
    if not TS_ON: return
    a('s_memrealtime s[94:95]')
    a('s_waitcnt lgkmcnt(0)')
    if sreg is None:
        a(f'v_writelane_b32 v249, s94, {slot}')
    else:
        a(f's_add_u32 m0, s{sreg}, {slot}')
        a('s_nop 4')
        a(f'v_writelane_b32 v249, s94, m0')
def ts_it(a, slot, it):
    if not TS_ON: return
    a('s_memrealtime s[94:95]')
    a(f's_cmp_eq_u32 s{S_CNT}, {it}')
    a(f's_cselect_b32 m0, {slot}, 63')
    a('s_waitcnt lgkmcnt(0)')
    a('s_nop 4')
    a(f'v_writelane_b32 v249, s94, m0')
def wait_init(a, vz, vt):
    a(f'v_mov_b32 v{vz}, 0')
    poll(a, vz, P_DBG, vt)

def qb_loads(a, P, pos, mid=None, afterx=None):
    pol = P['polw']
    vL = AR.LANE; X = QX; R = QR; vt = QT; st = S_T; sW = S_W
    t0, t1, t2, t3 = vt, vt+1, vt+2, vt+3
    a(f'v_and_b32 v{t0}, 3, v{vL}')
    a(f'v_add_u32 v{t0}, s{sW}, v{t0}')
    a(f'v_and_b32 v{t0}, 3, v{t0}')
    a(f'v_and_b32 v{t1}, 12, v{vL}')
    a(f'v_or_b32 v{t0}, v{t0}, v{t1}')
    a(f'v_lshlrev_b32 v{t0}, 4, v{t0}')
    a(f'v_lshrrev_b32 v{t1}, 4, v{vL}')
    if P.get('xfull'):
        a(f'v_lshlrev_b32 v{t2}, 17, v{t1}')
        a(f'v_add_u32 v{t0}, v{t0}, v{t2}')
        a(f'v_lshrrev_b32 v{t2}, 3, v{vL}')
        a(f's_and_b32 s{st}, s{S_STEP}, 1')
        a(f'v_xor_b32 v{t2}, s{st}, v{t2}')
        a(f'v_lshlrev_b32 v{t2}, 4, v{t2}')
        a(f'v_and_b32 v{t1}, 7, v{vL}')
        a(f'v_lshl_add_u32 v{t2}, v{t1}, 10, v{t2}')
        a(f'v_add_u32 v{t3}, 16384, v{t2}')
        def poison():
            Z = QACC
            for i in range(4): a(f'v_mov_b32 v{Z+i}, -1')
            a(f's_lshl_b32 s{st}, s{sW}, 11')
            a(f'v_lshlrev_b32 v{Z+4}, 4, v{vL}')
            a(f'v_add_u32 v{Z+4}, s{st}, v{Z+4}')
            a(f'global_store_dwordx4 v{Z+4}, {vr(Z,4)}, {sr(S_A,2)} sc1')
            a(f'global_store_dwordx4 v{Z+4}, {vr(Z,4)}, {sr(S_A,2)} offset:1024 sc1')
        if P.get('itest'):
            ts(a, 56)
            for i in range(P['itest']): a(f's_mov_b32 s{st+4}, {0x12345600 + i}')
            ts(a, 57)
        ts(a, 50)
        if OPOIS == 2 and P.get('pzpos', 1) == 0: poison()
        for p in range(2):
            a(f's_lshr_b32 s{st}, s{S_STEP}, 1')
            a(f's_add_u32 s{st}, s{st}, {p}')
            a(f's_and_b32 s{st}, s{st}, 1')
            a(f's_lshl_b32 s{st+1}, s{sW}, 1')
            a(f's_add_u32 s{st}, s{st}, s{st+1}')
            a(f's_lshl_b32 s{st}, s{st}, 7')
            a(f's_add_u32 s{st+1}, s{st}, 8192')
            for qt in range(2):
                a(f'buffer_load_dwordx4 {vr(X + ((2*p)*2+qt)*4, 4)}, v{t2 if qt == 0 else t3}, {sr(SRD_X,4)}, s{st} offen {P["polx"]}')
                a(f'buffer_load_dwordx4 {vr(X + ((2*p+1)*2+qt)*4, 4)}, v{t2 if qt == 0 else t3}, {sr(SRD_X,4)}, s{st+1} offen {P["polx"]}')
        if OPOIS == 2 and P.get('pzpos', 1) == 1: poison()
        ts(a, 51)
        for s in range(4):
            if s > 0: ts(a, 51 + s)
            a(f's_lshr_b32 s{st}, s{S_STEP}, 1')
            a(f's_add_u32 s{st}, s{st}, {s >> 1}')
            a(f's_and_b32 s{st}, s{st}, 1')
            a(f's_lshl_b32 s{st+1}, s{sW}, 1')
            a(f's_add_u32 s{st}, s{st}, s{st+1}')
            a(f's_lshl_b32 s{st}, s{st}, 3')
            a(f's_add_u32 s{st+1}, s{S_STEP}, {s & 1}')
            a(f's_and_b32 s{st+1}, s{st+1}, 1')
            a(f's_add_u32 s{st}, s{st}, s{st+1}')
            a(f's_lshl_b32 s{st+1}, s{st}, 16')
            for j in range(8):
                if j == 0: so = st + 1
                else:
                    so = st + 2 + (j & 1)
                    a(f's_add_u32 s{so}, s{st+1}, {j * 8192}')
                a(f'buffer_load_dwordx4 {vr(R + s*32 + j*4, 4)}, v{t0}, {sr(SRD_WQ,4)}, s{so} offen {pol}')
            if afterx and s == 0: afterx()
            if mid and s == pos:
                ts(a, 55)
                mid()
        return
    a(f'v_lshlrev_b32 v{t2}, 16, v{t1}')
    a(f'v_add_u32 v{t0}, v{t0}, v{t2}')
    a(f'v_and_b32 v{t2}, 15, v{vL}')
    a(f'v_lshlrev_b32 v{t2}, 10, v{t2}')
    a(f'v_lshlrev_b32 v{t1}, 4, v{t1}')
    a(f'v_add_u32 v{t2}, v{t2}, v{t1}')
    a(f'v_add_u32 v{t3}, 16384, v{t2}')
    xfirst = P.get('xfirst', 1)
    ts(a, 50)
    if xfirst:
        for s in range(4):
            a(f's_add_u32 s{st}, s{S_STEP}, {s}')
            a(f's_and_b32 s{st}, s{st}, 3')
            a(f's_lshl_b32 s{st+1}, s{sW}, 2')
            a(f's_add_u32 s{st}, s{st}, s{st+1}')
            a(f's_lshl_b32 s{st}, s{st}, 6')
            a(f'buffer_load_dwordx4 {vr(X + (s*2+0)*4, 4)}, v{t2}, {sr(SRD_X,4)}, s{st} offen {P["polx"]}')
            a(f'buffer_load_dwordx4 {vr(X + (s*2+1)*4, 4)}, v{t3}, {sr(SRD_X,4)}, s{st} offen {P["polx"]}')
    ts(a, 51)
    for s in range(4):
        if s > 0: ts(a, 51 + s)
        a(f's_add_u32 s{st}, s{S_STEP}, {s}')
        a(f's_and_b32 s{st}, s{st}, 3')
        a(f's_lshl_b32 s{st+1}, s{sW}, 2')
        a(f's_add_u32 s{st}, s{st}, s{st+1}')
        a(f's_lshl_b32 s{st+1}, s{st}, 18')
        a(f's_lshl_b32 s{st}, s{st}, 6')
        for j in range(8):
            if j == 0: so = st + 1
            else:
                so = st + 2 + (j & 1)
                a(f's_add_u32 s{so}, s{st+1}, {j * 8192}')
            a(f'buffer_load_dwordx4 {vr(R + s*32 + j*4, 4)}, v{t0}, {sr(SRD_WQ,4)}, s{so} offen {pol}')
        if not xfirst:
            a(f'buffer_load_dwordx4 {vr(X + (s*2+0)*4, 4)}, v{t2}, {sr(SRD_X,4)}, s{st} offen {P["polx"]}')
            a(f'buffer_load_dwordx4 {vr(X + (s*2+1)*4, 4)}, v{t3}, {sr(SRD_X,4)}, s{st} offen {P["polx"]}')
        if mid and s == pos:
            ts(a, 55)
            mid()

def qp_step(a, s, first):
    R, X, AT, A_ = QR, QX, QAT, QACC
    st = S_U
    for d in range(4):
        buf = AT + (d % 2) * 8
        for t in range(4):
            r0 = R + s*32 + (2*t)*4 + d
            r1 = R + s*32 + (2*t+1)*4 + d
            a(f'v_perm_b32 v{buf + t}, v{r1}, v{r0}, s{st}')
            a(f'v_perm_b32 v{buf + 4 + t}, v{r1}, v{r0}, s{st+1}')
        for eo in range(2):
            e = 2*d + eo
            for qt in range(2):
                acc = A_ + (e*2 + qt) * 4
                c = '0' if first else vr(acc, 4)
                a(f'v_mfma_f32_16x16x32_bf16 {vr(acc,4)}, {vr(buf + 4*eo, 4)}, {vr(X + (s*2+qt)*4, 4)}, {c}')

def qb_compute(a, P, pos, kl, small=False, after=None, afterstep=3):
    a(f's_mov_b32 s{S_U}, 0x05040100')
    a(f's_mov_b32 s{S_U+1}, 0x07060302')
    for s in range(4):
        later = (3 - s) * (8 if P.get('xfirst', 1) else 10) + (kl if s <= pos else 0)
        if after and s > afterstep: later += 8
        a(f's_waitcnt vmcnt({later})')
        if s == 0: ts(a, 19)
        if P.get('xfull') and s in (0, 2):
            for qt in range(2):
                I1 = QX + ((s)*2+qt)*4; I2 = QX + ((s+1)*2+qt)*4; T = QAT + 4*qt
                for i in range(4): a(f'v_mov_b32 v{T+i}, v{I1+i}')
                for i in range(4): a(f'v_mov_b32_dpp v{I1+i}, v{I2+i} row_ror:8 row_mask:0xf bank_mask:0xc')
                for i in range(4): a(f'v_mov_b32_dpp v{I2+i}, v{T+i} row_ror:8 row_mask:0xf bank_mask:0x3')
        qp_step(a, s, s == 0)
        if P.get('fast0') and s == 2:
            for i in range(64): a(f'v_mov_b32 v{AR.O+i}, 0')
        if after and s == afterstep: after()
    ts(a, 20)
    if small:
        sW = S_W; vL = AR.LANE; va = QT + 4; st = S_T + 4; A_ = QACC
        TB = 96 if P.get('fast0') else 0
        RB = [0, 16, 144] if P.get('fast0') else [48, 64, 80]
        for k in range(1, 4):
            TT = TB + 16 * (k - 1)
            for qt in range(2):
                for e in range(8):
                    a(f'v_mov_b32 v{TT + qt*8 + e}, v{A_ + (e*2+qt)*4 + k}')
        a(f'v_lshlrev_b32 v{va+1}, 4, v{vL}')
        a(f's_lshl_b32 s{st}, s{sW}, 12')
        a(f's_add_u32 s{st}, s{st}, {STG}')
        a(f'v_add_u32 v{va+2}, s{st}, v{va+1}')
        T = 48
        for k in range(1, 4):
            TT = TB + 16 * (k - 1)
            a(f's_add_u32 s{st}, s{sW}, {k}')
            a(f's_and_b32 s{st}, s{st}, 3')
            a(f's_lshl_b32 s{st}, s{st}, 12')
            a(f's_add_u32 s{st}, s{st}, {STG}')
            a(f'v_add_u32 v{va}, s{st}, v{va+1}')
            if k > 1: a('s_barrier')
            for j in range(4):
                a(f'ds_write_b128 v{va}, {vr(TT + 4*j, 4)} offset:{j*1024}')
            if after and afterstep == 3 + k: after()
            if k > 1:
                for qt in range(2):
                    for e in range(8):
                        r = A_ + (e*2+qt)*4
                        a(f'v_add_f32 v{r}, v{r}, v{RB[k-2] + qt*8 + e}')
            a('s_waitcnt lgkmcnt(0)')
            a('s_barrier')
            for j in range(4):
                a(f'ds_read_b128 {vr(RB[k-1] + 4*j, 4)}, v{va+2} offset:{j*1024}')
            a('s_waitcnt lgkmcnt(0)')
        for qt in range(2):
            for e in range(8):
                r = A_ + (e*2+qt)*4
                a(f'v_add_f32 v{r}, v{r}, v{RB[2] + qt*8 + e}')
        OUT = 16
        for qt in range(2):
            for p in range(4):
                a(f'v_cvt_pk_bf16_f32 v{OUT + qt*4 + p}, v{A_ + ((2*p)*2+qt)*4}, v{A_ + ((2*p+1)*2+qt)*4}')
        if after and afterstep == 7: after()
        return
    inbox_base = 32768
    sW = S_W; vL = AR.LANE; va = QT + 4; st = S_T + 4; A_ = QACC
    for k in range(1, 4):
        a(f's_add_u32 s{st}, s{sW}, {k}')
        a(f's_and_b32 s{st}, s{st}, 3')
        a(f's_mul_i32 s{st}, s{st}, 12288')
        a(f's_add_u32 s{st}, s{st}, {inbox_base + (k-1)*4096}')
        a(f'v_lshlrev_b32 v{va}, 4, v{vL}')
        a(f'v_add_u32 v{va}, s{st}, v{va}')
        TT = 16 * (k - 1)
        for qt in range(2):
            for e in range(8):
                a(f'v_mov_b32 v{TT + qt*8 + e}, v{A_ + (e*2+qt)*4 + k}')
        for j in range(4):
            a(f'ds_write_b128 v{va}, {vr(TT + 4*j, 4)} offset:{j*1024}')
    a('s_waitcnt lgkmcnt(0)')
    a('s_barrier')
    T = 48
    a(f's_mul_i32 s{st}, s{sW}, 12288')
    a(f's_add_u32 s{st}, s{st}, {inbox_base}')
    a(f'v_lshlrev_b32 v{va}, 4, v{vL}')
    a(f'v_add_u32 v{va}, s{st}, v{va}')
    for k in range(3):
        for j in range(4):
            a(f'ds_read_b128 {vr(T + 16*k + 4*j, 4)}, v{va} offset:{k*4096 + j*1024}')
    for k in range(3):
        a(f's_waitcnt lgkmcnt({8 - 4*k})')
        for qt in range(2):
            for e in range(8):
                r = A_ + (e*2+qt)*4
                a(f'v_add_f32 v{r}, v{r}, v{T + 16*k + qt*8 + e}')
    OUT = 16
    for qt in range(2):
        for p in range(4):
            a(f'v_cvt_pk_bf16_f32 v{OUT + qt*4 + p}, v{A_ + ((2*p)*2+qt)*4}, v{A_ + ((2*p+1)*2+qt)*4}')

def setup_dma_B(a):
    L = AR.LANE; t = QT + 4
    a(f'v_lshrrev_b32 v{t}, 4, v{L}')
    a(f'v_and_b32 v{t+1}, 15, v{L}')
    for p in range(4):
        a(f'v_add_u32 v{t+2}, {4*p}, v{t}')
        a(f'v_xor_b32 v{t+2}, v{t+2}, v{t+1}')
        a(f'v_lshlrev_b32 v{t+2}, 4, v{t+2}')
        a(f'v_lshl_add_u32 v{AR.DK+p}, v{t}, 8, v{t+2}')
    a(f'v_lshlrev_b32 v{t+2}, 2, v{t}')
    a(f'v_xor_b32 v{t+2}, v{t+2}, v{t+1}')
    a(f'v_lshlrev_b32 v{t+2}, 4, v{t+2}')
    a(f'v_lshl_add_u32 v{AR.DV}, v{t}, 8, v{t+2}')

def setup_dma_A(a):
    L = AR.LANE; t = QT + 4; st = S_T
    a(f'v_lshrrev_b32 v{t}, 4, v{L}')
    a(f'v_and_b32 v{t+1}, 15, v{L}')
    a(f's_lshl_b32 s{st}, s{S_W}, 3')
    for p in range(2):
        a(f's_add_u32 s{st+1}, s{st}, {4*p}')
        a(f's_and_b32 s{st+1}, s{st+1}, 15')
        a(f'v_add_u32 v{t+2}, s{st+1}, v{t}')
        a(f'v_xor_b32 v{t+2}, v{t+2}, v{t+1}')
        a(f'v_lshlrev_b32 v{t+2}, 4, v{t+2}')
        a(f'v_lshl_add_u32 v{AR.DK+p}, v{t}, 8, v{t+2}')
    a(f'v_lshlrev_b32 v{t+2}, 2, v{t}')
    a(f'v_xor_b32 v{t+2}, v{t+2}, v{t+1}')
    a(f'v_lshlrev_b32 v{t+2}, 4, v{t+2}')
    a(f'v_lshl_add_u32 v{AR.DV}, v{t}, 8, v{t+2}')

def sub_reads(a):
    s_kslot, s_vslot, s_rot = S_U+1, S_U+2, S_U+3
    L = AR.LANE; t = AR.T; st = S_T
    a.label('SUB_READS')
    a(f'v_and_b32 v{t}, 31, v{L}')
    a(f'v_lshrrev_b32 v{t+1}, 5, v{L}')
    a(f'v_and_b32 v{t+2}, 15, v{L}')
    a(f'v_lshlrev_b32 v{t+3}, 3, v{t+1}')
    a(f'v_xor_b32 v{t+2}, v{t+2}, v{t+3}')
    a(f'v_lshlrev_b32 v{t+2}, 4, v{t+2}')
    a(f'v_lshl_add_u32 v{t+2}, v{t}, 8, v{t+2}')
    for s in range(8):
        a(f'v_xor_b32 v{AR.AK+s}, {16*s}, v{t+2}')
        a(f'v_add_u32 v{AR.AK+s}, s{s_kslot}, v{AR.AK+s}')
    a(f'v_and_b32 v{t}, 15, v{L}')
    a(f'v_lshrrev_b32 v{t+2}, 2, v{t}')
    a(f'v_and_b32 v{t+3}, 3, v{t}')
    a(f'v_lshl_add_u32 v{t+4}, v{t+1}, 2, v{t+2}')
    a(f'v_lshlrev_b32 v{t+4}, 8, v{t+4}')
    a(f'v_bfe_u32 v{t+5}, v{L}, 4, 1')
    a(f'v_lshlrev_b32 v{t+5}, 1, v{t+5}')
    a(f'v_lshrrev_b32 v{t+6}, 1, v{t+3}')
    a(f'v_add_u32 v{t+5}, v{t+5}, v{t+6}')
    a(f'v_lshlrev_b32 v{t+6}, 2, v{t+2}')
    a(f'v_xor_b32 v{t+5}, v{t+5}, v{t+6}')
    a(f'v_lshl_add_u32 v{t+4}, v{t+5}, 4, v{t+4}')
    a(f'v_and_b32 v{t+3}, 1, v{t+3}')
    a(f'v_lshl_add_u32 v{t+4}, v{t+3}, 3, v{t+4}')
    for tau in range(4):
        a(f's_add_u32 s{st}, s{s_rot}, {tau}')
        a(f's_and_b32 s{st}, s{st}, 3')
        a(f's_lshl_b32 s{st}, s{st}, 6')
        a(f'v_xor_b32 v{AR.AV+tau}, s{st}, v{t+4}')
        a(f'v_add_u32 v{AR.AV+tau}, s{s_vslot}, v{AR.AV+tau}')
    if not FAST0:
        for i in range(64):
            a(f'v_mov_b32 v{AR.O+i}, 0')
    a(f'v_mov_b32 v{AR.M}, 0xff800000')
    a(f'v_mov_b32 v{AR.L}, 0')
    a(f's_mov_b32 s{S_C}, {f2u(CSC)}')
    ret(a)

def read_k(a):
    for s in range(8):
        a(f'ds_read_b128 {vr(AR.K + 4*s, 4)}, v{AR.AK+s}')
def read_v(a):
    for ks in range(2):
        for tau in range(4):
            for u in range(2):
                r = AR.V + (tau*2 + ks)*4 + u*2
                a(f'ds_read_b64_tr_b16 {vr(r, 2)}, v{AR.AV+tau} offset:{4096*ks + 2048*u}')
def mfma_s(a):
    for s in range(8):
        c = '0' if s == 0 else vr(AR.S, 16)
        a(f'v_mfma_f32_32x32x16_bf16 {vr(AR.S,16)}, {vr(AR.K+4*s,4)}, {vr(AR.Q+4*s,4)}, {c}')
def softmax(a):
    sC = S_C; st = S_P
    S = AR.S; t = AR.T; M = AR.M; Lr = AR.L
    a(f'v_max3_f32 v{t}, v{S}, v{S+1}, v{S+2}')
    a(f'v_max3_f32 v{t+1}, v{S+3}, v{S+4}, v{S+5}')
    a(f'v_max3_f32 v{t}, v{t}, v{S+6}, v{S+7}')
    a(f'v_max3_f32 v{t+1}, v{t+1}, v{S+8}, v{S+9}')
    a(f'v_max3_f32 v{t}, v{t}, v{S+10}, v{S+11}')
    a(f'v_max3_f32 v{t+1}, v{t+1}, v{S+12}, v{S+13}')
    a(f'v_max3_f32 v{t}, v{t}, v{S+14}, v{S+15}')
    a(f'v_max_f32 v{t}, v{t}, v{t+1}')
    a(f'v_mov_b32 v{t+1}, v{t}')
    a(f'v_permlane32_swap_b32 v{t}, v{t+1}')
    a(f'v_max3_f32 v{t}, v{t}, v{t+1}, v{M}')
    a(f'v_cmp_gt_f32 {sr(st,2)}, v{t}, v{M}')
    skip = a.newlabel('L_skip')
    a(f's_cmp_eq_u64 {sr(st,2)}, 0')
    a(f's_cbranch_scc1 {skip}')
    a(f'v_sub_f32 v{t+1}, v{M}, v{t}')
    a(f'v_mul_f32 v{t+1}, s{sC}, v{t+1}')
    a(f'v_exp_f32 v{t+1}, v{t+1}')
    a(f'v_mov_b32 v{M}, v{t}')
    a(f'v_mul_f32 v{Lr}, v{Lr}, v{t+1}')
    for i in range(64):
        a(f'v_mul_f32 v{AR.O+i}, v{AR.O+i}, v{t+1}')
    a.label(skip)
    a(f'v_mul_f32 v{t+1}, s{sC}, v{M}')
    for i in range(16):
        a(f'v_fma_f32 v{S+i}, v{S+i}, s{sC}, -v{t+1}')
    for i in range(16):
        a(f'v_exp_f32 v{S+i}, v{S+i}')
    for i in range(8):
        a(f'v_cvt_pk_bf16_f32 v{AR.P+i}, v{S+2*i}, v{S+2*i+1}')
    a(f'v_add_f32 v{t}, v{S}, v{S+1}')
    a(f'v_add_f32 v{t+1}, v{S+2}, v{S+3}')
    for i in range(2, 8):
        a(f'v_add_f32 v{t + (i&1)}, v{t + (i&1)}, v{S+2*i}')
        a(f'v_add_f32 v{t + (i&1)}, v{t + (i&1)}, v{S+2*i+1}')
    a(f'v_add_f32 v{t}, v{t}, v{t+1}')
    a(f'v_add_f32 v{Lr}, v{Lr}, v{t}')
def sub_soft(a):
    a.label('SUB_SOFT')
    read_v(a)
    softmax(a)
    a('s_waitcnt lgkmcnt(0)')
    ret(a)
def sub_soft2(a):
    a.label('SUB_SOFT2')
    softmax(a)
    ret(a)
def mfma_pv(a):
    for ks in range(2):
        for tau in range(4):
            o = vr(AR.O + 16*tau, 16)
            a(f'v_mfma_f32_32x32x16_bf16 {o}, {vr(AR.V + (tau*2+ks)*4, 4)}, {vr(AR.P + 4*ks, 4)}, {o}')
def dma_tile8k(a, srdn, s_soff, s_lds, st, pol, vpat):
    if isinstance(pol, tuple):
        lo, hi, thr = pol
        L1 = a.newlabel('L_ph'); L2 = a.newlabel('L_pd')
        a(f's_cmp_ge_u32 s{S_B}, {thr}')
        a(f's_cbranch_scc1 {L1}')
        dma_tile8k(a, srdn, s_soff, s_lds, st, lo, vpat)
        a(f's_branch {L2}')
        a.label(L1)
        dma_tile8k(a, srdn, s_soff, s_lds, st, hi, vpat)
        a.label(L2)
        return
    for half in range(2):
        if half == 0:
            a(f's_mov_b32 m0, s{s_lds}')
            so = s_soff
        else:
            a(f's_add_u32 m0, s{s_lds}, 4096')
            a(f's_add_u32 s{st}, s{s_soff}, 4096')
            so = st
        for p in range(4):
            a(f'buffer_load_dwordx4 v{vpat(p)}, {sr(srdn,4)}, s{so} offen offset:{p*1024} {pol} lds')

def wo_dma(a, P, part):
    lst = [(i, i * 1024) for i in range(7)] if part == 0 else [(7, 7168)] + [(8 + i, 32768 + i * 1024) for i in range(8)]
    for n, (g, lo) in enumerate(lst):
        a(f's_add_u32 m0, s{S_WL}, {lo}')
        a(f's_add_u32 s{S_U + (n&1)}, s{S_WO}, {g * 8 * 1024}')
        a(f'buffer_load_dwordx4 v{AR.WD}, {sr(SRD_WQ,4)}, s{S_U + (n&1)} offen {P["polwo"]} lds')

WREG = 152
def wo_regs(a, P):
    lst = [7] + [8 + i for i in range(8)]
    for n, g in enumerate(lst):
        a(f's_add_u32 s{S_U + (n&1)}, s{S_WO}, {g * 8 * 1024}')
        a(f'buffer_load_dwordx4 {vr(WREG + 4*n, 4)}, v{AR.WD}, {sr(SRD_WQ,4)}, s{S_U + (n&1)} offen {P["polwo"]}')
def wo_regs_to_lds(a, vbase):
    for n in range(9):
        off = 7168 if n == 0 else 32768 + (n - 1) * 1024
        a(f'ds_write_b128 v{vbase}, {vr(WREG + 4*n, 4)} offset:{off}')
VDBG = 128
def init_issue(a):
    a(f'global_load_dword v{VDBG}, v{VDBG+4}, {sr(P_DBG,2)} sc1')
def init_check(a):
    L = a.newlabel('L_ichk'); D = a.newlabel('L_iok')
    a(f's_mov_b32 s{S_SPIN}, {SPIN_LIMIT}')
    a.label(L)
    a(f'v_readfirstlane_b32 s{S_NONCE}, v{VDBG}')
    a(f's_cmp_lg_u32 s{S_NONCE}, 0')
    a(f's_cbranch_scc1 {D}')
    a('s_sleep 1')
    init_issue(a)
    a('s_waitcnt vmcnt(0)')
    a(f's_sub_u32 s{S_SPIN}, s{S_SPIN}, 1')
    a(f's_cmp_lg_u32 s{S_SPIN}, 0')
    a(f's_cbranch_scc1 {L}')
    a.label(D)

CMAP = [0, 1, 2, 8, 4, 5, 6, 10]
class EP:
    MLW = 136; TW = 137; SW = 138; MLR = 139; TR = 142; OST = 146; FLA = 147; FLV = 148
SRD_Y = 16
S_HI = 20
def pk(op, a, d, x, y, z=None, bc=None):
    mods = ''
    if z is None:
        if bc: mods = ' op_sel_hi:[1,0]'
        a(f'v_pk_{op}_f32 {vr(d,2)}, {vr(x,2)}, {vr(y,2)}{mods}')
    else:
        if bc: mods = ' op_sel_hi:[1,0,1]'
        a(f'v_pk_{op}_f32 {vr(d,2)}, {vr(x,2)}, {vr(y,2)}, {vr(z,2)}{mods}')

def epi_c(a, role, P):
    sOut = S_A
    sC = S_C
    t = AR.T; M = AR.M; Lr = AR.L
    MB = [0, 16, 96]
    PPOS = P.get('ppos', 1)
    if not P.get('early', 1): PPOS = 2
    if PPOS == 0:
        if OPOIS: a(f'global_load_dword v{VPOLL+2}, v{WK.vF}, {sr(P_WS,2)} sc1')
        if P.get('pwait'):
            a(f'v_xor_b32 v{VPOLL+3}, 0x8000, v{EP.FLA}')
            a(f'global_load_dword v{VPOLL+2}, v{VPOLL+3}, {sr(P_WS,2)} sc1')
        for beta in range(2): fpoll(a, beta)
    for k in range(1, 4):
        for j in range(4):
            if k < 3: a(f'ds_write_b128 v{EP.TW}, {vr(AR.O + 16*k + 4*j, 4)} offset:{(k-1)*4096 + j*1024}')
            else: a(f'ds_write_b128 v{EP.SW}, {vr(AR.O + 16*k + 4*j, 4)} offset:{j*1024}')
    a(f'v_mov_b32 v{t}, v{Lr}')
    a(f'v_permlane32_swap_b32 v{Lr}, v{t}')
    a(f'v_add_f32 v{Lr}, v{Lr}, v{t}')
    a(f'v_cndmask_b32 v{t}, v{M}, v{Lr}, {sr(S_HI,2)}')
    a(f'ds_write_b32 v{EP.MLW}, v{t}')
    a('s_waitcnt lgkmcnt(0)')
    ts(a, 22)
    a('s_barrier')
    ts(a, 23)
    for k in range(4):
        a(f'ds_read2_b32 {vr(t+2+2*k, 2)}, v{EP.MLR+k} offset0:0 offset1:32')
    for k in range(1, 4):
        for j in range(4):
            a(f'ds_read_b128 {vr(MB[k-1] + 4*j, 4)}, v{EP.TR+k} offset:{j*1024}')
    a('s_waitcnt lgkmcnt(12)')
    m = [t+2+2*w for w in range(4)]
    l = [t+3+2*w for w in range(4)]
    a(f'v_max3_f32 v{t}, v{m[0]}, v{m[1]}, v{m[2]}')
    a(f'v_max_f32 v{t}, v{t}, v{m[3]}')
    for w in range(4):
        a(f'v_sub_f32 v{m[w]}, v{m[w]}, v{t}')
    for w in range(4):
        a(f'v_mul_f32 v{m[w]}, s{sC}, v{m[w]}')
    for w in range(4):
        a(f'v_exp_f32 v{m[w]}, v{m[w]}')
    a(f'v_mul_f32 v{t}, v{m[0]}, v{l[0]}')
    for w in range(1, 4):
        a(f'v_fma_f32 v{t}, v{m[w]}, v{l[w]}, v{t}')
    a(f'v_rcp_f32 v{t}, v{t}')
    for w in range(4):
        a(f'v_mul_f32 v{m[w]}, v{m[w]}, v{t}')
    PKE = P.get('pk', 1)
    if PKE:
        for i in range(0, 16, 2): pk('mul', a, AR.O+i, AR.O+i, m[0], bc=1)
    else:
        for i in range(16): a(f'v_mul_f32 v{AR.O+i}, v{AR.O+i}, v{m[0]}')
    for k in range(1, 4):
        a(f's_waitcnt lgkmcnt({12 - 4*k})')
        if PKE:
            for i in range(0, 16, 2): pk('fma', a, AR.O+i, MB[k-1]+i, m[k], AR.O+i, bc=1)
        else:
            for i in range(16): a(f'v_fma_f32 v{AR.O+i}, v{MB[k-1]+i}, v{m[k]}, v{AR.O+i}')
    for i in range(8):
        a(f'v_cvt_pk_bf16_f32 v{AR.P+i}, v{AR.O+2*i}, v{AR.O+2*i+1}')
    if OPOIS:
        assert PPOS == 0
        for i in range(8): a(f'v_min_u32 v{AR.P+i}, -2, v{AR.P+i}')
    ts(a, 24)
    if PPOS == 0 and not (OPOIS and P.get('pzlate', 1)):
        a('s_waitcnt vmcnt(0)')
        ts(a, 25)
    a(f'global_store_dwordx4 v{EP.OST}, {vr(AR.P,4)}, {sr(sOut,2)} sc1')
    a(f'global_store_dwordx4 v{EP.OST}, {vr(AR.P+4,4)}, {sr(sOut,2)} offset:1024 sc1')
    if PPOS == 1:
        for beta in range(2): fpoll(a, beta)
    if role == 'B': a('s_branch L_EPI2')

def epi2(a, P):
    a.label('L_EPI2')
    WOPOS = P.get('wopos', 0)
    nwo = 0 if 'nowo2' in ABL else 9
    def early_check():
        for beta in range(2):
            a(f's_mov_b32 s{S_ST+beta}, 0')
            if P.get('early', 1):
                tagcheck(a, [VPOLL + beta], 0)
                a(f's_cselect_b32 s{S_ST+beta}, 4, 0')
    if OPOIS:
        assert WOPOS == 1 and P.get('ppos', 1) == 0
        ts(a, 4)
        a('s_barrier')
        wo_dma(a, P, 1)
        if P.get('pzlate', 1): a('s_waitcnt vmcnt(11)')
        Lz = a.newlabel('L_pz'); Lzd = a.newlabel('L_pzd')
        a(f's_mov_b32 s{S_SPIN}, {SPIN_LIMIT}')
        a.label(Lz)
        tagcheck(a, [VPOLL + 2], 0)
        a(f's_cbranch_scc1 {Lzd}')
        a('s_sleep 1')
        a(f'global_load_dword v{VPOLL+2}, v{WK.vF}, {sr(P_WS,2)} sc1')
        a('s_waitcnt vmcnt(0)')
        a(f's_sub_u32 s{S_SPIN}, s{S_SPIN}, 1')
        a(f's_cmp_lg_u32 s{S_SPIN}, 0')
        a(f's_cbranch_scc1 {Lz}')
        a.label(Lzd)
        for beta in range(2):
            pcheck(a, beta, 0)
            a(f's_cselect_b32 s{S_ST+beta}, 4, 0')
        ts(a, 5)
        a(f's_mov_b32 s{S_NP}, 0')
        for beta in range(2):
            Ls = a.newlabel('L_ne')
            a(f's_cmp_eq_u32 s{S_ST+beta}, 4')
            a(f's_cbranch_scc0 {Ls}')
            a(f's_mov_b32 s{S_ST+beta}, 1')
            a(f's_add_u32 s{S_NP}, s{S_NP}, 2')
            for i in range(8): oload8(a, beta, i)
            a.label(Ls)
        t = WK.t; vL16 = WK.vL16
        a(f'v_add_u32 v{t}, s{S_WKL}, v{vL16}')
        for k in range(1, 4):
            a(f's_xor_b32 s{S_T}, s{S_W}, {k}')
            a(f's_lshl_b32 s{S_T}, s{S_T}, 13')
            a(f'v_add_u32 v{t+k}, s{S_T}, v{vL16}')
        cases = [(0, 0), (2, 8), (4, 16)]
        Ld = a.newlabel('L_wod')
        for n, (code, cnt) in enumerate(cases):
            if n < len(cases) - 1:
                Ln = a.newlabel('L_woc')
                a(f's_cmp_eq_u32 s{S_NP}, {code}')
                a(f's_cbranch_scc0 {Ln}')
                a(f's_waitcnt vmcnt({cnt})')
                a(f's_branch {Ld}')
                a.label(Ln)
            else:
                a(f's_waitcnt vmcnt({cnt})')
        a.label(Ld)
        return
    if P.get('ppos', 1) == 0: early_check()
    ts(a, 26)
    if WOPOS == 0:
        a('s_barrier')
        ts(a, 27)
        if nwo: wo_dma(a, P, 1)
        ts(a, 28)
        a(f's_waitcnt vmcnt({nwo})')
    else:
        if WOPOS == 2:
            t = WK.t; vL16 = WK.vL16
            a(f'v_add_u32 v{t}, s{S_WKL}, v{vL16}')
            for k in range(1, 4):
                a(f's_xor_b32 s{S_T}, s{S_W}, {k}')
                a(f's_lshl_b32 s{S_T}, s{S_T}, 13')
                a(f'v_add_u32 v{t+k}, s{S_T}, v{vL16}')
        a('s_waitcnt vmcnt(0)')
    ts(a, 4)
    a('s_barrier')
    a(f's_cmp_lg_u32 s{S_W}, 0')
    a('s_cbranch_scc1 L_noflag')
    store_flag(a, P_WS, EP.FLA, EP.FLV)
    ts(a, 5)
    a.label('L_noflag')
    if P.get('pwait'):
        Lp = a.newlabel('L_pw'); Lpd = a.newlabel('L_pwd')
        a(f's_mov_b32 s{S_SPIN}, {P["pwait"]}')
        a.label(Lp)
        tagcheck(a, [VPOLL+2], 0)
        a(f's_cbranch_scc1 {Lpd}')
        a('s_sleep 4')
        a(f'global_load_dword v{VPOLL+2}, v{VPOLL+3}, {sr(P_WS,2)} sc1')
        a('s_waitcnt vmcnt(0)')
        a(f's_sub_u32 s{S_SPIN}, s{S_SPIN}, 1')
        a(f's_cmp_lg_u32 s{S_SPIN}, 0')
        a(f's_cbranch_scc1 {Lp}')
        a.label(Lpd)
    if WOPOS == 2:
        if P.get('ppos', 1) == 1: early_check()
        for beta in range(2):
            Ls = a.newlabel('L_ne')
            a(f's_cmp_eq_u32 s{S_ST+beta}, 4')
            a(f's_cbranch_scc0 {Ls}')
            a(f's_mov_b32 s{S_ST+beta}, 1')
            for i in range(8): oload8(a, beta, i)
            a.label(Ls)
        wo_regs_to_lds(a, WK.t)
        return
    if P.get('ppos', 1) == 3:
        assert WOPOS == 1
        for beta in range(2): fpoll(a, beta)
        if nwo: wo_dma(a, P, 1)
        t = WK.t; vL16 = WK.vL16
        a(f'v_add_u32 v{t}, s{S_WKL}, v{vL16}')
        for k in range(1, 4):
            a(f's_xor_b32 s{S_T}, s{S_W}, {k}')
            a(f's_lshl_b32 s{S_T}, s{S_T}, 13')
            a(f'v_add_u32 v{t+k}, s{S_T}, v{vL16}')
        a(f's_waitcnt vmcnt({nwo})')
        early_check()
        for beta in range(2):
            Ls = a.newlabel('L_ne')
            a(f's_cmp_eq_u32 s{S_ST+beta}, 4')
            a(f's_cbranch_scc0 {Ls}')
            a(f's_mov_b32 s{S_ST+beta}, 1')
            for i in range(8): oload8(a, beta, i)
            a.label(Ls)
        Ld = a.newlabel('L_wod'); L1 = a.newlabel('L_wo1'); L2 = a.newlabel('L_wo2')
        a(f's_add_u32 s{S_T}, s{S_ST}, s{S_ST+1}')
        a(f's_cmp_eq_u32 s{S_T}, 2')
        a(f's_cbranch_scc1 {L2}')
        a(f's_cmp_eq_u32 s{S_T}, 1')
        a(f's_cbranch_scc1 {L1}')
        a('s_waitcnt vmcnt(0)')
        a(f's_branch {Ld}')
        a.label(L1)
        a('s_waitcnt vmcnt(8)')
        a(f's_branch {Ld}')
        a.label(L2)
        a('s_waitcnt vmcnt(16)')
        a.label(Ld)
        return
    if P.get('ppos', 1) == 1: early_check()
    elif P.get('ppos', 1) == 0 and not P.get('early', 1): early_check()
    if WOPOS == 1 and P.get('wo1late'): wo_dma(a, P, 0)
    if WOPOS == 1 and nwo: wo_dma(a, P, 1)
    a(f's_mov_b32 s{S_NP}, 0')
    for beta in range(2):
        Ls = a.newlabel('L_ne')
        a(f's_cmp_eq_u32 s{S_ST+beta}, 4')
        a(f's_cbranch_scc0 {Ls}')
        a(f's_mov_b32 s{S_ST+beta}, 1')
        a(f's_add_u32 s{S_NP}, s{S_NP}, 2')
        for i in range(8): oload8(a, beta, i)
        a.label(Ls)
    t = WK.t; vL16 = WK.vL16
    a(f'v_add_u32 v{t}, s{S_WKL}, v{vL16}')
    for k in range(1, 4):
        a(f's_xor_b32 s{S_T}, s{S_W}, {k}')
        a(f's_lshl_b32 s{S_T}, s{S_T}, 13')
        a(f'v_add_u32 v{t+k}, s{S_T}, v{vL16}')
    if WOPOS == 0:
        a(f's_cmp_eq_u32 s{S_W}, 0')
        a(f's_addc_u32 s{S_NP}, s{S_NP}, 0')
        cases = [(0, 0), (1, 1), (2, 8), (3, 9), (4, 16), (5, 17)]
    else:
        cases = [(0, 0), (2, 8), (4, 16)]
    Ld = a.newlabel('L_wod')
    for n, (code, cnt) in enumerate(cases):
        if n < len(cases) - 1:
            Ln = a.newlabel('L_woc')
            a(f's_cmp_eq_u32 s{S_NP}, {code}')
            a(f's_cbranch_scc0 {Ln}')
            a(f's_waitcnt vmcnt({cnt})')
            a(f's_branch {Ld}')
            a.label(Ln)
        else:
            a(f's_waitcnt vmcnt({cnt})')
    a.label(Ld)

TLBW = None
WOTOUCH = None
def icheck_site(a):
    L = a.newlabel('L_nic')
    a(f's_cmp_eq_u32 s{S_CNT}, 4')
    a(f's_cbranch_scc0 {L}')
    init_issue(a)
    a.label(L)
def late_site(a):
    L = a.newlabel('L_nts'); L2 = a.newlabel('L_nnc')
    a(f's_cmp_eq_u32 s{S_CNT}, 1')
    a(f's_cbranch_scc0 {L}')
    call(a, 'TAIL_SETUP')
    a.label(L)
    a(f's_cmp_eq_u32 s{S_CNT}, 12')
    a(f's_cbranch_scc0 {L2}')
    init_check(a)
    a(f'v_mov_b32 v{EP.FLV}, s{S_NONCE}')
    if OPOIS == 1: store_flag(a, P_WS, EP.FLA, EP.FLV)
    if OPOIS == 2:
        a(f's_cmp_lg_u32 s{S_W}, 0')
        a(f's_cbranch_scc1 {L2}')
        store_flag(a, P_WS, EP.FLA, EP.FLV)
    a.label(L2)
    if OPOIS == 1:
        L4 = a.newlabel('L_npz')
        a(f's_cmp_eq_u32 s{S_CNT}, {PZC}')
        a(f's_cbranch_scc0 {L4}')
        a(f'global_store_dwordx4 v{EP.OST}, {vr(PZR,4)}, {sr(S_A,2)} sc1')
        a(f'global_store_dwordx4 v{EP.OST}, {vr(PZR,4)}, {sr(S_A,2)} offset:1024 sc1')
        a.label(L4)
    if WOTOUCH is not None:
        L3 = a.newlabel('L_nwt')
        a(f's_cmp_eq_u32 s{S_CNT}, {WOTOUCH}')
        a(f's_cbranch_scc0 {L3}')
        a(f'v_lshlrev_b32 v150, 10, v{AR.LANE}')
        a(f's_add_u32 s{S_U}, s{S_WO}, {64 * 1024}')
        a(f'buffer_load_dword v151, v150, {sr(SRD_WQ,4)}, s{S_U} offen')
        a(f's_add_u32 s{S_U}, s{S_WO}, {56 * 1024}')
        a(f'v_and_b32 v150, 0x1c00, v150')
        a(f'buffer_load_dword v151, v150, {sr(SRD_WQ,4)}, s{S_U} offen')
        a.label(L3)

def gen_unit(a, P, role):
    isB = role == 'B'
    POLK = P.get('polK' + role, P['polkv'])
    POLV = P.get('polV' + role, P['polkv'])
    PX, PWQ, PK, PV = (P_BX, P_BWQ, P_BK, P_BV) if isB else (P_AX, P_AWQ, P_AK, P_AV)
    a.label('ROLE_' + role)
    if not isB:
        if P.get('noA'): a('s_branch L_end')
        a(f's_setprio {P["prio_A0"]}')
        a(f's_cmp_eq_u32 s2, {128 if P.get("bbaa") else 256}')
        a('s_cbranch_scc0 A_noep')
        a(f's_cmp_eq_u32 s{S_W}, 0')
        a('s_cbranch_scc0 A_noep')
        a(f'v_mov_b32 v{AR.WR1}, {WS_E}')
        a(f'global_load_dword v{AR.WR0}, v{AR.WR1}, {sr(P_WS,2)} sc1')
        a.label('A_noep')
    if P.get('map8'):
        a(f's_and_b32 s{S_T}, s{S_R}, 7')
        a(f's_and_b32 s{S_H}, s{S_X}, 3')
        a(f's_lshl_b32 s{S_H}, s{S_H}, 3')
        a(f's_add_u32 s{S_H}, s{S_H}, s{S_T}')
        a(f's_lshr_b32 s{S_B}, s{S_X}, 2')
        a(f's_lshl_b32 s{S_B}, s{S_B}, 2')
        a(f's_lshr_b32 s{S_T}, s{S_R}, 3')
        a(f's_add_u32 s{S_B}, s{S_B}, s{S_T}')
    else:
        a(f's_and_b32 s{S_T}, s{S_R}, 3')
        a(f's_lshr_b32 s{S_B}, s{S_R}, 2')
        a(f's_lshl_b32 s{S_H}, s{S_X}, 2')
        a(f's_add_u32 s{S_H}, s{S_H}, s{S_T}')
    a(f's_lshl_b32 s{S_T}, s{S_B}, 15')
    a(f's_add_u32 s{SRD_X}, s{PX}, s{S_T}')
    a(f's_addc_u32 s{SRD_X+1}, s{PX+1}, 0')
    srd(a, SRD_X, 32768)
    a(f's_lshl_b32 s{S_T}, s{S_H}, 8')
    a(f's_add_u32 s{SRD_WQ}, s{PWQ}, s{S_T}')
    a(f's_addc_u32 s{SRD_WQ+1}, s{PWQ+1}, 0')
    a(f's_sub_u32 s{S_T+1}, 4194304, s{S_T}')
    srd(a, SRD_WQ, f's{S_T+1}')
    a(f's_and_b32 s{S_STEP}, s{S_B}, 3')
    def kvsetup():
        a(f's_lshl_b32 s{S_T}, s{S_B}, 5')
        a(f's_add_u32 s{S_T}, s{S_T}, s{S_H}')
        if isB:
            a(f's_mov_b32 s{S_G}, s{S_T}')
        else:
            a(f's_lshl_b32 s{S_G}, s{S_B}, 3')
            a(f's_lshr_b32 s{S_T+1}, s{S_H}, 2')
            a(f's_add_u32 s{S_G}, s{S_G}, s{S_T+1}')
        a(f's_lshl_b32 s{S_T+1}, s{S_G}, 19')
        a(f's_lshr_b32 s{S_T+2}, s{S_G}, 13')
        a(f's_add_u32 s{SRD_K}, s{PK}, s{S_T+1}')
        a(f's_addc_u32 s{SRD_K+1}, s{PK+1}, s{S_T+2}')
        srd(a, SRD_K, 524288)
        a(f's_add_u32 s{SRD_V}, s{PV}, s{S_T+1}')
        a(f's_addc_u32 s{SRD_V+1}, s{PV+1}, s{S_T+2}')
        srd(a, SRD_V, 524288)
        if isB: a(f's_add_u32 s{S_T}, s{S_T}, 256')
        a(f's_lshl_b32 s{S_T}, s{S_T}, {14 if OTAG else 13}')
        a(f's_add_u32 s{S_T}, s{S_T}, {WS_O}')
        a(f's_add_u32 s{S_A}, s{P_WS}, s{S_T}')
        a(f's_addc_u32 s{S_A+1}, s{P_WS+1}, 0')
        setup_dma_B(a)
        a(f's_lshl_b32 s{S_KL}, s{S_W}, 13')
        a(f's_add_u32 s{S_VL}, s{S_KL}, 32768')
        ILV = P.get('ilv', '').find(role) >= 0
        a(f's_mul_i32 s{S_ROT}, s{2 if isB else S_G}, 5')
        if not ILV or P.get('ilvw'):
            a(f's_mul_i32 s{S_T}, s{S_W}, {P.get("ilvw", 3)}')
            a(f's_add_u32 s{S_ROT}, s{S_ROT}, s{S_T}')
        LAG = P.get('alag', 0) if not isB else 0
        if LAG:
            a(f's_and_b32 s{S_T}, s{S_H}, 3')
            a(f's_cmp_eq_u32 s{S_T}, s{S_W}')
            a(f's_cselect_b32 s{S_T}, 0, {16 - LAG}')
            a(f's_add_u32 s{S_ROT}, s{S_ROT}, s{S_T}')
        a(f's_and_b32 s{S_ROT}, s{S_ROT}, 15')
        a(f's_lshl_b32 s{S_ROT}, s{S_ROT}, {15 if ILV else 13}')
        a(f's_lshl_b32 s{S_WB}, s{S_W}, {13 if ILV else 17}')
        a(f's_add_u32 s{S_SO}, s{S_WB}, s{S_ROT}')
    KVLATE = P.get('fast0') and P.get('f1', 1) and P.get('xfull')
    if not KVLATE: kvsetup()
    kp = lambda p: AR.DK + p
    vp = lambda p: AR.DV
    TL = P.get('t' + role, '')
    TL = [x for x in TL.split(',') if x]
    def touches():
        if not TL: return
        a(f'v_lshlrev_b32 v{AR.WR1}, 7, v{AR.LANE}')
        for x in TL:
            k = int(x[1:]); srdn = SRD_K if x[0] == 'K' else SRD_V
            a(f's_add_u32 s{S_U}, s{S_ROT}, {k * 8192}')
            a(f's_and_b32 s{S_U}, s{S_U}, 0x1ffff')
            a(f's_add_u32 s{S_U}, s{S_U}, s{S_WB}')
            a(f'buffer_load_dword v{AR.WR0}, v{AR.WR1}, {sr(srdn,4)}, s{S_U} offen {P.get("poltouch","")}')
    V0E = P.get('v0e', '').find(role) >= 0
    V0POS = P.get('v0pos' + role, P.get('v0pos', 3))
    def v0dma(): dma_tile8k(a, SRD_V, S_SO, S_VL, S_U + 2, POLV, vp)
    def kdma():
        dma_tile8k(a, SRD_K, S_SO, S_KL, S_U, POLK, kp)
        if V0E and V0POS < 0: dma_tile8k(a, SRD_V, S_SO, S_VL, S_U, POLV, vp)
        touches()
    npre = 0
    def pretouch(which):
        if which == 'wq':
            a(f'v_lshrrev_b32 v{AR.WR1}, 2, v{AR.LANE}')
            a(f's_lshl_b32 s{S_U}, s{S_B}, 6')
            a(f's_lshl_b32 s{S_U+2}, s{S_W}, 4')
            a(f's_add_u32 s{S_U}, s{S_U}, s{S_U+2}')
            a(f'v_add_u32 v{AR.WR1}, s{S_U}, v{AR.WR1}')
            a(f'v_lshlrev_b32 v{AR.WR1}, 13, v{AR.WR1}')
            a(f'v_and_b32 v{QT+5}, 3, v{AR.LANE}')
            a(f'v_lshl_add_u32 v{AR.WR1}, v{QT+5}, 6, v{AR.WR1}')
            a(f's_lshl_b32 s{S_U}, s{S_H}, 8')
            a(f'v_add_u32 v{AR.WR1}, s{S_U}, v{AR.WR1}')
            a(f'global_load_dword v{AR.WR0}, v{AR.WR1}, {sr(P_AWQ,2)}')
        else:
            a(f'v_lshlrev_b32 v{AR.WR1}, 5, v{AR.LANE}')
            a(f's_lshl_b32 s{S_U}, s{S_R}, 13')
            a(f's_lshl_b32 s{S_U+2}, s{S_W}, 11')
            a(f's_add_u32 s{S_U}, s{S_U}, s{S_U+2}')
            a(f'v_add_u32 v{AR.WR1}, s{S_U}, v{AR.WR1}')
            a(f'global_load_dword v{AR.WR0}, v{AR.WR1}, {sr(P_AX,2)}')
    PT = [x for x in P.get('pre', '').split(',') if x] if isB else []
    PTPOS = P.get('prepos', 0)
    if PTPOS == 0:
        for x in PT: pretouch(x)
    kdma0 = kdma
    def kdma():
        kdma0()
        if PTPOS == 1:
            for x in PT: pretouch(x)
    kpos = P['kpos'] if isB else P['kposA']
    if kpos < 0: kdma()
    qb_loads(a, P, kpos, kdma if kpos >= 0 else None, kvsetup if KVLATE else None)
    ts(a, 21)
    qb_compute(a, P, kpos, (16 if (V0E and V0POS < 0) else 8) + len(TL) + (len(PT) if PTPOS == 1 else 0), small=V0E,
               after=(v0dma if (V0E and V0POS >= 0) else None), afterstep=V0POS)
    ts(a, 1)
    if not isB:
        a(f's_cmp_eq_u32 s2, {128 if P.get("bbaa") else 256}')
        a('s_cbranch_scc0 A_noep2')
        a(f's_cmp_eq_u32 s{S_W}, 0')
        a('s_cbranch_scc0 A_noep2')
        a(f'v_readfirstlane_b32 s{S_T}, v{AR.WR0}')
        a(f's_add_u32 s{S_T}, s{S_T}, {NONCE_C}')
        a(f's_cmp_eq_u32 s{S_T}, 0')
        a(f's_cselect_b32 s{S_T}, {NONCE_C}, s{S_T}')
        a(f'v_mov_b32 v{AR.WR0}, s{S_T}')
        a(f'v_mov_b32 v{AR.WR1}, 0')
        a('s_mov_b64 exec, 1')
        a(f'global_store_dword v{AR.WR1}, v{AR.WR0}, {sr(P_WS,2)} offset:{WS_E} sc1')
        a(f'global_store_dword v{AR.WR1}, v{AR.WR0}, {sr(P_DBG,2)} sc1')
        a('s_mov_b64 exec, -1')
        a.label('A_noep2')
    OUT = 16
    def adv():
        ILV = P.get('ilv', '').find(role) >= 0
        a(f's_add_u32 s{S_ROT}, s{S_ROT}, {32768 if ILV else 8192}')
        a(f's_and_b32 s{S_ROT}, s{S_ROT}, {0x7ffff if ILV else 0x1ffff}')
        a(f's_add_u32 s{S_SO}, s{S_WB}, s{S_ROT}')
    KE = V0E and (P.get('kearly', '').find(role) >= 0)
    if KE:
        a(f's_mov_b32 s{S_U+1}, s{S_KL}')
        a(f's_mov_b32 s{S_U+2}, s{S_VL}')
        a(f's_mov_b32 s{S_U+3}, s{S_W}')
        call(a, 'SUB_READS')
        a('s_waitcnt vmcnt(8)')
        read_k(a)
        adv()
        a('s_waitcnt lgkmcnt(0)')
        dma_tile8k(a, SRD_K, S_SO, S_KL, S_U, POLK, kp)
        ts(a, 58)
    a('s_barrier')
    bmode = P['bmode'] if isB else P['bmodeA']
    if bmode == 0 and not V0E:
        dma_tile8k(a, SRD_V, S_SO, S_VL, S_U, POLV, vp)
    t = AR.T; L = AR.LANE
    a(f'v_lshrrev_b32 v{t+8}, 4, v{L}')
    a(f'v_lshlrev_b32 v{t+8}, 11, v{t+8}')
    a(f'v_and_b32 v{t+9}, 15, v{L}')
    a(f'v_lshl_add_u32 v{t+8}, v{t+9}, 4, v{t+8}')
    a(f's_lshl_b32 s{S_T}, s{S_W}, 9')
    a(f's_add_u32 s{S_T}, s{S_T}, 65536')
    a(f'v_add_u32 v{t+8}, s{S_T}, v{t+8}')
    a(f'ds_write_b128 v{t+8}, {vr(OUT,4)}')
    a(f'ds_write_b128 v{t+8}, {vr(OUT+4,4)} offset:256')
    if not KE:
        a(f's_mov_b32 s{S_U+1}, s{S_KL}')
        a(f's_mov_b32 s{S_U+2}, s{S_VL}')
        a(f's_mov_b32 s{S_U+3}, s{S_W}')
    if not KE and not (P.get('fast0') and P.get('f3', 1)): call(a, 'SUB_READS')
    a('s_waitcnt lgkmcnt(0)')
    a('s_barrier')
    a(f'v_lshrrev_b32 v{t}, 5, v{L}')
    a(f'v_lshlrev_b32 v{t}, 12, v{t}')
    a(f'v_and_b32 v{t+1}, 31, v{L}')
    a(f'v_lshl_add_u32 v{t}, v{t+1}, 4, v{t}')
    a(f'v_add_u32 v{t}, 65536, v{t}')
    for s in range(8):
        a(f'ds_read_b128 {vr(AR.Q+4*s,4)}, v{t} offset:{s*512}')
    if not KE and P.get('fast0') and P.get('f3', 1): call(a, 'SUB_READS')
    a(f's_mov_b32 s{S_PROB}, {1 if isB else 0}')
    a(f's_mov_b32 s{SRD_Y}, s{P_WS}')
    a(f's_mov_b32 s{SRD_Y+1}, s{P_WS+1}')
    srd(a, SRD_Y, YT)
    a(f's_mov_b32 s{S_CNT}, 0')
    a(f'v_mov_b32 v{VDBG+4}, 0')
    ts(a, 2)
    a(f's_setprio {P["prio_B" if isB else "prio_A"]}')
    def loop_end(lbl, lim):
        ts(a, 32, S_CNT)
        a(f's_add_u32 s{S_CNT}, s{S_CNT}, 1')
        a(f's_cmp_lt_u32 s{S_CNT}, {lim}')
        a(f's_cbranch_scc1 {lbl}')
    def body0(lbl, entry=None):
        a.label(lbl)
        if (not isB) and P.get('ahi') is not None:
            Lp = a.newlabel('L_pr')
            a(f's_cmp_eq_u32 s{S_CNT}, {P["ahi"]}')
            a(f's_cbranch_scc0 {Lp}')
            a(f's_setprio {P["prio_A2"]}')
            a.label(Lp)
        if P.get('abar') and not isB:
            if P['abar'] > 1:
                Lb = a.newlabel('L_nb')
                a(f's_cmp_lt_u32 s{S_CNT}, {P["abar"]}')
                a(f's_cbranch_scc0 {Lb}')
                a('s_barrier')
                a.label(Lb)
            else:
                a('s_barrier')
        a('s_waitcnt vmcnt(8)')
        if entry: a.label(entry)
        read_k(a)
        adv()
        a('s_waitcnt lgkmcnt(0)')
        icheck_site(a)
        Lk = a.newlabel('L_knext'); Lk2 = a.newlabel('L_kdone')
        a(f's_cmp_eq_u32 s{S_CNT}, 15')
        a(f's_cbranch_scc0 {Lk}')
        if not P.get('wo1late'): wo_dma(a, P, 0)
        if P.get('wopos', 0) == 2: wo_regs(a, P)
        mfma_s(a)
        a(f's_waitcnt vmcnt({(9 if P.get("wopos", 0) == 2 else 0) + (0 if P.get("wo1late") else 7)})')
        a(f's_branch {Lk2}')
        a.label(Lk)
        dma_tile8k(a, SRD_K, S_SO, S_KL, S_U, POLK, kp)
        mfma_s(a)
        a('s_waitcnt vmcnt(8)')
        a.label(Lk2)
        call(a, 'SUB_SOFT')
        Lv = a.newlabel('L_vskip')
        a(f's_cmp_eq_u32 s{S_CNT}, 15')
        a(f's_cbranch_scc1 {Lv}')
        dma_tile8k(a, SRD_V, S_SO, S_VL, S_U, POLV, vp)
        a.label(Lv)
        late_site(a)
        mfma_pv(a)
        loop_end(lbl, 16)
    def body1(lbl, lim):
        if V0E and P.get('peel'):
            Lv0 = a.newlabel('L_v0')
            a('s_waitcnt vmcnt(8)')
            a(f's_branch {Lv0}')
        a.label(lbl)
        a('s_waitcnt vmcnt(0)')
        if V0E and not P.get('peel') and not KE:
            Lv0 = a.newlabel('L_v0')
            a(f's_cmp_eq_u32 s{S_CNT}, 0')
            a(f's_cbranch_scc1 {Lv0}')
        dma_tile8k(a, SRD_V, S_SO, S_VL, S_U, POLV, vp)
        if V0E and not KE: a.label(Lv0)
        read_k(a)
        if P.get('wopos', 0) == 2 and lim == 16:
            Lz = a.newlabel('L_nwr')
            a(f's_cmp_eq_u32 s{S_CNT}, 15')
            a(f's_cbranch_scc0 {Lz}')
            wo_regs(a, P)
            a.label(Lz)
        adv()
        a('s_waitcnt lgkmcnt(0)')
        mfma_s(a)
        call(a, 'SUB_SOFT2')
        if P.get('wopos', 0) == 2 and lim == 16:
            Lx = a.newlabel('L_vw'); Ly = a.newlabel('L_vwd')
            a(f's_cmp_eq_u32 s{S_CNT}, 15')
            a(f's_cbranch_scc0 {Lx}')
            a('s_waitcnt vmcnt(9)')
            a(f's_branch {Ly}')
            a.label(Lx)
            a('s_waitcnt vmcnt(0)')
            a.label(Ly)
        else:
            a('s_waitcnt vmcnt(0)')
        icheck_site(a)
        if lim == 16:
            Lk = a.newlabel('L_knext'); Lk2 = a.newlabel('L_kdone')
            a(f's_cmp_eq_u32 s{S_CNT}, 15')
            a(f's_cbranch_scc0 {Lk}')
            if not P.get('wo1late'): wo_dma(a, P, 0)
            a(f's_branch {Lk2}')
            a.label(Lk)
            dma_tile8k(a, SRD_K, S_SO, S_KL, S_U, POLK, kp)
            a.label(Lk2)
        else:
            dma_tile8k(a, SRD_K, S_SO, S_KL, S_U, POLK, kp)
        late_site(a)
        read_v(a)
        a('s_waitcnt lgkmcnt(0)')
        mfma_pv(a)
        loop_end(lbl, lim)
    hyb = P.get('hyb' + role)
    if KE:
        assert hyb is None
        a('s_waitcnt lgkmcnt(0)')
        mfma_s(a)
        if bmode == 0:
            a('s_waitcnt vmcnt(8)')
            call(a, 'SUB_SOFT')
            dma_tile8k(a, SRD_V, S_SO, S_VL, S_U, POLV, vp)
        else:
            call(a, 'SUB_SOFT2')
            a('s_waitcnt vmcnt(8)')
            read_v(a)
            a('s_waitcnt lgkmcnt(0)')
        mfma_pv(a)
        ts(a, 32, S_CNT)
        a(f's_mov_b32 s{S_CNT}, 1')
    if bmode == 0:
        body0(role + '_loop')
    elif hyb is None:
        body1(role + '_loop', 16)
    else:
        body1(role + '_loop', hyb)
        a('s_waitcnt vmcnt(0)')
        dma_tile8k(a, SRD_V, S_SO, S_VL, S_U, POLV, vp)
        a(f's_branch {role}_entry0')
        body0(role + '_loop0', role + '_entry0')
    a(f's_setprio {P.get("prio_WB", P["prio_start"]) if isB else P["prio_W"]}')
    ts(a, 3)
    epi_c(a, role, P)
    if not isB:
        epi2(a, P)
        worky(a, P)
        a('s_branch L_end')

YWF = 128; YOF = 0; YAC = 64
class WK:
    vL16 = 226; vP = 227; vY = 228; vOut = 229; vF = 230; t = 199
S_OS = 60
S_OS4 = 72
S_YS = 76
S_YH = 77
def tail_setup(a, P):
    a.label('TAIL_SETUP')
    L = AR.LANE; t = AR.S; st = S_T
    S_MT = S_U + 2; S_NT = S_U + 3
    a(f's_and_b32 s{S_MT}, s{S_R}, 3')
    a(f's_lshr_b32 s{S_NT}, s{S_R}, 2')
    a(f's_lshl_b32 s{S_WKL}, s{S_W}, 13')
    a(f'v_lshlrev_b32 v{WK.vL16}, 4, v{L}')
    a(f's_lshl_b32 s{S_WH}, s{S_X}, 2')
    a(f's_add_u32 s{S_WH}, s{S_WH}, s{S_W}')
    a(f's_cmp_eq_u32 s{S_PROB}, 1')
    a(f's_cselect_b32 s{st+2}, s{P_BWO}, s{P_AWO}')
    a(f's_cselect_b32 s{st+3}, s{P_BWO+1}, s{P_AWO+1}')
    a(f's_lshl_b32 s{st}, s{S_NT}, 7')
    a(f's_add_u32 s{SRD_WQ}, s{st+2}, s{st}')
    a(f's_addc_u32 s{SRD_WQ+1}, s{st+3}, 0')
    a(f's_sub_u32 s{st+1}, 4194304, s{st}')
    srd(a, SRD_WQ, f's{st+1}')
    a(f's_lshl_b32 s{S_WO}, s{S_WH}, 17')
    a(f's_mov_b32 s{S_WL}, s{S_WKL}')
    a(f'v_lshrrev_b32 v{AR.WD}, 3, v{L}')
    a(f'v_lshlrev_b32 v{AR.WD}, 10, v{AR.WD}')
    a(f'v_and_b32 v{t}, 7, v{L}')
    a(f'v_lshl_add_u32 v{AR.WD}, v{t}, 4, v{AR.WD}')
    a(f'v_lshrrev_b32 v{t}, 5, v{L}')
    a(f'v_lshlrev_b32 v{t}, 2, v{t}')
    a(f'v_bfe_u32 v{t+1}, v{L}, 2, 2')
    a(f'v_add_u32 v{t}, v{t}, v{t+1}')
    a(f'v_lshlrev_b32 v{t}, 7, v{t}')
    a(f'v_bfe_u32 v{t+1}, v{L}, 4, 1')
    a(f'v_lshl_add_u32 v{t}, v{t+1}, 5, v{t}')
    a(f'v_and_b32 v{t+1}, 3, v{L}')
    a(f'v_lshl_add_u32 v{t}, v{t+1}, 3, v{t}')
    a(f's_and_b32 s{st}, s{S_W}, 1')
    a(f's_lshl_b32 s{st}, s{st}, 6')
    a(f's_add_u32 s{st+1}, s{S_WKL}, s{st}')
    a(f'v_add_u32 v{AR.WR0}, s{st+1}, v{t}')
    a(f's_xor_b32 s{st+1}, s{st+1}, 64')
    a(f'v_add_u32 v{AR.WR1}, s{st+1}, v{t}')
    a(f's_lshl_b32 s{st}, s{S_PROB}, 3')
    a(f's_lshl_b32 s{st+1}, s{S_MT}, 1')
    a(f's_add_u32 s{st}, s{st}, s{st+1}')
    a(f's_lshl_b32 s{st}, s{st}, 5')
    a(f's_add_u32 s{st}, s{st}, s{S_WH}')
    a(f's_lshl_b32 s{st+1}, s{st}, 13')
    a(f's_add_u32 s{st+1}, s{st+1}, {WS_O}')
    a(f's_add_u32 s{SRD_X}, s{P_WS}, s{st+1}')
    a(f's_addc_u32 s{SRD_X+1}, s{P_WS+1}, 0')
    srd(a, SRD_X, 262144 + 8192)
    a(f's_lshr_b32 s{st+1}, s{S_W}, 1')
    a(f's_lshl_b32 s{S_OS4}, s{st+1}, 18')
    a(f's_add_u32 s{S_OS4+1}, s{S_OS4}, 4096')
    a(f's_xor_b32 s{S_OS4+2}, s{S_OS4}, 262144')
    a(f's_add_u32 s{S_OS4+3}, s{S_OS4+2}, 4096')
    if OPOIS:
        if OPOIS == 1:
            a(f's_lshl_b32 s{st}, s{st}, 9')
            a(f's_add_u32 s{st}, s{st}, {FL_PZ}')
            a(f'v_bfe_u32 v{t}, v{L}, 2, 1')
            a(f'v_lshlrev_b32 v{t}, 14, v{t}')
            a(f'v_and_b32 v{t+1}, 3, v{L}')
            a(f'v_lshl_add_u32 v{t}, v{t+1}, 7, v{t}')
            a(f'v_add_u32 v{WK.vF}, s{st}, v{t}')
        else:
            a(f's_lshl_b32 s{st}, s{st}, 7')
            a(f's_add_u32 s{st}, s{st}, {FL_O2}')
            a(f'v_and_b32 v{t}, 1, v{L}')
            a(f'v_lshlrev_b32 v{t}, 12, v{t}')
            a(f'v_add_u32 v{WK.vF}, s{st}, v{t}')
        if P.get('pznar', 1) == 8:
            a(f'v_and_b32 v{t}, 7, v{L}')
            a(f'v_lshlrev_b32 v{t}, 10, v{t}')
            a(f'v_add_u32 v{WK.vF+1}, 1020, v{t}')
        elif P.get('pznar', 1) == 4:
            a(f'v_and_b32 v{t}, 3, v{L}')
            a(f'v_lshlrev_b32 v{t}, 11, v{t}')
            a(f'v_add_u32 v{WK.vF+1}, 2044, v{t}')
        else:
            a(f'v_mov_b32 v{WK.vF+1}, 8188')
        for i in range(4): a(f'v_mov_b32 v{PZR+i}, -1')
    else:
        a(f's_lshl_b32 s{st}, s{st}, 7')
        a(f's_add_u32 s{st}, s{st}, {FL_O2}')
        a(f's_lshl_b32 s{st+1}, s{st+1}, 12')
        a(f's_add_u32 s{st+2}, s{st}, s{st+1}')
        a(f'v_mov_b32 v{WK.vF}, s{st+2}')
        a(f's_xor_b32 s{st+1}, s{st+1}, 4096')
        a(f's_add_u32 s{st+2}, s{st}, s{st+1}')
        a(f'v_mov_b32 v{WK.vF+1}, s{st+2}')
    a(f's_lshl_b32 s{st}, s{S_B}, 5')
    a(f's_lshl_b32 s{st+1}, s{S_PROB}, 8')
    a(f's_add_u32 s{st}, s{st}, s{st+1}')
    a(f's_add_u32 s{st}, s{st}, s{S_H}')
    if OPOIS == 1:
        a(f's_lshl_b32 s{st}, s{st}, 2')
        a(f's_add_u32 s{st}, s{st}, s{S_W}')
    a(f's_lshl_b32 s{st}, s{st}, 7')
    a(f's_add_u32 s{st}, s{st}, {FL_PZ if OPOIS == 1 else FL_O2}')
    a(f'v_mov_b32 v{EP.FLA}, s{st}')
    a(f's_lshl_b32 s{st}, s{S_PROB}, 5')
    a(f's_lshl_b32 s{st+1}, s{S_MT}, 3')
    a(f's_add_u32 s{st}, s{st}, s{st+1}')
    a(f's_add_u32 s{st}, s{st}, s{S_NT}')
    a(f's_lshl_b32 s{st+1}, s{st}, 17')
    a(f's_add_u32 s{st+1}, s{st+1}, {WS_Y}')
    a(f's_add_u32 s{SRD_Y}, s{P_WS}, s{st+1}')
    a(f's_addc_u32 s{SRD_Y+1}, s{P_WS+1}, 0')
    srd(a, SRD_Y, YT)
    a(f's_lshl_b32 s{S_YS}, s{S_X}, 14')
    a(f's_lshl_b32 s{st}, s{S_W}, 12')
    a(f's_add_u32 s{S_YS}, s{S_YS}, s{st}')
    a(f's_mov_b32 s{S_YH}, 65536')
    a(f's_lshr_b32 s{st}, s{S_X}, 2')
    a(f's_lshl_b32 s{st}, s{st}, 13')
    a(f's_and_b32 s{st+1}, s{S_W}, 1')
    a(f's_lshl_b32 s{st+1}, s{st+1}, 12')
    a(f's_add_u32 s{st}, s{st}, s{st+1}')
    a(f's_and_b32 s{st+1}, s{S_X}, 3')
    a(f's_lshl_b32 s{st+1}, s{st+1}, 7')
    a(f's_add_u32 s{st}, s{st}, s{st+1}')
    a(f'v_lshrrev_b32 v{t}, 4, v{L}')
    a(f'v_bfe_u32 v{t+1}, v{L}, 3, 1')
    a(f'v_and_b32 v{t+2}, 7, v{L}')
    a(f'v_lshlrev_b32 v{t+3}, 14, v{t}')
    a(f'v_lshl_add_u32 v{t+3}, v{t+1}, 9, v{t+3}')
    a(f'v_lshl_add_u32 v{t+3}, v{t+2}, 4, v{t+3}')
    a(f'v_add_u32 v{t+3}, s{st}, v{t+3}')
    a(f's_lshr_b32 s{st}, s{S_W}, 1')
    a(f's_lshl_b32 s{st+1}, s{st}, 10')
    a(f'v_add_u32 v{WK.vP}, s{st+1}, v{t+3}')
    a(f's_lshl_b32 s{st+1}, s{st}, 3')
    a(f's_add_u32 s{st+1}, s{st+1}, 2048')
    a(f'v_add_u32 v{WK.vY}, s{st+1}, v{t+3}')
    a(f's_lshl_b32 s{st}, s{S_MT}, 1')
    a(f's_lshr_b32 s{st+1}, s{S_X}, 2')
    a(f's_add_u32 s{st}, s{st}, s{st+1}')
    a(f's_lshl_b32 s{st}, s{st}, 16')
    a(f's_and_b32 s{st+1}, s{S_X}, 3')
    a(f's_lshl_b32 s{st+1}, s{st+1}, 14')
    a(f's_add_u32 s{st}, s{st}, s{st+1}')
    a(f's_lshl_b32 s{st+1}, s{S_PROB}, 10')
    a(f's_add_u32 s{st}, s{st}, s{st+1}')
    a(f's_lshl_b32 s{st+1}, s{S_NT}, 7')
    a(f's_add_u32 s{st}, s{st}, s{st+1}')
    a(f's_and_b32 s{st+1}, s{S_W}, 1')
    a(f's_lshl_b32 s{st+1}, s{st+1}, 6')
    a(f's_add_u32 s{st}, s{st}, s{st+1}')
    a(f's_lshr_b32 s{st+1}, s{S_W}, 1')
    a(f's_lshl_b32 s{st+1}, s{st+1}, 4')
    a(f's_add_u32 s{st}, s{st}, s{st+1}')
    a(f'v_lshlrev_b32 v{t+3}, 11, v{t+2}')
    a(f'v_lshl_add_u32 v{t+3}, v{t+1}, 5, v{t+3}')
    a(f'v_lshl_add_u32 v{t+3}, v{t}, 2, v{t+3}')
    a(f'v_add_u32 v{WK.vOut}, s{st}, v{t+3}')
    a(f's_mov_b32 s{S_HI}, 0')
    a(f's_mov_b32 s{S_HI+1}, -1')
    a(f's_add_u32 s{st}, s{S_KL}, 7168')
    a(f'v_lshlrev_b32 v{t}, 2, v{L}')
    a(f'v_add_u32 v{EP.MLW}, s{st}, v{t}')
    a(f'v_add_u32 v{EP.TW}, s{S_VL}, v{WK.vL16}')
    a(f's_lshl_b32 s{st+1}, s{S_W}, 12')
    a(f's_add_u32 s{st+1}, s{st+1}, {STG}')
    a(f'v_add_u32 v{EP.SW}, s{st+1}, v{WK.vL16}')
    a(f'v_and_b32 v{t}, 31, v{L}')
    a(f'v_lshlrev_b32 v{t}, 2, v{t}')
    for k in range(4):
        a(f's_sub_u32 s{st}, s{S_W}, {k}')
        a(f's_and_b32 s{st}, s{st}, 3')
        a(f's_lshl_b32 s{st+1}, s{st}, 13')
        a(f's_add_u32 s{st+2}, s{st+1}, 7168')
        a(f'v_add_u32 v{EP.MLR+k}, s{st+2}, v{t}')
        if k >= 1:
            if k < 3:
                a(f's_add_u32 s{st+1}, s{st+1}, {32768 + (k-1)*4096}')
            else:
                a(f's_lshl_b32 s{st+1}, s{st}, 12')
                a(f's_add_u32 s{st+1}, s{st+1}, {STG}')
            a(f'v_add_u32 v{EP.TR+k}, s{st+1}, v{WK.vL16}')
    a(f's_lshl_b32 s{st}, s{S_W}, 11')
    a(f'v_add_u32 v{EP.OST}, s{st}, v{WK.vL16}')
    ret(a)

S_ST = 98
S_NP = 92
YC = 208
def oreg(beta, wp, c):
    return YOF + (beta*8 + 2*wp + c)*4 if c < 2 else YC + (beta*4 + wp)*4
def oload(a, beta, wp, c):
    a(f'buffer_load_dwordx4 {vr(oreg(beta, wp, c), 4)}, v{WK.vL16}, {sr(SRD_X,4)}, s{S_OS + beta*4 + wp} offen offset:{c*1024} sc1')
def oload8(a, beta, i):
    a(f'buffer_load_dwordx4 {vr(YOF + (beta*8+i)*4, 4)}, v{WK.vL16}, {sr(SRD_X,4)}, s{S_OS4 + beta*2 + (i>>2)} offen offset:{(i&3)*1024} sc1')
def tagcheck(a, regs, tmp):
    regs = list(regs)
    mn, mx = tmp, tmp + 1
    if len(regs) == 1:
        a(f'v_cmp_ne_u32 vcc, s{S_NONCE}, v{regs[0]}')
        a('s_cmp_eq_u64 vcc, 0')
        return
    assert len(regs) >= 3
    a(f'v_min3_u32 v{mn}, v{regs[0]}, v{regs[1]}, v{regs[2]}')
    a(f'v_max3_u32 v{mx}, v{regs[0]}, v{regs[1]}, v{regs[2]}')
    rest = regs[3:]
    while rest:
        if len(rest) >= 2:
            a(f'v_min3_u32 v{mn}, v{mn}, v{rest[0]}, v{rest[1]}')
            a(f'v_max3_u32 v{mx}, v{mx}, v{rest[0]}, v{rest[1]}')
            rest = rest[2:]
        else:
            a(f'v_min_u32 v{mn}, v{mn}, v{rest[0]}')
            a(f'v_max_u32 v{mx}, v{mx}, v{rest[0]}')
            rest = rest[1:]
    a(f'v_xor_b32 v{mn}, s{S_NONCE}, v{mn}')
    a(f'v_xor_b32 v{mx}, s{S_NONCE}, v{mx}')
    a(f'v_or_b32 v{mn}, v{mn}, v{mx}')
    a(f'v_cmp_ne_u32 vcc, 0, v{mn}')
    a('s_cmp_eq_u64 vcc, 0')

VPOLL = 240
def tr_reads(a):
    for Tt in range(4):
        for u in range(2):
            for nu in range(2):
                for v in range(2):
                    r = YWF + ((Tt*2+u)*2 + nu)*4 + 2*v
                    a(f'ds_read_b64_tr_b16 {vr(r, 2)}, v{AR.WR0 + nu} offset:{(Tt>>1)*32768 + (32*(Tt&1) + 16*u + 8*v) * 128}')
def fpoll(a, beta):
    if OPOIS:
        a(f'buffer_load_dword v{VPOLL+beta}, v{WK.vF+1}, {sr(SRD_X,4)}, s{S_OS4 + beta*2} offen sc1')
        return
    a(f'global_load_dword v{VPOLL+beta}, v{WK.vF+beta}, {sr(P_WS,2)} sc1')
def pcheck(a, beta, tmp):
    if OPOIS:
        a(f'v_cmp_eq_u32 vcc, -1, v{VPOLL+beta}')
        a('s_cmp_eq_u64 vcc, 0')
    else:
        tagcheck(a, [VPOLL + beta], tmp)
def ophase_flag(a, P):
    t = WK.t; vL16 = WK.vL16
    ts(a, 8)
    Ltop = a.newlabel('L_top'); Ld = a.newlabel('L_done')
    a(f's_mov_b32 s{S_SPIN}, {SPIN_LIMIT}')
    tr_reads(a)
    a.label(Ltop)
    a(f's_mov_b32 s{S_NP}, 0')
    for beta in range(2):
        Ls = a.newlabel('L_sk')
        a(f's_cmp_lg_u32 s{S_ST+beta}, 0')
        a(f's_cbranch_scc1 {Ls}')
        fpoll(a, beta)
        a(f's_add_u32 s{S_NP}, s{S_NP}, 1')
        a.label(Ls)
    for beta in range(2):
        Ls = a.newlabel('L_np'); Lw1 = a.newlabel('L_w1'); Lw11 = a.newlabel('L_w11'); Lw = a.newlabel('L_w')
        a(f's_bitcmp1_b32 s{S_ST+beta}, 0')
        a(f's_cbranch_scc0 {Ls}')
        a(f's_cmp_eq_u32 s{S_ST+beta}, 3')
        a(f's_cbranch_scc1 {Lw}')
        if beta == 0:
            a(f's_cmp_eq_u32 s{S_ST+1}, 1')
            a(f's_cbranch_scc1 {Lw11}')
        a(f's_cmp_eq_u32 s{S_NP}, 0')
        a(f's_cbranch_scc0 {Lw1}')
        a('s_waitcnt vmcnt(0)')
        a(f's_branch {Lw}')
        if beta == 0:
            a.label(Lw11)
            a('s_waitcnt vmcnt(8)')
            a(f's_branch {Lw}')
        a.label(Lw1)
        a('s_waitcnt vmcnt(1)')
        a.label(Lw)
        if OPOIS:
            tm = t + 4
            r0 = YOF + beta*32
            a(f'v_max3_u32 v{tm}, v{r0}, v{r0+1}, v{r0+2}')
            a(f'v_max3_u32 v{tm+1}, v{r0+3}, v{r0+4}, v{r0+5}')
            for i in range(6, 32, 4):
                a(f'v_max3_u32 v{tm}, v{tm}, v{r0+i}, v{r0+i+1}')
                if i + 3 < 32: a(f'v_max3_u32 v{tm+1}, v{tm+1}, v{r0+i+2}, v{r0+i+3}')
            a(f'v_max_u32 v{tm}, v{tm}, v{tm+1}')
            a(f'v_cmp_eq_u32 vcc, -1, v{tm}')
            a('s_cmp_eq_u64 vcc, 0')
            a(f's_cselect_b32 s{S_ST+beta}, 2, 0')
            a(f's_cbranch_scc0 {Ls}')
        else:
            a(f's_mov_b32 s{S_ST+beta}, 2')
        if beta == 0: ts(a, 9)
        a('s_waitcnt lgkmcnt(0)')
        for i in range(8):
            for nu in range(2):
                acc = vr(YAC + (beta*2+nu)*16, 16)
                c = '0' if i == 0 else acc
                a(f'v_mfma_f32_32x32x16_bf16 {acc}, {vr(YWF + (i*2+nu)*4, 4)}, {vr(YOF + (beta*8+i)*4, 4)}, {c}')
        a.label(Ls)
    a(f's_and_b32 s{S_T}, s{S_ST}, s{S_ST+1}')
    a(f's_cmp_eq_u32 s{S_T}, 2')
    a(f's_cbranch_scc1 {Ld}')
    a('s_waitcnt vmcnt(0)')
    a(f's_mov_b32 s{S_T+1}, 0')
    for beta in range(2):
        Ls = a.newlabel('L_nc')
        a(f's_cmp_lg_u32 s{S_ST+beta}, 0')
        a(f's_cbranch_scc1 {Ls}')
        pcheck(a, beta, t+4)
        a(f's_cbranch_scc0 {Ls}')
        a(f's_mov_b32 s{S_ST+beta}, 1')
        a(f's_mov_b32 s{S_T+1}, 1')
        for i in range(8): oload8(a, beta, i)
        a.label(Ls)
    Lns = a.newlabel('L_nosl')
    a(f's_cmp_lg_u32 s{S_T+1}, 0')
    a(f's_cbranch_scc1 {Lns}')
    if P['sleep']: a(f's_sleep {P["sleep"]}')
    a.label(Lns)
    a(f's_sub_u32 s{S_SPIN}, s{S_SPIN}, 1')
    a(f's_cmp_lg_u32 s{S_SPIN}, 0')
    a(f's_cbranch_scc1 {Ltop}')
    a.label(Ld)

def worky(a, P):
    t = WK.t; vL16 = WK.vL16
    ophase_flag(a, P)
    ts(a, 10)
    yoffs = [0, 4096, 32768]
    for k in range(1, 4):
        for j in range(4):
            a(f'ds_write_b128 v{t}, {vr(YAC + 16*k + 4*j, 4)} offset:{yoffs[k-1] + j*1024}')
    R = 192 + 16
    for i in (3, 7, 9, 11): a(f'v_mov_b32 v{R+i}, s{S_NONCE}')
    a('s_waitcnt lgkmcnt(0)')
    a('s_barrier')
    for k in range(1, 4):
        for j in range(4):
            a(f'ds_read_b128 {vr(YOF + 16*(k-1) + 4*j, 4)}, v{t+k} offset:{yoffs[k-1] + j*1024}')
    a('s_waitcnt lgkmcnt(4)')
    for i in range(0, 16, 2): pk('add', a, YOF+i, YOF+i, YOF+16+i)
    for i in range(0, 16, 2): pk('add', a, YAC+i, YAC+i, YOF+i)
    a('s_waitcnt lgkmcnt(0)')
    for i in range(0, 16, 2): pk('add', a, YAC+i, YAC+i, YOF+32+i)
    order = [0, 2, 1, 3]
    for n, j in enumerate(order):
        for d in range(2):
            a(f'v_cvt_pk_bf16_f32 v{R + CMAP[2*n + d]}, v{YAC + 4*j + 2*d}, v{YAC + 4*j + 2*d + 1}')
    for base in (0, 4):
        for d in range(2):
            a(f'v_permlane32_swap_b32 v{R + CMAP[base + d]}, v{R + CMAP[base + 2 + d]}')
    for g in range(2 if P.get('yabl') else 3):
        a(f'buffer_store_dwordx4 {vr(R + 4*g, 4)}, v{vL16}, {sr(SRD_Y,4)}, s{S_YS} offen offset:{g*1024} sc1')
    ts(a, 11)
    X = 16; XC = 24
    Lq = a.newlabel('L_p2'); Lqd = a.newlabel('L_p2d')
    a(f's_mov_b32 s{S_SPIN}, {SPIN_LIMIT}')
    YP = P.get('ypoll', 0)
    if YP:
        Ln = a.newlabel('L_yn'); Lnd = a.newlabel('L_ynd'); Lw = a.newlabel('L_yw')
        a(f'v_and_b32 v{t+6}, 7, v{AR.LANE}')
        a(f'v_lshlrev_b32 v{t+6}, 14, v{t+6}')
        a(f's_lshr_b32 s{S_T}, s{S_X}, 2')
        a(f's_lshl_b32 s{S_T}, s{S_T}, 13')
        a(f's_and_b32 s{S_T+1}, s{S_W}, 1')
        a(f's_lshl_b32 s{S_T+1}, s{S_T+1}, 12')
        a(f's_add_u32 s{S_T}, s{S_T}, s{S_T+1}')
        ytag = (1024 if P.get('yabl') else 2048) + 63*16 + 12
        a(f's_add_u32 s{S_T}, s{S_T}, {ytag}')
        a(f'v_add_u32 v{t+6}, s{S_T}, v{t+6}')
        if YP == 2:
            a(f's_cmp_lg_u32 s{S_W}, 0')
            a(f's_cbranch_scc1 {Lw}')
        a.label(Ln)
        a(f'buffer_load_dword v{t+7}, v{t+6}, {sr(SRD_Y,4)}, 0 offen sc1')
        a('s_waitcnt vmcnt(0)')
        YTH = P.get('yth', 0)
        if YTH:
            a(f'v_cmp_ne_u32 vcc, s{S_NONCE}, v{t+7}')
            a(f's_and_b32 s{S_T}, vcc_lo, 0xff')
            a(f's_bcnt1_i32_b32 s{S_T}, s{S_T}')
            a(f's_cmp_le_u32 s{S_T}, {YTH}')
        else:
            tagcheck(a, [t+7], t+4)
        a(f's_cbranch_scc1 {Lnd}')
        if P['sleep']: a(f's_sleep {P["sleep"]}')
        a(f's_sub_u32 s{S_SPIN}, s{S_SPIN}, 1')
        a(f's_cmp_lg_u32 s{S_SPIN}, 0')
        a(f's_cbranch_scc1 {Ln}')
        a.label(Lnd)
        if YP == 2:
            a.label(Lw)
            a('s_barrier')
        a(f's_mov_b32 s{S_SPIN}, {SPIN_LIMIT}')
    if P.get('yth', 0):
        MA, MB_ = S_U, S_U + 2
        a(f's_mov_b64 {sr(MA,2)}, -1')
        a(f's_mov_b64 {sr(MB_,2)}, -1')
        a.label(Lq)
        La = a.newlabel('L_ya'); Lb = a.newlabel('L_yb')
        a(f's_mov_b64 exec, {sr(MA,2)}')
        a(f's_cbranch_execz {La}')
        a(f'buffer_load_dwordx4 {vr(X, 4)}, v{WK.vP}, {sr(SRD_Y,4)}, 0 offen sc1')
        a(f'buffer_load_dwordx2 {vr(XC, 2)}, v{WK.vY}, {sr(SRD_Y,4)}, 0 offen sc1')
        a.label(La)
        a(f's_mov_b64 exec, {sr(MB_,2)}')
        a(f's_cbranch_execz {Lb}')
        a(f'buffer_load_dwordx4 {vr(X+4, 4)}, v{WK.vP}, {sr(SRD_Y,4)}, s{S_YH} offen sc1')
        a(f'buffer_load_dwordx2 {vr(XC+2, 2)}, v{WK.vY}, {sr(SRD_Y,4)}, s{S_YH} offen sc1')
        a.label(Lb)
        a('s_mov_b64 exec, -1')
        a('s_waitcnt vmcnt(0)')
        a(f'v_cmp_ne_u32 {sr(MA,2)}, s{S_NONCE}, v{X+3}')
        a(f'v_cmp_ne_u32 vcc, s{S_NONCE}, v{XC+1}')
        a(f's_or_b64 {sr(MA,2)}, {sr(MA,2)}, vcc')
        a(f'v_cmp_ne_u32 {sr(MB_,2)}, s{S_NONCE}, v{X+7}')
        a(f'v_cmp_ne_u32 vcc, s{S_NONCE}, v{XC+3}')
        a(f's_or_b64 {sr(MB_,2)}, {sr(MB_,2)}, vcc')
        a(f's_or_b64 vcc, {sr(MA,2)}, {sr(MB_,2)}')
        a('s_cmp_eq_u64 vcc, 0')
    else:
        a.label(Lq)
        a(f'buffer_load_dwordx4 {vr(X, 4)}, v{WK.vP}, {sr(SRD_Y,4)}, 0 offen sc1')
        a(f'buffer_load_dwordx4 {vr(X+4, 4)}, v{WK.vP}, {sr(SRD_Y,4)}, s{S_YH} offen sc1')
        if not P.get('yabl'):
            a(f'buffer_load_dwordx2 {vr(XC, 2)}, v{WK.vY}, {sr(SRD_Y,4)}, 0 offen sc1')
            a(f'buffer_load_dwordx2 {vr(XC+2, 2)}, v{WK.vY}, {sr(SRD_Y,4)}, s{S_YH} offen sc1')
        a('s_waitcnt vmcnt(0)')
        tagcheck(a, [X+3, X+7, XC+1, XC+3] if not P.get('yabl') else [X+3, X+7, X+3], t+4)
    a(f's_cbranch_scc1 {Lqd}')
    if P['sleep']: a(f's_sleep {P.get("ysleep", P["sleep"])}')
    a(f's_sub_u32 s{S_SPIN}, s{S_SPIN}, 1')
    a(f's_cmp_lg_u32 s{S_SPIN}, 0')
    a(f's_cbranch_scc1 {Lq}')
    a.label(Lqd)
    ts(a, 12)
    a(f'v_mov_b32 v{X+3}, v{XC}')
    a(f'v_mov_b32 v{X+7}, v{XC+2}')
    a(f's_mov_b32 s{S_T}, 0xffff0000')
    U = 32
    for d in range(4):
        a(f'v_lshlrev_b32 v{U + 2*d}, 16, v{X + d}')
        a(f'v_and_b32 v{U + 2*d + 1}, s{S_T}, v{X + d}')
    for d in range(4):
        a(f'v_lshlrev_b32 v{U + 8 + 2*d}, 16, v{X + 4 + d}')
        a(f'v_and_b32 v{U + 8 + 2*d + 1}, s{S_T}, v{X + 4 + d}')
    for e in range(8):
        a(f'v_add_f32 v{U + e}, v{U + e}, v{U + 8 + e}')
    for i in range(4):
        a(f'v_permlane32_swap_b32 v{U + i}, v{U + 4 + i}')
    for i in range(4):
        a(f'v_add_f32 v{U + i}, v{U + i}, v{U + 4 + i}')
    for i in range(2):
        a(f'v_permlane16_swap_b32 v{U + i}, v{U + 2 + i}')
    for i in range(2):
        a(f'v_add_f32 v{U + i}, v{U + i}, v{U + 2 + i}')
    a(f'v_cvt_pk_bf16_f32 v{U}, v{U}, v{U+1}')
    a(f'global_store_dword v{WK.vOut}, v{U}, {sr(P_OUT,2)}')
    ts(a, 13)

def gen_fused(P):
    a = Asm()
    a('s_cmp_ge_u32 s2, 512')
    a('s_cbranch_scc1 L_exit')
    a('s_load_dwordx16 s[16:31], s[0:1], 0')
    a('s_load_dwordx8 s[32:39], s[0:1], 64')
    a('s_load_dwordx2 s[40:41], s[0:1], 96')
    a('v_lshrrev_b32 v1, 6, v0')
    a(f'v_and_b32 v{AR.LANE}, 63, v0')
    a(f'v_readfirstlane_b32 s{S_W}, v1')
    a(f's_and_b32 s{S_X}, s2, 7')
    a(f's_lshr_b32 s{S_R}, s2, 3')
    a(f's_and_b32 s{S_R}, s{S_R}, 31')
    if P.get('bbaa'):
        a(f's_and_b32 s{S_R}, s{S_R}, 15')
        a(f's_lshr_b32 s{S_INIT}, s2, 8')
        a(f's_lshl_b32 s{S_INIT}, s{S_INIT}, 4')
        a(f's_add_u32 s{S_R}, s{S_R}, s{S_INIT}')
    a(f's_mov_b32 s{S_INIT}, 0')
    a(f's_setprio {P["prio_start"]}')
    a('s_waitcnt lgkmcnt(0)')
    if P.get('wsb'):
        a(f's_add_u32 s{P_WS}, s{P_WS}, {P["wsb"] << 20}')
        a(f's_addc_u32 s{P_WS+1}, s{P_WS+1}, 0')
    if TS_ON:
        a('v_mov_b32 v249, 0')
        ts(a, 0)
    if P.get('bbaa'):
        a('s_bitcmp1_b32 s2, 7')
    else:
        a('s_cmp_ge_u32 s2, 256')
    a('s_cbranch_scc1 ROLE_A')
    gen_unit(a, P, 'B')
    sub_reads(a)
    tail_setup(a, P)
    if P['bmode'] == 0 or P['bmodeA'] == 0 or P.get('hybB') or P.get('hybA'): sub_soft(a)
    if P['bmode'] != 0 or P['bmodeA'] != 0: sub_soft2(a)
    gen_unit(a, P, 'A')
    a.label('L_end')
    if TS_ON:
        ts(a, 16)
        a(f's_lshl_b32 s8, s2, 2')
        a(f's_add_u32 s8, s8, s{S_W}')
        a('s_lshl_b32 s8, s8, 8')
        a(f's_add_u32 s8, s8, {WS_TS}')
        if P.get('wsb'):
            a(f's_sub_u32 s{P_WS}, s{P_WS}, {P["wsb"] << 20}')
            a(f's_subb_u32 s{P_WS+1}, s{P_WS+1}, 0')
        a(f'v_lshlrev_b32 v248, 2, v{AR.LANE}')
        a('v_add_u32 v248, s8, v248')
        a(f'global_store_dword v248, v249, {sr(P_WS,2)}')
    a.label('L_exit')
    a('s_endpgm')
    return finish(a)

DEF = dict(polkv='nt', polw='nt', polx='nt', polwo='nt', ring=4, sleep=2, prio_start=3, prio_A0=2, prio_A=2, prio_B=0, prio_W=3,
           kpos=3, kposA=3, bmode=1, bmodeA=1, wo0=4, sym=1)

def build(out, **kw):
    global TS_ON, NOINIT, SLEEP0, ABL, TLBW, OTAG, WOTOUCH, OPOIS, PZC, FAST0
    FAST0 = kw.get('fast0', 0)
    OPOIS = kw.get('opois', 0)
    PZC = kw.get('pzc', 2)
    WOTOUCH = kw.get('wotouch')
    OTAG = kw.get('otag', 0)
    TLBW = kw.get('tlbw')
    ABL = kw.get('abl', '').split(',')
    P = dict(DEF); P.update(kw)
    NOINIT = bool(P.get('noA'))
    SLEEP0 = P.get('sleep0', 1)
    TS_ON = P.get('ts', False)
    kn = NAME + '_kernel'
    t = file_text([(None, 512, 256, 81920)], [(kn, gen_fused(P), 256, 100, None)])
    open(out, 'w').write(t)

if __name__ == '__main__':
    import sys
    build('m0.s')
    build('m0_ts.s', ts=True)
```

```python
from fused15 import build
A = dict(polKA='', polVA='', polw='', polx='', polwo='', bmodeA=0, prio_A=0, ypoll=2, ppos=0, wopos=1, v0e='AB', v0pos=3, xfull=1)
def b(name, **kw):
    d = dict(A); d.update(kw); build(name, **d)
b('zv_1.s', pwait=1)
b('zv_2.s', pwait=2)
b('zv_4.s', pwait=4)
b('zv_20.s', pwait=20)
```
